```python
import torch

def _softmax(x, axis=-1):
    return torch.softmax(x, dim=axis)

def _gelu(x):
    return torch.nn.functional.gelu(x, approximate='tanh')

def _silu(x):
    return torch.nn.functional.silu(x)

def _sigmoid(x):
    return torch.sigmoid(x)

def _layernorm(x, axis=-1, eps=1e-05):
    m = x.mean(dim=axis, keepdim=True)
    v = x.var(dim=axis, keepdim=True, unbiased=False)
    return (x - m) / torch.sqrt(v + eps)

def _scatter_add(tgt, idx, src, axis=0):
    return tgt.clone().index_add_(axis, idx, src)

def _segment_sum(src, seg, n):
    out = torch.zeros((n,) + src.shape[1:], dtype=src.dtype)
    return out.index_add_(0, seg, src)

def _pad(x, pw):
    flat = tuple((v for pair in reversed(pw) for v in pair))
    return torch.nn.functional.pad(x, flat)
kernel_name = 'adaLN_cond__ssm_conv_h3__mixer_s_mlp__prompt'

def setup_inputs():

    _w = lambda a: (lambda t: t.to(torch.bfloat16) if t.is_floating_point() else t)(torch.as_tensor(a))

    def _A_setup():
        B, S, D = (1, 2048, 640)
        ks = 4
        return {'q': _w((lambda *s: torch.randn(*s, dtype=torch.bfloat16) * 0.05)(B, S, D)), 'k': _w((lambda *s: torch.randn(*s, dtype=torch.bfloat16) * 0.8)(B, S, D)), 'v': _w((lambda *s: torch.randn(*s, dtype=torch.bfloat16) * 0.8)(B, S, D)), 'shift_k': _w((lambda *s: torch.randn(*s, dtype=torch.bfloat16) * 0.8)(D, ks) * 0.5), 'ssm_k': _w((lambda *s: torch.randn(*s, dtype=torch.bfloat16) * 0.8)(D, S) * (1.0 / S ** 0.5)), 'ssm_D': _w((lambda *s: torch.randn(*s, dtype=torch.bfloat16) * 0.8)(D))}
    _A_in = _A_setup()

    def _B_setup():
        B, S, D, F = (1, 2048, 640, 1728)
        return {'x': _w((lambda *s: torch.randn(*s, dtype=torch.bfloat16) * 0.05)(B, S, D)), 'w1': _w((lambda *s: torch.randn(*s, dtype=torch.bfloat16) * 3.2)(D, D) * D ** (-0.5)), 'w2': _w((lambda *s: torch.randn(*s, dtype=torch.bfloat16) * 3.2)(D, D) * D ** (-0.5)), 'w3': _w((lambda *s: torch.randn(*s, dtype=torch.bfloat16) * 3.2)(D, F) * D ** (-0.5)), 'w4': _w((lambda *s: torch.randn(*s, dtype=torch.bfloat16) * 3.2)(F, D) * F ** (-0.5))}
    _B_in = _B_setup()
    return {'A_q': _A_in['q'], 'A_k': _A_in['k'], 'A_v': _A_in['v'], 'A_shift_k': _A_in['shift_k'], 'A_ssm_k': _A_in['ssm_k'], 'A_ssm_D': _A_in['ssm_D'], 'B_x': _B_in['x'], 'B_w1': _B_in['w1'], 'B_w2': _B_in['w2'], 'B_w3': _B_in['w3'], 'B_w4': _B_in['w4'], 'c': _w((lambda *s: torch.randn(*s, dtype=torch.bfloat16) * 0.1)(1, 640) * 8.0), 'w_mod': _w((lambda *s: torch.randn(*s, dtype=torch.bfloat16) * 0.1)(640, 6 * 640) * 640 ** (-0.5) * 8.0)}

def reference(A_q, A_k, A_v, A_shift_k, A_ssm_k, A_ssm_D, B_x, B_w1, B_w2, B_w3, B_w4, c, w_mod):

    def _A_ref(q, k, v, shift_k, ssm_k, ssm_D):
        B, S, D = q.shape
        ks = shift_k.shape[-1]
        k_pad = _pad(k, ((0, 0), (ks - 1, 0), (0, 0)))
        k_shift = torch.zeros_like(k)
        for t in range(ks):
            k_shift = k_shift + k_pad[:, t:t + S, :] * shift_k[:, ks - 1 - t][None, None, :]
        kv = k_shift * v
        L = 2 * S
        kv_pad = _pad(kv, ((0, 0), (0, S), (0, 0)))
        kf_pad = _pad(ssm_k, ((0, 0), (0, S)))
        kv_f = (lambda x, axes=(-2, -1): torch.fft.rfft2(x.float(), dim=axes))(kv_pad[:, None, :, :], axes=(1, 2))
        kf_f = (lambda x, axes=(-2, -1): torch.fft.rfft2(x.float(), dim=axes))(kf_pad[:, None, :], axes=(1, 2))
        kf_f = (lambda x, *d: x.permute(*d))(kf_f, 1, 2, 0)
        y_f = kv_f * kf_f[None, :, :, :]
        y = (lambda x, s, axes=(-2, -1): torch.fft.irfft2(x, s=s, dim=axes).to(torch.bfloat16))(y_f, (1, L), axes=(1, 2))[:, 0, :S, :]
        y = y + kv * ssm_D[None, None, :]
        return q * y

    def _B_ref(x, w1, w2, w3, w4):
        B, S, D = x.shape
        h = _gelu(_layernorm(x, axis=-1) @ w1)
        c = D // 4
        g0 = _pad(h[:, :, 0 * c:1 * c], ((0, 0), (1, 0), (0, 0)))[:, :S, :]
        g1 = _pad(h[:, :, 1 * c:2 * c], ((0, 0), (0, 1), (0, 0)))[:, 1:, :]
        g2 = _pad(h[:, :, 2 * c:3 * c], ((0, 0), (2, 0), (0, 0)))[:, :S, :]
        g3 = _pad(h[:, :, 3 * c:], ((0, 0), (0, 2), (0, 0)))[:, 2:, :]
        hs = torch.concatenate([g0, g1, g2, g3], axis=-1) @ w2
        x1 = x + hs
        h2 = _gelu(_layernorm(x1, axis=-1) @ w3) @ w4
        return x1 + h2
    x = A_q
    mod = (_silu(c) @ w_mod).reshape(c.shape[0], 6, 1, -1)
    sa, ca, ga, sb, cb, gb = (mod[:, 0].clone(), mod[:, 1].clone(), mod[:, 2].clone(), mod[:, 3].clone(), mod[:, 4].clone(), mod[:, 5].clone())
    h = _layernorm(x, axis=-1) * (1 + ca) + sa
    x = x + ga * _A_ref(h, A_k, A_v, A_shift_k, A_ssm_k, A_ssm_D)
    h = _layernorm(x, axis=-1) * (1 + cb) + sb
    x = x + gb * _B_ref(h, B_w1, B_w2, B_w3, B_w4)
    return x
```

```python
import os
import layout as L
SZ_SD = 2048 * 640 * 2
C0 = -2.0 * 0.7978845608028654 * 1.4426950408889634
C1 = C0 * 0.044715
import struct
def fhex(x):
    return "0x%08x" % struct.unpack("<I", struct.pack("<f", x))[0]

def gelu4(k, z, t, vc0, sc1):
    for i in range(4):
        k(f"v_mul_f32 v{t+i}, v{z+i}, v{z+i}")
    for i in range(4):
        k(f"v_fma_f32 v{t+i}, v{t+i}, s{sc1}, v{vc0}")
    for i in range(4):
        k(f"v_mul_f32 v{t+i}, v{t+i}, v{z+i}")
    for i in range(4):
        k(f"v_exp_f32 v{t+i}, v{t+i}")
    for i in range(4):
        k(f"v_add_f32 v{t+i}, 1.0, v{t+i}")
    for i in range(4):
        k(f"v_rcp_f32 v{t+i}, v{t+i}")
    k("s_nop 0")
    for i in range(4):
        k(f"v_mul_f32 v{z+i}, v{z+i}, v{t+i}")

def ln_finish(k, s1, s2, t, n):
    k(f"""
    v_mul_f32 v{s1}, {fhex(1.0/n)}, v{s1}
    v_mul_f32 v{s2}, {fhex(1.0/n)}, v{s2}
    v_fma_f32 v{s2}, -v{s1}, v{s1}, v{s2}
    v_max_f32 v{s2}, 0, v{s2}
    """)
    k.round2(s1, s2, t)
    k(f"""
    v_add_f32 v{s2}, {fhex(1e-5)}, v{s2}
    v_cvt_pk_bf16_f32 v{t}, v{s2}, v{s2}
    v_lshlrev_b32 v{s2}, 16, v{t}
    v_sqrt_f32 v{s2}, v{s2}
    s_nop 0
    v_cvt_pk_bf16_f32 v{t}, v{s2}, v{s2}
    v_lshlrev_b32 v{s2}, 16, v{t}
    v_rcp_f32 v{s2}, v{s2}
    s_nop 0
    v_mul_f32 v{s1}, v{s1}, v{s2}
    v_sub_f32 v{s1}, 0, v{s1}
    """)

def reduce16(k, a, b):
    for ctl in ("quad_perm:[1,0,3,2]", "quad_perm:[2,3,0,1]", "row_half_mirror", "row_mirror"):
        k("s_nop 0")
        k(f"v_add_f32_dpp v{a}, v{a}, v{a} {ctl} row_mask:0xf bank_mask:0xf")
        k(f"v_add_f32_dpp v{b}, v{b}, v{b} {ctl} row_mask:0xf bank_mask:0xf")

def reduce_g(k, a, b, t):
    for sw in ("v_permlane32_swap_b32", "v_permlane16_swap_b32"):
        k(f"""
        v_mov_b32 v{t}, v{a}
        v_mov_b32 v{t+1}, v{b}
        s_nop 1
        {sw} v{t}, v{a}
        {sw} v{t+1}, v{b}
        s_nop 0
        v_add_f32 v{a}, v{a}, v{t}
        v_add_f32 v{b}, v{b}, v{t+1}
        """)

def prefetch(k, vr, base, half_bytes, nhalf, dreg, lane16="v8", srd="s[28:31]"):
    if os.environ.get("NOPF"): return
    per = (half_bytes + 255) // 256
    per = (per + 15) // 16 * 16
    n = (per + 1023) // 1024
    k(f"""
    s_lshr_b32 s26, s2, 3
    s_lshl_b32 s26, s26, 3
    s_add_u32 s26, s26, s20
    s_mul_i32 s26, s26, {per}
    s_and_b32 s27, s2, {nhalf-1}
    s_mul_i32 s27, s27, {half_bytes}
    s_add_u32 s26, s26, s27
    s_add_u32 s26, s26, {base}
    """)
    for i in range(n):
        if i and i % 4 == 0:
            k("s_add_u32 s26, s26, 4096")
        k(f"buffer_load_dwordx4 {vr(dreg+4*(i%2),4)}, {lane16}, {srd}, s26 offen offset:{(i%4)*1024}")

def gelu4pk(k, vr, z, t, vc):
    for i in (0, 2):
        k(f"v_pk_mul_f32 {vr(t+i,2)}, {vr(z+i,2)}, {vr(z+i,2)}")
    for i in (0, 2):
        k(f"v_pk_fma_f32 {vr(t+i,2)}, {vr(t+i,2)}, {vr(vc,2)}, {vr(vc,2)} op_sel:[0,0,1] op_sel_hi:[1,0,1]")
    for i in (0, 2):
        k(f"v_pk_mul_f32 {vr(t+i,2)}, {vr(t+i,2)}, {vr(z+i,2)}")
    for i in range(4):
        k(f"v_exp_f32 v{t+i}, v{t+i}")
    for i in range(4):
        k(f"v_add_f32 v{t+i}, 1.0, v{t+i}")
    for i in range(4):
        k(f"v_rcp_f32 v{t+i}, v{t+i}")
    k("s_nop 0")
    for i in (0, 2):
        k(f"v_pk_mul_f32 {vr(z+i,2)}, {vr(z+i,2)}, {vr(t+i,2)}")

def gen_k2(Kern, vr):
    AOFF = 136
    k = Kern("k2_kernel", 256, 512, 97280 + 256, vgpr=AOFF, sgpr=64, agpr=120)
    ar = lambda a, n: f"a[{a}:{a+n-1}]"
    end = "k2_end"
    MODL, EX = 40960, 56320
    YL = 56320
    RSL = 97280
    k(f"""
    s_cmp_ge_u32 s2, 256
    s_cbranch_scc1 {end}
    s_load_dwordx2 s[4:5], s[0:1], 0
    s_load_dwordx2 s[10:11], s[0:1], 120
    v_lshrrev_b32 v2, 6, v0
    v_and_b32 v1, 63, v0
    v_readfirstlane_b32 s20, v2
    s_and_b32 s23, s2, 7
    s_lshl_b32 s23, s23, 3
    s_lshr_b32 s24, s2, 5
    s_add_u32 s23, s23, s24
    s_lshr_b32 s24, s2, 3
    s_and_b32 s24, s24, 3               ; j
    s_and_b32 s21, s20, 3               ; w'
    s_lshr_b32 s22, s20, 2              ; h
    v_lshrrev_b32 v3, 4, v1             ; r (=g)
    v_and_b32 v4, 15, v1                ; c (=m)
    s_lshl_b32 s25, s23, 5
    s_lshl_b32 s26, s20, 2
    s_add_u32 s25, s25, s26
    v_add_u32 v5, s25, v3               ; row
    v_mul_u32_u24 v6, 1280, v5
    v_lshl_add_u32 v6, v4, 4, v6        ; x offset
    v_lshlrev_b32 v8, 4, v1             ; lane*16
    s_waitcnt lgkmcnt(0)
    """)
    k.stamp(0)
    k.srd(16, 4, SZ_SD); k.srd(28, 10, 0x10000000)
    XR, YR, XF, MT, T = 16, 36, 56, 96, 120
    for t in range(5):
        k(f"buffer_load_dwordx4 {vr(XR+4*t,4)}, v6, s[16:19], 0 offen offset:{256*t}")
    k(f"""
    s_mul_i32 s26, s20, 5120
    s_add_u32 s27, s26, {YL}
    s_mov_b32 m0, s27
    s_mul_i32 s27, s23, 40960
    s_add_u32 s26, s26, s27
    s_add_u32 s26, s26, {L.YT}
    """)
    for i in range(4):
        k(f"buffer_load_dwordx4 v8, s[28:31], s26 offen offset:{1024*i} lds")
    k(f"""
    s_mul_i32 s27, s20, 5120
    s_add_u32 s27, s27, {YL+4096}
    s_mov_b32 m0, s27
    s_add_u32 s26, s26, 4096
    buffer_load_dwordx4 v8, s[28:31], s26 offen lds
    s_lshl_b32 s26, s20, 10
    s_add_u32 s27, s26, {MODL}
    s_mov_b32 m0, s27
    s_add_u32 s26, s26, {L.MODF}
    buffer_load_dwordx4 v8, s[28:31], s26 offen lds
    s_add_u32 s26, s20, 8
    s_min_u32 s26, s26, 14
    s_lshl_b32 s26, s26, 10
    s_add_u32 s27, s26, {MODL}
    s_mov_b32 m0, s27
    s_add_u32 s26, s26, {L.MODF}
    buffer_load_dwordx4 v8, s[28:31], s26 offen lds
    v_bfe_u32 v7, v5, 1, 3
    v_and_b32 v9, 7, v4
    v_xor_b32 v7, v7, v9
    v_and_b32 v9, 1, v5
    v_lshl_add_u32 v7, v7, 1, v9
    v_lshlrev_b32 v7, 3, v7
    v_lshl_add_u32 v7, v4, 8, v7
    s_mul_i32 s26, s22, 20480
    s_add_u32 s26, s26, {YL}
    v_add_u32 v7, s26, v7
    s_mul_i32 s32, s21, 5
    s_lshr_b32 s32, s32, 1              ; nt0
    s_and_b32 s33, s21, 1               ; odd
    s_add_u32 s34, s32, s33             ; F0
    s_add_u32 s35, s34, 1               ; F1
    s_lshl_b32 s36, s33, 1
    s_sub_u32 s36, 2, s36
    s_add_u32 s36, s36, s32
    s_mul_i32 s37, s24, 10
    s_mul_i32 s38, s22, 10240
    s_add_u32 s38, s38, {L.W1P}
    v_add_u32 v9, 4096, v8
    v_add_u32 v10, 8192, v8
    v_lshlrev_b32 v11, 5, v4
    v_add_u32 v11, {MODL}, v11
    v_lshrrev_b32 v6, 4, v5
    v_mul_u32_u24 v6, 20, v6
    v_lshrrev_b32 v12, 2, v4
    v_add_u32 v6, v6, v12
    v_and_b32 v12, 3, v4
    v_and_b32 v13, 15, v5
    v_lshl_add_u32 v12, v12, 4, v13
    v_lshlrev_b32 v12, 4, v12
    v_lshl_add_u32 v6, v6, 10, v12
    v_and_b32 v12, 7, v4
    v_xor_b32 v12, v13, v12
    v_and_b32 v13, 3, v4
    v_lshl_add_u32 v12, v13, 4, v12
    v_lshrrev_b32 v13, 2, v4
    v_lshl_add_u32 v12, v13, 6, v12
    v_lshlrev_b32 v12, 4, v12
    s_mul_i32 s26, s22, 20480
    v_add_u32 v12, s26, v12
    """)
    for n in range(3):
        k(f"""
        s_add_u32 s{40+n}, s37, s{34+n}
        s_mul_i32 s{40+n}, s{40+n}, 20480
        s_add_u32 s{40+n}, s{40+n}, s38
        """)
    S1, S2, N1, N2, ONE = T, T + 1, T + 4, T + 5, T + 6
    k(f"""
    v_mov_b32 v{S1}, 0
    v_mov_b32 v{S2}, 0
    v_mov_b32 v{N1}, 0
    v_mov_b32 v{N2}, 0
    v_mov_b32 v{ONE}, 0x3f803f80
    """)
    wl = []
    for i in range(10):
        for n in range(3):
            wl.append(f"buffer_load_dwordx4 {ar(40*n+4*i,4)}, v{8+i//4}, s[28:31], s{40+n} offen offset:{(i%4)*1024}")
    NW0 = int(os.environ.get("NW0", 8))
    for _ in range(NW0):
        k(wl.pop(0))
    k(f"s_waitcnt vmcnt({7+NW0})")
    NWA = int(os.environ.get("NWA", 6))
    for d in range(20):
        k(f"v_dot2_f32_bf16 v{S1}, v{XR+d}, v{ONE}, v{S1}")
        k(f"v_dot2_f32_bf16 v{S2}, v{XR+d}, v{XR+d}, v{S2}")
        k.unpack(XF + 2*d, XF + 2*d + 1, XR + d)
        if wl and d % 3 == 2 and d // 3 < NWA:
            k(wl.pop(0))
    k("s_nop 1")
    reduce16(k, S1, S2)
    ln_finish(k, S1, S2, T + 2, 640)
    k(f"s_waitcnt vmcnt({30-len(wl)})")
    k("s_barrier")
    k.stamp(1)
    for t in range(5):
        k(f"ds_read_b64 {vr(YR+4*t,2)}, v7 offset:{t*4096}")
        k(f"ds_read_b64 {vr(YR+4*t+2,2)}, v7 offset:{t*4096+128}")
    BC = "op_sel:[0,1,0] op_sel_hi:[1,1,0]"
    tp, ty = T + 8, T + 10
    for t in range(5):
        for vi, vec in enumerate((1, 0, 2)):
            k(f"ds_read_b128 {vr(MT+8*vi,4)}, v11 offset:{vec*2560+t*512}")
            k(f"ds_read_b128 {vr(MT+8*vi+4,4)}, v11 offset:{vec*2560+t*512+16}")
        k("s_waitcnt lgkmcnt(0)")
        for d in range(4):
            e = XF + 8*t + 2*d
            if wl: k(wl.pop(0))
            k.unpack(ty, ty + 1, YR + 4*t + d)
            k(f"v_pk_fma_f32 {vr(tp,2)}, {vr(e,2)}, {vr(S1,2)}, {vr(S1,2)} {BC}")
            k(f"v_pk_fma_f32 {vr(tp,2)}, {vr(tp,2)}, {vr(MT+2*d,2)}, {vr(MT+8+2*d,2)}")
            k(f"v_pk_mul_f32 {vr(tp,2)}, {vr(tp,2)}, {vr(ty,2)}")
            k(f"v_pk_fma_f32 {vr(e,2)}, {vr(MT+16+2*d,2)}, {vr(tp,2)}, {vr(e,2)}")
            k.round2(e, e + 1, XR + 4*t + d)
            k(f"v_dot2_f32_bf16 v{N1}, v{XR+4*t+d}, v{ONE}, v{N1}")
            k(f"v_dot2_f32_bf16 v{N2}, v{XR+4*t+d}, v{XR+4*t+d}, v{N2}")
    k.stamp(5)
    l1 = k.newlab()
    k(f"""
    s_lshr_b32 s26, s20, 1
    s_cmp_lg_u32 s24, s26
    s_cbranch_scc1 {l1}
    """)
    for t in range(5):
        k(f"s_mov_b32 s26, {L.XA+4096*t}")
        k(f"buffer_store_dwordx4 {vr(XR+4*t,4)}, v6, s[28:31], s26 offen")
    k.lab(l1)
    k("s_nop 1")
    reduce16(k, N1, N2)
    ln_finish(k, N1, N2, T + 2, 640)
    k.stamp(6)
    k(f"v_mov_b32 v{S1}, 0")
    k(f"v_mov_b32 v{S2}, 0")
    for t in range(5):
        for vi, vec in enumerate((4, 3)):
            k(f"ds_read_b128 {vr(MT+8*vi,4)}, v11 offset:{vec*2560+t*512}")
            k(f"ds_read_b128 {vr(MT+8*vi+4,4)}, v11 offset:{vec*2560+t*512+16}")
        k("s_waitcnt lgkmcnt(0)")
        for d in range(4):
            e = XF + 8*t + 2*d
            if wl and d % 2 == 0: k(wl.pop(0))
            k(f"v_pk_fma_f32 {vr(e,2)}, {vr(e,2)}, {vr(N1,2)}, {vr(N1,2)} {BC}")
            k(f"v_pk_fma_f32 {vr(e,2)}, {vr(e,2)}, {vr(MT+2*d,2)}, {vr(MT+8+2*d,2)}")
            k(f"v_cvt_pk_bf16_f32 v{YR+4*t+d}, v{e}, v{e+1}")
            k(f"v_dot2_f32_bf16 v{S1}, v{YR+4*t+d}, v{ONE}, v{S1}")
            k(f"v_dot2_f32_bf16 v{S2}, v{YR+4*t+d}, v{YR+4*t+d}, v{S2}")
        k(f"ds_write_b128 v12, {vr(YR+4*t,4)} offset:{4096*t}")
    assert not wl
    k.stamp(7)
    l2 = k.newlab()
    k(f"""
    s_lshr_b32 s26, s20, 1
    s_cmp_lg_u32 s24, s26
    s_cbranch_scc1 {l2}
    """)
    for t in range(5):
        k(f"s_mov_b32 s26, {L.HB+4096*t}")
        k(f"buffer_store_dwordx4 {vr(YR+4*t,4)}, v6, s[28:31], s26 offen")
    k.lab(l2)
    CS = 96
    k(f"""
    v_lshlrev_b32 v13, 4, v3
    s_mul_i32 s26, s24, 640
    s_add_u32 s26, s26, {L.CS1P}
    """)
    for n in range(3):
        k(f"s_lshl_b32 s27, s{34+n}, 6")
        k(f"s_add_u32 s27, s27, s26")
        k(f"buffer_load_dwordx4 {vr(CS+8*n,4)}, v13, s[28:31], s27 offen")
        k(f"s_add_u32 s27, s27, {1792*4}")
        k(f"buffer_load_dwordx4 {vr(CS+8*n+4,4)}, v13, s[28:31], s27 offen")
    reduce16(k, S1, S2)
    ln_finish(k, S1, S2, T + 2, 640)
    k(f"""
    s_lshl_b32 s26, s20, 5
    v_lshl_add_u32 v13, v3, 3, s26
    v_add_u32 v13, {RSL}, v13
    ds_write_b64 v13, {vr(S1,2)}
    v_xor_b32 v12, v4, v3
    v_xor_b32 v13, 4, v12
    v_lshl_add_u32 v12, v3, 4, v12
    v_lshl_add_u32 v13, v3, 4, v13
    s_mul_i32 s26, s22, 10240
    v_lshl_add_u32 v12, v12, 4, s26
    v_lshl_add_u32 v13, v13, 4, s26
    s_mul_i32 s26, s33, 20480
    v_add_u32 v14, s26, v12
    v_add_u32 v15, s26, v13
    s_waitcnt lgkmcnt(0)
    s_barrier
    """)
    k.stamp(2)
    ACC, AF = 16, 40
    def aread(i):
        b = AF + 12 * (i & 1)
        va, vh = (12, 14) if i % 2 == 0 else (13, 15)
        k(f"ds_read_b128 {vr(b,4)}, v{va} offset:{i*1024}")
        k(f"ds_read_b128 {vr(b+4,4)}, v{va} offset:{20480+i*1024}")
        k(f"ds_read_b128 {vr(b+8,4)}, v{vh} offset:{i*1024}")
    aread(0)
    for i in range(10):
        if i < 9:
            aread(i + 1)
        k(f"s_waitcnt lgkmcnt({3 if i < 9 else 0})")
        if i == 0:
            k("s_waitcnt vmcnt(0)")
        b = AF + 12 * (i & 1)
        c = lambda a: ("0" if i == 0 else vr(a, 4))
        k(f"v_mfma_f32_16x16x32_bf16 {vr(ACC,4)}, {ar(4*i,4)}, {vr(b,4)}, {c(ACC)}")
        k(f"v_mfma_f32_16x16x32_bf16 {vr(ACC+4,4)}, {ar(4*i,4)}, {vr(b+4,4)}, {c(ACC+4)}")
        k(f"v_mfma_f32_16x16x32_bf16 {vr(ACC+8,4)}, {ar(80+4*i,4)}, {vr(b+8,4)}, {c(ACC+8)}")
        k(f"v_mfma_f32_16x16x32_bf16 {vr(ACC+12,4)}, {ar(40+4*i,4)}, {vr(b,4)}, {c(ACC+12)}")
        k(f"v_mfma_f32_16x16x32_bf16 {vr(ACC+16,4)}, {ar(40+4*i,4)}, {vr(b+4,4)}, {c(ACC+16)}")
    k.stamp(3)
    lh1 = k.newlab(); lj = k.newlab()
    PB = 64; GT = 84; VC = 12; RS = 88
    k(f"""
    s_mul_i32 s26, s21, 5120
    s_add_u32 s26, s26, {EX}
    v_add_u32 v9, s26, v8
    v_mov_b32 v{VC}, {fhex(C1)}
    v_mov_b32 v{VC+1}, {fhex(C0)}
    v_lshlrev_b32 v11, 3, v4
    v_add_u32 v11, {RSL}, v11
    ds_read_b64 {vr(RS,2)}, v11
    ds_read_b64 {vr(RS+2,2)}, v11 offset:128
    s_lshl_b32 s26, s33, 7
    v_add_u32 v11, s26, v11
    ds_read_b64 {vr(RS+4,2)}, v11
    v_lshrrev_b32 v10, 1, v3
    v_lshl_add_u32 v10, v10, 4, v4
    v_and_b32 v11, 1, v3
    v_lshl_add_u32 v10, v10, 1, v11
    v_lshlrev_b32 v10, 3, v10
    s_mul_i32 s26, s23, 40960
    s_mul_i32 s27, s24, 5120
    s_add_u32 s26, s26, s27
    s_add_u32 s26, s26, {L.H1}
    s_lshl_b32 s45, s34, 9
    s_add_u32 s45, s45, s26
    s_add_u32 s46, s45, 20480
    s_lshl_b32 s47, s36, 9
    s_add_u32 s47, s47, s26
    s_mul_i32 s27, s33, 20480
    s_add_u32 s47, s47, s27
    s_lshl_b32 s48, s35, 9
    s_add_u32 s48, s48, s26
    s_add_u32 s49, s48, 20480            ; item4
    """)
    for n in range(3):
        for i in (0, 2):
            k(f"v_pk_add_f32 {vr(CS+8*n+i,2)}, {vr(CS+8*n+i,2)}, {vr(CS+8*n+4+i,2)}")
    k(f"""
    s_cmp_eq_u32 s22, 1
    s_cbranch_scc1 {lh1}
    """)
    icS = [0, 0, 2, 1, 1]; iRS = [0, 1, 2, 0, 1]
    for own, other in (((0, 1, 2), (3, 4)), ((3, 4), (0, 1, 2))):
        for it in other:
            k(f"ds_write_b128 v9, {vr(ACC+4*it,4)} offset:{1024*it}")
        k("s_waitcnt lgkmcnt(0)")
        k("s_barrier")
        for n, it in enumerate(own):
            k(f"ds_read_b128 {vr(PB+4*n,4)}, v9 offset:{1024*it}")
        for n, it in enumerate(own):
            k(f"s_waitcnt lgkmcnt({len(own)-1-n})")
            z = ACC + 4*it
            rs = RS + 2*iRS[it]; cs = CS + 8*icS[it]
            for i in (0, 2):
                k(f"v_pk_add_f32 {vr(z+i,2)}, {vr(z+i,2)}, {vr(PB+4*n+i,2)}")
                k(f"v_pk_mul_f32 {vr(GT+i,2)}, {vr(cs+i,2)}, {vr(rs,2)} op_sel_hi:[1,0]")
                k(f"v_pk_fma_f32 {vr(z+i,2)}, {vr(z+i,2)}, {vr(rs,2)}, {vr(GT+i,2)} op_sel:[0,1,0] op_sel_hi:[1,1,1]")
            if os.environ.get("EXACT"): k.round2(z, z + 1, GT); k.round2(z + 2, z + 3, GT)
            gelu4pk(k, vr, z, GT, VC)
            k(f"v_cvt_pk_bf16_f32 v{z}, v{z}, v{z+1}")
            k(f"v_cvt_pk_bf16_f32 v{z+1}, v{z+2}, v{z+3}")
            k(f"buffer_store_dwordx2 {vr(z,2)}, v10, s[28:31], s{45+it} offen")
        if own[0] == 0:
            k(f"s_branch {lj}")
            k.lab(lh1)
    k.lab(lj)
    k("s_waitcnt vmcnt(0)")
    k.stamp(4)
    k.stamp_end(8)
    k.lab(end)
    k("s_endpgm")
    return k

def gen_gemm(Kern, vr, name, kind, RT, NT, KH, CK, NSLOT, NJ, xoff, xpitch, woff, JX, NPRE_=None):
    NCH = KH // CK
    P = 2 * CK * NT
    PW = (P + 7) // 8
    SS = P * 1024
    NPRE = min(NCH, NSLOT - 1) if NCH > NSLOT else NCH
    if NPRE_: NPRE = min(NPRE, NPRE_)
    NRB = 2048 // (64 * RT)
    grid = NRB * NJ
    TS = NCH * SS
    NKS = xpitch // 64
    STL = NSLOT * SS if NCH > NSLOT else NCH * SS
    lds = STL + (3072 if kind == 4 else 0)
    lds = max(lds, 4 * RT * NT * 1024)
    k = Kern(name, grid, 512, lds, vgpr=256, sgpr=80)
    end = name + "_end"
    k(f"""
    s_cmp_ge_u32 s2, {grid}
    s_cbranch_scc1 {end}
    s_load_dwordx2 s[10:11], s[0:1], 120
    s_load_dwordx2 s[4:5], s[0:1], 104
    v_lshrrev_b32 v2, 6, v0
    v_and_b32 v1, 63, v0
    v_readfirstlane_b32 s20, v2
    s_and_b32 s23, s2, 7
    s_lshr_b32 s25, s2, 3
    s_and_b32 s24, s23, {NJ//JX - 1}     ; xj
    s_lshr_b32 s23, s23, {(NJ//JX).bit_length()-1}   ; xr
    s_mul_i32 s24, s24, {JX}
    s_and_b32 s26, s25, {JX-1}
    s_add_u32 s24, s24, s26             ; j
    s_mul_i32 s23, s23, {32//JX}
    s_lshr_b32 s26, s25, {JX.bit_length()-1}
    s_add_u32 s23, s23, s26             ; rb
    s_and_b32 s21, s20, 3               ; wr
    s_lshr_b32 s22, s20, 2              ; h
    v_lshrrev_b32 v3, 4, v1             ; g
    v_and_b32 v4, 15, v1                ; m
    v_lshlrev_b32 v8, 4, v1             ; lane*16
    s_mul_i32 s25, s23, {64*RT}
    s_mul_i32 s26, s21, {16*RT}
    s_add_u32 s25, s25, s26
    v_add_u32 v5, s25, v4
    s_mul_i32 s26, s22, {KH*1024}
    v_lshl_add_u32 v9, v3, 8, s26
    s_mov_b32 s27, {NKS*1024}
    """)
    def fmrow(dst, row):
        k(f"""
        v_ashrrev_i32 v{dst}, 4, v{row}
        v_mul_lo_u32 v{dst}, v{dst}, s27
        v_and_b32 v15, 15, v{row}
        v_lshl_add_u32 v{dst}, v15, 4, v{dst}
        v_add_u32 v{dst}, v{dst}, v9
        """)
    if kind == 3:
        k(f"""
        s_add_u32 s26, s22, 1
        v_subrev_u32 v12, s26, v5
        v_add_u32 v13, s26, v5
        """)
        fmrow(10, 12); fmrow(11, 13)
        xaddr = lambda rt, i: ("v10" if i < 5 else "v11")
    else:
        fmrow(10, 5)
        k(f"v_add_u32 v11, {NKS*1024}, v10")
        xaddr = lambda rt, i: ("v10" if rt == 0 else "v11")
    for pk in range(PW):
        k(f"""
        s_add_u32 s{56+pk}, s20, {8*pk}
        s_min_u32 s{56+pk}, s{56+pk}, {P-1}
        s_lshl_b32 s{56+pk}, s{56+pk}, 10
        """)
    k(f"""
    s_cmp_lt_u32 s20, {P - 8*(PW-1)}
    s_cselect_b64 s[62:63], -1, 0
    s_mul_i32 s60, s24, {TS}
    s_add_u32 s60, s60, {woff}
    s_waitcnt lgkmcnt(0)
    """)
    k.stamp(0)
    k.srd(28, 10, 0x10000000)
    k.srd(16, 10, 2048 * xpitch, xoff)
    XR = 16
    WB = XR + RT * KH * 4
    ACC = WB + 2 * NT * 4
    EP = ACC + RT * NT * 4
    T = EP + (12 if kind == 4 else 24)
    assert T + 20 <= 256, T
    q = []
    def issue_ops(c):
        ops = []
        for ksl in range(CK):
            i = c * CK + ksl
            for rt in range(RT):
                if os.environ.get("NOX"): continue
                t = f"s_movk_i32 s61, {(i//4)*4096}\n"
                t += f"buffer_load_dwordx4 {vr(XR+(rt*KH+i)*4,4)}, {xaddr(rt,i)}, s[16:19], s61 offen offset:{(i%4)*1024}"
                ops.append(t)
        for pk in range(PW):
            if os.environ.get("NOW"): continue
            t = f"""s_add_u32 s26, s{56+pk}, {(c % NSLOT) * SS}
            s_mov_b32 m0, s26
            s_add_u32 s27, s{56+pk}, {c * SS}
            s_add_u32 s27, s27, s60
            """
            if pk == PW - 1 and P % 8:
                t += "s_mov_b64 exec, s[62:63]\nbuffer_load_dwordx4 v8, s[28:31], s27 offen lds\ns_mov_b64 exec, -1"
            else:
                t += "buffer_load_dwordx4 v8, s[28:31], s27 offen lds"
            ops.append(t)
        return ops
    def emit(t, tag):
        k(t); q.append(tag)
    for c in range(NPRE):
        for t in issue_ops(c):
            emit(t, c)
        if c == 0 and not os.environ.get("PROFC"): k.stamp(7)
    if not os.environ.get("PROFC"): k.stamp(4)
    if kind == 5:
        k.srd(32, 4, SZ_SD)
    k(f"""
    v_lshrrev_b32 v6, 1, v3
    v_lshl_add_u32 v6, v6, 4, v4
    v_and_b32 v7, 1, v3
    v_lshl_add_u32 v6, v6, 1, v7
    v_lshlrev_b32 v6, 3, v6
    s_mul_i32 s26, s22, {CK*NT*1024}
    v_add_u32 v12, s26, v8
    v_add_u32 v13, 0x10000, v12
    v_add_u32 v14, 0x20000, v12
    """)
    eops = []
    if kind in (3, 5):
        k(f"""
        s_mul_i32 s26, s24, 5
        s_mul_i32 s27, s22, 3
        s_add_u32 s50, s26, s27
        s_add_u32 s51, s50, 1
        s_sub_u32 s52, 2, s22
        s_add_u32 s52, s52, s50
        s_lshr_b32 s53, s25, 4
        s_mul_i32 s53, s53, 20480
        v_lshlrev_b32 v7, 4, v3
        """)
        for n in range(3):
            k(f"s_lshl_b32 s{64+n}, s{50+n}, 9")
            k(f"s_add_u32 s{64+n}, s{64+n}, s53")
        for n in range(3):
            if kind == 3:
                eops.append(f"s_add_u32 s27, s{64+n}, {L.HB}\nbuffer_load_dwordx2 {vr(EP+2*n,2)}, v6, s[28:31], s27 offen")
            else:
                eops.append(f"s_add_u32 s27, s{64+n}, {L.X1}\nbuffer_load_dwordx2 {vr(EP+2*n,2)}, v6, s[28:31], s27 offen")
                eops.append(f"s_add_u32 s27, s{64+n}, {L.XA}\nbuffer_load_dwordx2 {vr(EP+6+2*n,2)}, v6, s[28:31], s27 offen")
                eops.append(f"s_lshl_b32 s27, s{50+n}, 6\ns_add_u32 s27, s27, {L.MODF + 5*2560}\nbuffer_load_dwordx4 {vr(EP+12+4*n,4)}, v7, s[28:31], s27 offen")
    if kind == 4:
        k(f"""
        v_lshlrev_b32 v15, 5, v0
        v_lshlrev_b32 v7, 2, v0
        s_lshl_b32 s64, s23, 14
        s_add_u32 s64, s64, {L.ST}
        s_mul_i32 s65, s24, 448
        s_add_u32 s65, s65, {L.CS3P}
        s_add_u32 s66, s65, {1792*4}
        """)
        eops.append(f"buffer_load_dwordx4 {vr(EP,4)}, v15, s[28:31], s64 offen")
        eops.append(f"buffer_load_dwordx4 {vr(EP+4,4)}, v15, s[28:31], s64 offen offset:16")
        eops.append(f"buffer_load_dword v{EP+8}, v7, s[28:31], s65 offen")
        eops.append(f"buffer_load_dword v{EP+9}, v7, s[28:31], s66 offen")
    def wread(c, ksl, buf):
        if os.environ.get("NOMM"): return
        for nt in range(NT):
            o = (c % NSLOT)*SS + (ksl*NT+nt)*1024
            k(f"ds_read_b128 {vr(WB+(buf*NT+nt)*4,4)}, v{12 + (o >> 16)} offset:{o & 0xffff}")
    def k4stats():
        k(f"""
        s_waitcnt vmcnt(0)
        v_add_f32 v{EP}, v{EP}, v{EP+2}
        v_add_f32 v{EP+1}, v{EP+1}, v{EP+3}
        v_add_f32 v{EP+4}, v{EP+4}, v{EP+6}
        v_add_f32 v{EP+5}, v{EP+5}, v{EP+7}
        v_add_f32 v{EP}, v{EP}, v{EP+4}
        v_add_f32 v{EP+1}, v{EP+1}, v{EP+5}
        v_add_f32 v{EP+8}, v{EP+8}, v{EP+9}
        """)
        for ctl in ("quad_perm:[1,0,3,2]", "quad_perm:[2,3,0,1]"):
            k("s_nop 0")
            k(f"v_add_f32_dpp v{EP}, v{EP}, v{EP} {ctl} row_mask:0xf bank_mask:0xf")
            k(f"v_add_f32_dpp v{EP+1}, v{EP+1}, v{EP+1} {ctl} row_mask:0xf bank_mask:0xf")
        ln_finish(k, EP, EP + 1, EP + 2, 640)
        k(f"""
        v_lshrrev_b32 v15, 2, v0
        v_lshlrev_b32 v15, 3, v15
        v_add_u32 v15, {STL}, v15
        ds_write_b64 v15, {vr(EP,2)}
        v_add_u32 v7, {STL+1024}, v7
        ds_write_b32 v7, v{EP+8}
        """)
    step = 0
    ce = max(0, NCH - NPRE)
    for c in range(NCH):
        last = max(i for i, tg in enumerate(q) if tg == c)
        if not os.environ.get("NOBAR"):
            k(f"s_waitcnt vmcnt({len(q)-1-last}) lgkmcnt(0)")
            k("s_barrier")
        if c == 0:
            k.stamp(1)
        if os.environ.get("PROFC") and kind == 5 and c in (1, 2, 3, 4):
            k.stamp({1: 5, 2: 6, 3: 7, 4: 4}[c])
        wread(c, 0, step & 1)
        pend = [(t, c + NPRE) for t in issue_ops(c + NPRE)] if c + NPRE < NCH else []
        if c == min(ce, NCH - 1):
            pend += [(t, "e") for t in eops]
        nm = CK * NT * RT
        mi = 0
        np0 = len(pend)
        for ksl in range(CK):
            i = c * CK + ksl
            buf = step & 1
            if ksl + 1 < CK:
                wread(c, ksl + 1, buf ^ 1)
                k(f"s_waitcnt lgkmcnt({NT})")
            else:
                k("s_waitcnt lgkmcnt(0)")
            for nt in range(NT):
                for rt in range(RT):
                    a = ACC + (rt*NT + nt) * 4
                    cc = "0" if i == 0 else vr(a, 4)
                    if not (os.environ.get("NOMM") and i > 0):
                        k(f"v_mfma_f32_16x16x32_bf16 {vr(a,4)}, {vr(WB+(buf*NT+nt)*4,4)}, {vr(XR+(rt*KH+i)*4,4)}, {cc}")
                    mi += 1
                    while pend and (np0 - len(pend)) * nm < np0 * mi:
                        t, tg = pend.pop(0)
                        emit(t, tg)
            step += 1
            if kind == 4 and c == NCH - 1 and ksl == 0:
                k4stats()
        for t, tg in pend:
            emit(t, tg)
    if os.environ.get("NOBAR"): k("s_waitcnt vmcnt(0)")
    k.stamp(2)
    NI = RT * NT
    if RT == 1:
        sets = ((0, 1, 2), (3, 4))
    else:
        sets = (tuple(range(NT)), tuple(range(NT, 2*NT)))
    lh1 = k.newlab(); lj = k.newlab()
    PB = XR
    GT = T; VC = 12
    k(f"""
    s_mul_i32 s26, s21, {NI*1024}
    v_add_u32 v9, s26, v8
    s_nop 4
    s_waitcnt lgkmcnt(0)
    s_barrier
    """)
    if kind == 4:
        k(f"""
        v_mov_b32 v{VC}, {fhex(C1)}
        v_mov_b32 v{VC+1}, {fhex(C0)}
        s_lshr_b32 s45, s25, 4
        s_add_u32 s45, s45, s22
        s_mul_i32 s45, s45, {54*1024}
        s_mul_i32 s26, s24, {7*512}
        s_add_u32 s45, s45, s26
        s_add_u32 s45, s45, {L.H3}
        s_lshl_b32 s26, s21, 5
        s_lshl_b32 s27, s22, 4
        s_add_u32 s26, s26, s27
        v_add_u32 v14, s26, v4
        v_lshlrev_b32 v14, 3, v14
        v_add_u32 v14, {STL}, v14
        ds_read_b64 {vr(EP,2)}, v14
        v_lshlrev_b32 v15, 4, v3
        v_add_u32 v15, {STL+1024}, v15
        """)
        for n in range(NT):
            k(f"ds_read_b128 {vr(PB+32+4*n,4)}, v15 offset:{64*n}")
    if kind == 5:
        k("""
        v_mul_u32_u24 v10, 1280, v5
        v_lshl_add_u32 v10, v3, 3, v10
        """)
    if kind == 3:
        k(f"v_mov_b32 v{VC}, 0x3f803f80")
    k(f"""
    s_cmp_eq_u32 s22, 1
    s_cbranch_scc1 {lh1}
    """)
    def pk2(op, d, a, b, extra=""):
        for i in (0, 2):
            k(f"{op} {vr(d+i,2)}, {vr(a+i,2)}, {vr(b+i,2)} {extra}")
    for hh in range(2):
        own, other = sets[hh], sets[1 - hh]
        for it in other:
            k(f"ds_write_b128 v9, {vr(ACC+4*it,4)} offset:{1024*it}")
        k("s_waitcnt lgkmcnt(0)")
        k("s_barrier")
        for n, it in enumerate(own):
            k(f"ds_read_b128 {vr(PB+4*n,4)}, v9 offset:{1024*it}")
        if kind != 4:
            k("s_waitcnt vmcnt(0)")
        if kind == 3:
            k(f"v_mov_b32 v{T+8}, 0")
            k(f"v_mov_b32 v{T+9}, 0")
        for n, it in enumerate(own):
            z = ACC + 4*it
            k(f"s_waitcnt lgkmcnt({len(own)-1-n})")
            pk2("v_pk_add_f32", z, z, PB + 4*n)
            if kind == 3:
                if os.environ.get("EXACT"): k.round2(z, z + 1, GT); k.round2(z + 2, z + 3, GT)
                k.unpack(GT, GT + 1, EP + 2*n); k.unpack(GT + 2, GT + 3, EP + 2*n + 1)
                pk2("v_pk_add_f32", z, z, GT)
                k(f"v_cvt_pk_bf16_f32 v{z}, v{z}, v{z+1}")
                k(f"v_cvt_pk_bf16_f32 v{z+1}, v{z+2}, v{z+3}")
                k(f"s_add_u32 s27, s{64+n}, {L.X1}")
                k(f"buffer_store_dwordx2 {vr(z,2)}, v6, s[28:31], s27 offen")
                for r in range(2):
                    k(f"v_dot2_f32_bf16 v{T+8}, v{z+r}, v{VC}, v{T+8}")
                    k(f"v_dot2_f32_bf16 v{T+9}, v{z+r}, v{z+r}, v{T+9}")
            elif kind == 4:
                sk = None
                if n >= 3:
                    sk = k.newlab("sk")
                    k(f"s_cmp_eq_u32 s24, 15")
                    k(f"s_cbranch_scc1 {sk}")
                for i in (0, 2):
                    k(f"v_pk_mul_f32 {vr(GT+i,2)}, {vr(PB+32+4*n+i,2)}, {vr(EP,2)} op_sel_hi:[1,0]")
                    k(f"v_pk_fma_f32 {vr(z+i,2)}, {vr(z+i,2)}, {vr(EP,2)}, {vr(GT+i,2)} op_sel:[0,1,0] op_sel_hi:[1,1,1]")
                if os.environ.get("EXACT"): k.round2(z, z + 1, GT); k.round2(z + 2, z + 3, GT)
                gelu4pk(k, vr, z, GT, VC)
                k(f"v_cvt_pk_bf16_f32 v{z}, v{z}, v{z+1}")
                k(f"v_cvt_pk_bf16_f32 v{z+1}, v{z+2}, v{z+3}")
                k(f"buffer_store_dwordx2 {vr(z,2)}, v6, s[28:31], s45 offen offset:{512*n}")
                if sk:
                    k.lab(sk)
            else:
                k.unpack(GT, GT + 1, EP + 2*n); k.unpack(GT + 2, GT + 3, EP + 2*n + 1)
                pk2("v_pk_add_f32", z, z, GT)
                k.unpack(GT, GT + 1, EP + 6 + 2*n); k.unpack(GT + 2, GT + 3, EP + 6 + 2*n + 1)
                for i in (0, 2):
                    k(f"v_pk_fma_f32 {vr(z+i,2)}, {vr(z+i,2)}, {vr(EP+12+4*n+i,2)}, {vr(GT+i,2)}")
                k(f"v_cvt_pk_bf16_f32 v{z}, v{z}, v{z+1}")
                k(f"v_cvt_pk_bf16_f32 v{z+1}, v{z+2}, v{z+3}")
                k(f"s_lshl_b32 s27, s{50+n}, 5")
                k(f"buffer_store_dwordx2 {vr(z,2)}, v10, s[32:35], s27 offen")
        if kind == 3:
            k("s_nop 2")
            reduce_g(k, T + 8, T + 9, T)
            k(f"""
            v_lshlrev_b32 v14, 7, v5
            s_lshl_b32 s26, s24, 4
            s_add_u32 s26, s26, {L.ST + 8*hh}
            v_cmp_gt_u32 vcc, 16, v1
            s_and_saveexec_b64 s[46:47], vcc
            buffer_store_dwordx2 {vr(T+8,2)}, v14, s[28:31], s26 offen
            s_mov_b64 exec, s[46:47]
            """)
        if hh == 0:
            k(f"s_branch {lj}")
            k.lab(lh1)
    k.lab(lj)
    k.stamp(3)
    k.stamp_end(8)
    k.lab(end)
    k("s_endpgm")
    return k

def kernels(Kern, vr):
    ks = [gen_k2(Kern, vr)]
    E = lambda n, d: int(os.environ.get(n, d))
    ks.append(gen_gemm(Kern, vr, "k3_kernel", 3, 1, 5, 10, L.CK3, 10 // L.CK3, 8, L.H1, 1280, L.W2P, E("JX3", 8), E("NP3", 2)))
    ks.append(gen_gemm(Kern, vr, "k4_kernel", 4, 2, 7, 10, L.CK4, 10 // L.CK4, 16, L.X1, 1280, L.W3P, E("JX4", 8), E("NP4", 2)))
    ks.append(gen_gemm(Kern, vr, "k5_kernel", 5, 1, 5, 27, L.CK5, 15 // L.CK5, 8, L.H3, 3456, L.W4P, E("JX5", 4), E("NP5", 2)))
    return ks
```

```python
S, D, F = 2048, 640, 1728
def _al(x, a=4096): return (x + a - 1) // a * a
_off = 0
def _alloc(n):
    global _off
    o = _off
    _off = _al(_off + n)
    return o
KVR_CH = 4352
KVR = _alloc(640 * KVR_CH + 8192)
KV4 = _alloc(160 * 2048 * 8)
YT  = _alloc(160 * 2048 * 8)
MODP = _alloc(4 * 3840 * 4)
MODF = _alloc(6 * 640 * 4)
CS3P = _alloc(2 * 1792 * 4)
CS1P = _alloc(2 * 1792 * 4)
XA = _alloc(S * D * 2)
HB = _alloc(S * D * 2)
H1 = _alloc(S * D * 2)
X1 = _alloc(S * D * 2)
H3 = _alloc(S * F * 2)
ST = _alloc(S * 16 * 2 * 4)
W1P = _alloc(40 * 20 * 1024)
W2P = _alloc(40 * 20 * 1024)
W3P = _alloc(16 * 7 * 20 * 1024)
W4P = _alloc(40 * 54 * 1024)
WS_END = _off

import os
CK3 = int(os.environ.get("CK3", 2)); CK4 = int(os.environ.get("CK4", 2)); CK5 = int(os.environ.get("CK5", 3))
```

```python
import sys, os
sys.path.insert(0, os.path.dirname(os.path.abspath(__file__)))
import layout as L

NAME = "adaLN_cond__ssm_conv_h3__mixer_s_mlp__prompt"
SZ_SD = 2048 * 640 * 2

class Kern:
    order = {}
    def __init__(self, name, grid, block, lds, vgpr=256, sgpr=102, agpr=0):
        self.name, self.grid, self.block, self.lds = name, grid, block, lds
        self.vgpr, self.sgpr, self.agpr = vgpr, (102 if (os.environ.get("PROF") or os.environ.get("PROF2")) else sgpr), agpr
        self.L = []
        self.nlab = 0
    def __call__(self, s):
        for ln in s.strip("\n").split("\n"):
            ln = ln.strip()
            if ln:
                self.L.append("    " + ln)
    def lab(self, s):
        self.L.append(s + ":")
    def newlab(self, p="L"):
        self.nlab += 1
        return f"{self.name}_{p}{self.nlab}"
    def srd(self, d, b, size, off=0):
        if off:
            self(f"s_add_u32 s{d}, s{b}, {off}")
            self(f"s_addc_u32 s{d+1}, s{b+1}, 0")
        else:
            self(f"s_mov_b32 s{d}, s{b}")
            self(f"s_mov_b32 s{d+1}, s{b+1}")
        self(f"s_mov_b32 s{d+2}, {size}")
        self(f"s_mov_b32 s{d+3}, 0x00020000")
    def round2(self, a, b, t):
        self(f"v_cvt_pk_bf16_f32 v{t}, v{a}, v{b}")
        self(f"v_lshlrev_b32 v{a}, 16, v{t}")
        self(f"v_and_b32 v{b}, 0xffff0000, v{t}")
    def unpack(self, lo, hi, src):
        self(f"v_lshlrev_b32 v{lo}, 16, v{src}")
        self(f"v_and_b32 v{hi}, 0xffff0000, v{src}")
    def stamp(self, i):
        if os.environ.get("PROF"):
            self(f"s_memtime s[{80+2*i}:{81+2*i}]")
    def stamp_end(self, n):
        if os.environ.get("PROF"):
            l = self.newlab("prof")
            self(f"""
            s_waitcnt lgkmcnt(0)
            s_cmp_lg_u32 s2, {int(os.environ.get("PROFWG", "0"))}
            s_cbranch_scc1 {l}
            s_load_dwordx2 s[76:77], s[0:1], 112
            s_waitcnt lgkmcnt(0)
            s_mov_b32 s78, 256
            s_mov_b32 s79, 0x00020000
            v_mov_b32 v1, 0
            """)
            for i in range(n):
                self(f"s_sub_u32 s75, s{80+2*i}, s80")
                self(f"v_mov_b32 v2, s75")
                self(f"buffer_store_dword v2, v1, s[76:79], 0 offen offset:{4*i}")
            self.lab(l)
    def text(self):
        sc = self.name in os.environ.get("SC1", "k0_kernel,k1_kernel,k01_kernel,k2_kernel,k3_kernel,k4_kernel,k5_kernel").split(",")
        Ls = [(l + " sc1" if (sc and l.strip().startswith("buffer_store")) else l) for l in self.L]
        if os.environ.get("PROF2"):
            idx = Kern.order.setdefault(self.name, len(Kern.order))
            pre = ["    s_memrealtime s[90:91]", "    v_lshrrev_b32 v1, 6, v0", "    s_mov_b32 s93, s2", "    v_readfirstlane_b32 s92, v1"]
            Ls = [(f"    s_branch {self.name}_pend" if l.strip() == "s_endpgm" else l) for l in Ls]
            post = f"""{self.name}_pend:
    s_mov_b64 exec, -1
    s_waitcnt vmcnt(0) lgkmcnt(0)
    s_memrealtime s[94:95]
    s_load_dwordx2 s[96:97], s[0:1], 120
    s_lshl_b32 s93, s93, 3
    s_add_u32 s93, s93, s92
    s_lshl_b32 s93, s93, 4
    s_add_u32 s93, s93, {0x4000000 + idx * 0x20000}
    s_getreg_b32 s92, hwreg(HW_REG_XCC_ID)
    s_waitcnt lgkmcnt(0)
    s_mov_b32 s98, 0x10000000
    s_mov_b32 s99, 0x00020000
    v_mov_b32 v0, s90
    v_mov_b32 v1, s94
    v_mov_b32 v2, s92
    v_mov_b32 v3, 0x1234
    v_mov_b32 v4, s93
    s_mov_b64 exec, 1
    buffer_store_dwordx4 v[0:3], v4, s[96:99], 0 offen
    s_endpgm""".split("\n")
            Ls = pre + Ls + post
        return (f".globl {self.name}\n.p2align 8\n.type {self.name},@function\n{self.name}:\n" + "\n".join(Ls) + "\n")
    def kd(self):
        acc = (self.vgpr + 3) // 4 * 4
        nfv = self.vgpr if not self.agpr else acc + self.agpr
        return f""".p2align 6
.amdhsa_kernel {self.name}
  .amdhsa_next_free_vgpr {nfv}
  .amdhsa_next_free_sgpr {self.sgpr}
  .amdhsa_accum_offset {acc}
  .amdhsa_group_segment_fixed_size 0
  .amdhsa_kernarg_size 128
  .amdhsa_user_sgpr_count 2
  .amdhsa_user_sgpr_kernarg_segment_ptr 1
  .amdhsa_system_sgpr_workgroup_id_x 1
  .amdhsa_float_denorm_mode_32 3
.end_amdhsa_kernel
"""

def vr(a, n):
    return f"v[{a}:{a+n-1}]"

MERGE = os.environ.get("MERGE", "0") == "1"
CNT_OFF = 128

def signal(k, cnt_sgpr_or_imm):
    l = k.newlab("sig")
    k(f"""
    s_mov_b64 exec, -1
    s_waitcnt vmcnt(0)
    s_barrier
    v_cmp_eq_u32 vcc, 0, v0
    s_and_saveexec_b64 s[42:43], vcc
    s_cbranch_execz {l}
    v_mov_b32 v1, 1
    v_mov_b32 v2, {cnt_sgpr_or_imm}
    buffer_atomic_add v1, v2, s[48:51], 0 offen
    """)
    k.lab(l)
    k("s_endpgm")

def poll(k, voff, target, vtmp):
    l = k.newlab("poll"); d = k.newlab("polld")
    k("s_mov_b32 s52, 0")
    k("s_cmp_lg_u32 s20, 0")
    k(f"s_cbranch_scc1 {d}")
    k.lab(l)
    k(f"""
    buffer_load_dword v{vtmp}, v{voff}, s[48:51], 0 offen sc0 sc1
    s_waitcnt vmcnt(0)
    v_readfirstlane_b32 s53, v{vtmp}
    s_add_u32 s52, s52, 1
    s_cmp_ge_u32 s53, {target}
    s_cbranch_scc1 {d}
    s_cmp_ge_u32 s52, 0x100000
    s_cbranch_scc1 {d}
    s_sleep {int(os.environ.get("SLP", 8))}
    s_branch {l}
    """)
    k.lab(d)
    k("s_barrier")

def gen_k0(k=None):
    if k is None:
        k = Kern("k0_kernel", 360, 256, 16384, vgpr=112, sgpr=64)
    end = "k0_end"; modl = "k0_mod"
    k(f"""
    s_cmp_ge_u32 s2, 360
    s_cbranch_scc1 {end}
    s_cmp_ge_u32 s2, 320
    s_cbranch_scc1 k0_pf
    s_load_dwordx4 s[4:7], s[0:1], 8
    s_load_dwordx2 s[8:9], s[0:1], 24
    s_load_dwordx2 s[10:11], s[0:1], 120
    s_waitcnt lgkmcnt(0)
    """)
    k.srd(28, 10, 0x10000000)
    k.srd(16, 4, SZ_SD); k.srd(20, 6, SZ_SD); k.srd(24, 8, 640 * 8)
    k(f"""
    s_mul_i32 s32, s2, 52429
    s_lshr_b32 s32, s32, 19
    s_mul_i32 s33, s32, 10
    s_sub_u32 s33, s2, s33           ; cb
    v_and_b32 v1, 15, v0             ; cgl
    v_lshrrev_b32 v2, 4, v0          ; rg
    s_lshl_b32 s34, s32, 6
    v_lshl_add_u32 v3, v2, 2, s34    ; s0
    v_mul_u32_u24 v4, 1280, v3
    s_lshl_b32 s35, s33, 7
    v_lshl_add_u32 v5, v1, 3, s35
    v_add_u32 v4, v4, v5             ; voff
    v_subrev_u32 v6, 3840, v4
    v_subrev_u32 v7, 2560, v4
    v_subrev_u32 v8, 1280, v4
    """)
    KR, VR_, SKR, SKF, KF, KVF, T = 10, 24, 32, 40, 56, 84, 100
    k(f"buffer_load_dwordx2 {vr(KR,2)}, v6, s[16:19], 0 offen")
    k(f"buffer_load_dwordx2 {vr(KR+2,2)}, v7, s[16:19], 0 offen")
    k(f"buffer_load_dwordx2 {vr(KR+4,2)}, v8, s[16:19], 0 offen")
    for i in range(4):
        k(f"buffer_load_dwordx2 {vr(KR+6+2*i,2)}, v4, s[16:19], 0 offen offset:{i*1280}")
    k(f"v_lshlrev_b32 v{T}, 2, v5")
    k(f"buffer_load_dwordx4 {vr(SKR,4)}, v{T}, s[24:27], 0 offen")
    k(f"buffer_load_dwordx4 {vr(SKR+4,4)}, v{T}, s[24:27], 0 offen offset:16")
    for i in range(4):
        k(f"buffer_load_dwordx2 {vr(VR_+2*i,2)}, v4, s[20:23], 0 offen offset:{i*1280}")
    k(f"""
    v_lshlrev_b32 v{T}, 9, v1
    v_sub_u32 v{T+1}, 15, v2
    v_lshl_add_u32 v{T}, v{T+1}, 3, v{T}
    v_lshrrev_b32 v{T+1}, 2, v2
    v_lshlrev_b32 v{T+1}, 11, v{T+1}
    v_lshl_add_u32 v{T+1}, v1, 7, v{T+1}
    v_add_u32 v{T+1}, 8192, v{T+1}
    v_bfe_u32 v{T+2}, v1, 1, 3
    v_and_b32 v{T+3}, 3, v2
    v_lshlrev_b32 v{T+3}, 1, v{T+3}
    v_xor_b32 v{T+2}, v{T+2}, v{T+3}
    v_xor_b32 v{T+3}, 1, v{T+2}
    v_lshl_add_u32 v{T+2}, v{T+2}, 4, v{T+1}
    v_lshl_add_u32 v{T+3}, v{T+3}, 4, v{T+1}
    s_waitcnt vmcnt(4)
    """)
    for c in range(4):
        k.unpack(SKF + c, SKF + 4 + c, SKR + 2*c)
        k.unpack(SKF + 8 + c, SKF + 12 + c, SKR + 2*c + 1)
    for r in range(7):
        k.unpack(KF + 4*r, KF + 4*r + 1, KR + 2*r)
        k.unpack(KF + 4*r + 2, KF + 4*r + 3, KR + 2*r + 1)
    for s_ in range(4):
        for p in range(2):
            A = KVF + 4*s_ + 2*p
            k(f"v_pk_mul_f32 {vr(A,2)}, {vr(KF+4*s_+2*p,2)}, {vr(SKF+12+2*p,2)}")
            for j in (2, 1, 0):
                k(f"v_pk_fma_f32 {vr(A,2)}, {vr(KF+4*(s_+3-j)+2*p,2)}, {vr(SKF+4*j+2*p,2)}, {vr(A,2)}")
            k.round2(A, A + 1, T + 4)
    k("s_waitcnt vmcnt(0)")
    for s_ in range(4):
        for p in range(2):
            k.unpack(T + 4, T + 5, VR_ + 2*s_ + p)
            k(f"v_pk_mul_f32 {vr(KVF+4*s_+2*p,2)}, {vr(KVF+4*s_+2*p,2)}, {vr(T+4,2)}")
    O = KF; O2 = KF + 8
    for s_ in range(4):
        k(f"v_cvt_pk_bf16_f32 v{O+2*s_}, v{KVF+4*s_}, v{KVF+4*s_+1}")
        k(f"v_cvt_pk_bf16_f32 v{O+2*s_+1}, v{KVF+4*s_+2}, v{KVF+4*s_+3}")
    for c in range(4):
        for d in range(2):
            k(f"v_cvt_pk_bf16_f32 v{O2+2*c+d}, v{KVF+4*(3-2*d)+c}, v{KVF+4*(2-2*d)+c}")
    for c in range(4):
        k(f"ds_write_b64 v{T}, {vr(O2+2*c,2)} offset:{128*c}")
    k(f"ds_write_b128 v{T+2}, {vr(O,4)}")
    k(f"ds_write_b128 v{T+3}, {vr(O+4,4)}")
    k(f"""
    v_lshlrev_b32 v{T}, 4, v0
    v_lshrrev_b32 v{T+1}, 3, v0
    v_mul_u32_u24 v{T+1}, {L.KVR_CH}, v{T+1}
    v_and_b32 v{T+2}, 7, v0
    v_lshl_add_u32 v{T+3}, v{T+2}, 4, v{T+1}
    v_lshrrev_b32 v{T+4}, 7, v0
    v_mul_u32_u24 v{T+4}, 20480, v{T+4}
    v_and_b32 v{T+5}, 127, v0
    v_lshl_add_u32 v{T+4}, v{T+5}, 4, v{T+4}
    s_mul_i32 s36, s33, {64*L.KVR_CH}
    s_lshr_b32 s37, s32, 1
    s_mul_i32 s37, s37, 272
    s_add_u32 s36, s36, s37
    s_add_u32 s36, s36, {L.KVR}
    s_and_b32 s37, s32, 1
    s_lshl_b32 s38, s37, 7
    s_sub_u32 s38, 128, s38
    s_add_u32 s38, s38, s36
    s_mul_i32 s39, s32, {4*20480}
    s_lshl_b32 s40, s33, 11
    s_add_u32 s39, s39, s40
    s_add_u32 s39, s39, {L.KV4}
    s_waitcnt lgkmcnt(0)
    s_barrier
    """)
    for i in range(4):
        k(f"ds_read_b128 {vr(KR+4*i,4)}, v{T} offset:{4096*i}")
    for i in range(2):
        k(f"s_waitcnt lgkmcnt({3-i})")
        k(f"buffer_store_dwordx4 {vr(KR+4*i,4)}, v{T+3}, s[28:31], s38 offen")
        k(f"s_add_u32 s38, s38, {32*L.KVR_CH}")
    for i in range(2):
        k(f"s_waitcnt lgkmcnt({1-i})")
        k(f"buffer_store_dwordx4 {vr(KR+8+4*i,4)}, v{T+4}, s[28:31], s39 offen")
        k(f"s_add_u32 s39, s39, 40960")
    hl = k.newlab(); zl = k.newlab()
    k(f"""
    v_cmp_eq_u32 vcc, 0, v{T+2}
    s_and_saveexec_b64 s[42:43], vcc
    s_cmp_eq_u32 s37, 0
    s_cbranch_scc1 {hl}
    s_cmp_eq_u32 s32, 31
    s_cbranch_scc1 {zl}
    """)
    for i in range(2):
        k(f"buffer_store_dwordx4 {vr(KR+4*i,4)}, v{T+1}, s[28:31], s36 offen offset:{272+256}")
        k(f"s_add_u32 s36, s36, {32*L.KVR_CH}")
    k(f"s_branch {zl}")
    k.lab(hl)
    k(f"""
    s_cmp_lg_u32 s32, 0
    s_cbranch_scc1 {zl}
    v_mov_b32 v{T+8}, 0
    v_mov_b32 v{T+9}, 0
    v_mov_b32 v{T+10}, 0
    v_mov_b32 v{T+11}, 0
    """)
    for i in range(2):
        k(f"buffer_store_dwordx4 {vr(T+8,4)}, v{T+1}, s[28:31], s36 offen offset:256")
        k(f"s_add_u32 s36, s36, {32*L.KVR_CH}")
    k.lab(zl)
    if MERGE:
        k(f"s_lshl_b32 s44, s33, 2")
        k(f"s_add_u32 s44, s44, {CNT_OFF}")
        signal(k, "s44")
    else:
        k("s_endpgm")
    k.lab(end)
    k("s_endpgm")
    k.lab("k0_pf")
    k(f"""
    s_load_dwordx2 s[4:5], s[0:1], 32
    v_lshrrev_b32 v2, 6, v0
    v_and_b32 v1, 63, v0
    v_readfirstlane_b32 s20, v2
    v_lshlrev_b32 v1, 4, v1
    s_sub_u32 s21, s2, 320
    s_lshr_b32 s21, s21, 3
    s_lshl_b32 s21, s21, 2
    s_add_u32 s21, s21, s20          ; 0..19
    s_mul_i32 s23, s21, 3072
    s_lshl_b32 s21, s21, 3
    s_and_b32 s22, s2, 7
    s_add_u32 s21, s21, s22          ; cg
    s_lshl_b32 s21, s21, 14
    s_waitcnt lgkmcnt(0)
    """)
    k.srd(16, 4, 640 * 4096)
    if not os.environ.get("NOCPF"):
        k("s_getpc_b64 s[24:25]")
        k.lab("k0_pcref")
        KSTART = k.name
        k(f"""
        s_sub_u32 s24, s24, k0_pcref-{KSTART}
        s_subb_u32 s25, s25, 0
        """)
        for i in range(3):
            k(f"""
            s_add_u32 s26, s23, {1024*i}
            s_min_u32 s26, s26, (k5_kernel_end-{KSTART}-1020)&0xfffffff0
            v_add_u32 v2, s26, v1
            v_mov_b32 v5, s25
            v_add_co_u32 v4, vcc, s24, v2
            v_addc_co_u32 v5, vcc, 0, v5, vcc
            global_load_dwordx4 {vr(72+4*i,4)}, v[4:5], off
            """)
    for i in range(0 if MERGE else 16):
        k(f"buffer_load_dwordx4 {vr(8+4*i,4)}, v1, s[16:19], s21 offen offset:{(i%4)*1024}")
        if i % 4 == 3:
            k("s_add_u32 s21, s21, 4096")
    k("s_waitcnt vmcnt(0)")
    k("s_endpgm")
    return k

WREG = 9472
def gen_k1(k=None):
    NPACK = 154
    NMOD = 60
    if k is None:
        k = Kern("k1_kernel", 160 + NMOD + NPACK + 64, 256, 46080, vgpr=256, sgpr=64)
    end = "k1_end"; packl = "k1_pack"; modl = "k1_modf"
    k(f"""
    s_cmp_ge_u32 s2, {160+NMOD+NPACK+64}
    s_cbranch_scc1 {end}
    s_cmp_ge_u32 s2, {160+NMOD+NPACK}
    s_cbranch_scc1 k1_pf
    s_load_dwordx4 s[4:7], s[0:1], 32
    s_load_dwordx2 s[10:11], s[0:1], 120   ; ws
    s_load_dwordx8 s[12:19], s[0:1], 56    ; w1 w2 w3 w4
    s_load_dwordx2 s[46:47], s[0:1], 112
    v_lshrrev_b32 v2, 6, v0
    v_and_b32 v1, 63, v0                   ; lane
    v_readfirstlane_b32 s20, v2
    s_waitcnt lgkmcnt(0)
    """)
    k.srd(28, 10, 0x10000000)
    k.srd(48, 46, 256)
    k(f"""
    s_cmp_ge_u32 s2, {160+NMOD}
    s_cbranch_scc1 {packl}
    s_cmp_ge_u32 s2, 160
    s_cbranch_scc1 {modl}
    """)
    if os.environ.get("PRIO", "1") == "1": k("s_setprio 3")
    k.stamp(0)
    k.srd(24, 4, 640 * 4096)
    k(f"""
    s_lshl_b32 s21, s2, 3
    s_add_u32 s22, s6, s21
    s_addc_u32 s23, s7, 0
    s_load_dwordx2 s[32:33], s[22:23], 0
    s_lshl_b32 s21, s2, 2
    s_add_u32 s21, s21, s20                 ; ch
    s_mul_i32 s34, s20, {WREG}
    v_lshlrev_b32 v3, 4, v1                 ; lane*16
    s_lshl_b32 s35, s21, 12                 ; ch*4096
    s_add_u32 s36, s34, 256
    s_mov_b32 m0, s36
    s_mul_i32 s37, s21, {L.KVR_CH}
    s_add_u32 s37, s37, {L.KVR}
    """)
    for i in range(4):
        k(f"buffer_load_dwordx4 v3, s[24:27], s35 offen offset:{1024*i} lds")
    KV = 240
    k(f"""
    v_lshrrev_b32 v4, 3, v0
    v_mul_u32_u24 v4, 20480, v4
    s_lshr_b32 s38, s2, 1
    s_and_b32 s38, s38, 7
    v_and_b32 v5, 7, v0
    v_xor_b32 v5, s38, v5
    v_lshl_add_u32 v4, v5, 4, v4            ; (t>>3)*20480 + ((t&7)^sw)*16
    s_lshl_b32 s38, s2, 7                   ; cg*128
    s_add_u32 s39, s38, {L.KV4}
    """)
    def uloads():
        if MERGE:
            k(f"""
            s_lshr_b32 s36, s2, 4
            s_lshl_b32 s36, s36, 2
            s_add_u32 s36, s36, {CNT_OFF}
            v_mov_b32 v16, s36
            """)
            poll(k, 16, 32, 17)
            for i in range(4):
                k(f"buffer_load_dwordx4 {vr(32+4*i,4)}, v3, s[28:31], s37 offen offset:{1024*i} sc1")
            k("s_add_u32 s37, s37, 4096")
            k(f"buffer_load_dwordx4 {vr(48,4)}, v3, s[28:31], s37 offen sc1")
        else:
            k(f"""
            s_add_u32 s36, s34, 4352
            s_mov_b32 m0, s36
            s_nop 0
            """)
            for i in range(4):
                k(f"buffer_load_dwordx4 v3, s[28:31], s37 offen offset:{1024*i} lds")
            k(f"""
            s_add_u32 s36, s34, {4352+4096}
            s_mov_b32 m0, s36
            s_add_u32 s37, s37, 4096
            buffer_load_dwordx4 v3, s[28:31], s37 offen lds
            """)
        for e in range(4):
            k(f"buffer_load_dwordx4 {vr(KV+4*e,4)}, v4, s[28:31], s39 offen" + (" sc1" if MERGE else ""))
            k(f"s_add_u32 s39, s39, {32*20480}")
    if not MERGE:
        uloads()
    k(f"""
    v_lshl_add_u32 v5, v1, 2, s34
    v_mov_b32 v6, 0
    ds_write_b32 v5, v6
    v_and_b32 v7, 15, v1                    ; n16
    v_bfe_u32 v8, v1, 4, 1                  ; ph
    v_lshrrev_b32 v9, 5, v1                 ; g
    v_mul_u32_u24 v10, 272, v7
    v_lshl_add_u32 v10, v9, 4, v10
    v_add_u32 v10, s34, v10
    v_add_u32 v10, {4352+4}, v10
    v_lshlrev_b32 v11, 2, v8
    v_sub_u32 v10, v10, v11
    v_and_b32 v12, 7, v1
    v_mul_u32_u24 v13, 272, v12
    v_lshl_add_u32 v13, v9, 4, v13
    v_add_u32 v13, s34, v13
    v_add_u32 v13, {4352+4}, v13
    v_sub_u32 v13, v13, v11                 ; vBP
    v_bfe_u32 v11, v1, 3, 1                 ; a'
    v_lshlrev_b32 v11, 4, v11
    v_sub_u32 v11, 16, v11
    v_and_b32 v14, 31, v1
    v_lshlrev_b32 v14, 3, v14
    v_lshl_add_u32 v14, v9, 4, v14
    v_add_u32 v14, s34, v14
    v_add_u32 v14, 8, v14                   ; vA
    v_cmp_ne_u32 vcc, 0, v12
    v_mov_b32 v16, 0
    s_nop 1
    v_cndmask_b32 v15, v16, -1, vcc
    """)
    if MERGE:
        uloads()
        k(f"""
        s_add_u32 s36, s34, 4352
        v_add_u32 v16, s36, v3
        """)
        for i in range(5):
            k(f"s_waitcnt vmcnt({8-i})")
            k(f"ds_write_b128 v16, {vr(32+4*i,4)} offset:{1024*i}")
    k("s_waitcnt vmcnt(4) lgkmcnt(0)")
    B0, B1, BP, AX, AY, AP_, AM, APk = 32, 64, 96, 128, 144, 160, 176, 208
    k.stamp(1)
    def aread(reg, off):
        return f"ds_read_b64 {vr(reg,2)}, v14 offset:{off}\n    ds_read_b64 {vr(reg+2,2)}, v14 offset:{off+8}"
    for ks in range(8):
        k(aread(AM+4*ks, 256*7+32*ks))
    TB = 16
    for ks in range(8):
        k(f"ds_read2_b32 {vr(B1+4*ks,2)}, v10 offset0:{8*ks} offset1:{8*ks+1}")
        k(f"ds_read2_b32 {vr(B1+4*ks+2,2)}, v10 offset0:{8*ks+2} offset1:{8*ks+3}")
    prd = []
    for ks in range(8):
        prd.append(f"ds_read_b32 v{TB+ks}, v10 offset:{32*ks+16}")
    for ks in range(8):
        prd.append(f"ds_read2_b32 {vr(BP+4*ks,2)}, v13 offset0:{8*ks} offset1:{8*ks+1}")
        prd.append(f"ds_read2_b32 {vr(BP+4*ks+2,2)}, v13 offset0:{8*ks+2} offset1:{8*ks+3}")
        prd.append(f"ds_read_b32 v{TB+8+ks}, v13 offset:{32*ks+16}")
    al0 = []; alp = []
    for ks in range(8):
        for d in range(4):
            hi = B1 + 4*ks + d + 1 if d < 3 else TB + ks
            al0.append(f"v_alignbit_b32 v{B0+4*ks+d}, v{hi}, v{B1+4*ks+d}, 16")
            hi = BP + 4*ks + d + 1 if d < 3 else TB + 8 + ks
            alp.append(f"v_alignbit_b32 v{BP+4*ks+d}, v{hi}, v{BP+4*ks+d}, v11")
    k.stamp(2)
    DPP = "row_mask:0xf bank_mask:0xf bound_ctrl:0"
    def mfma(acc, a, b, first):
        c = "0" if first else vr(acc, 16)
        k(f"v_mfma_f32_32x32x16_bf16 {vr(acc,16)}, {vr(a,4)}, {vr(b,4)}, {c}")
    def phase(acc, Areg, Breg, first, reads, late, pad=True, rg=8):
        reads = list(reads); late = list(late)
        for ks in range(8):
            mfma(acc, Areg + 4*ks, Breg + 4*ks, first and ks == 0)
            n = (len(reads) + (rg - 1 - ks)) // (rg - ks) if ks < rg else 0
            for s in reads[:n]:
                k(s)
            reads = reads[n:]
            if ks < 2:
                if pad and late and n < 5:
                    k(f"s_nop {4 - n}")
            else:
                n = (len(late) + (7 - ks)) // (8 - ks)
                for s in late[:n]:
                    k(s)
                late = late[n:]
        assert not late and not reads
    def shift_ops(acc, masked):
        if masked:
            return [f"v_and_b32_dpp v{acc+r}, v{acc+r}, v15 row_shr:1 {DPP}" for r in range(16)]
        return [f"v_mov_b32_dpp v{acc+r}, v{acc+r} row_shr:1 {DPP}" for r in range(16)]
    def areads(reg, off):
        o = []
        for ks in range(8):
            o += aread(reg + 4*ks, off + 32*ks).split("\n")
        return o
    for q in range(7, -1, -1):
        first = (q == 7)
        k("s_waitcnt lgkmcnt(0)")
        apl = areads(APk, 256*(q+8))
        if first:
            for ks in range(8):
                mfma(AY, AM + 4*ks, B1 + 4*ks, ks == 0)
                if ks == 0:
                    for x in prd[:16]: k(x)
                elif ks == 1:
                    for x in prd[16:]: k(x)
                elif ks == 2:
                    k("s_waitcnt lgkmcnt(15)")
                    k("s_waitcnt lgkmcnt(0)")
                    for x in al0[:4]: k(x)
                else:
                    for x in al0[4 + (ks-3)*6: 4 + (ks-2)*6]: k(x)
            k("s_nop 0")
            phase(AX, AM, B0, True, apl, alp[:16] + shift_ops(AY, False) + alp[16:] + ["s_nop 0"])
        else:
            phase(AY, AM, B1, False, apl, shift_ops(AP_, True))
            phase(AX, AM, B0, False, [], shift_ops(AY, False) if q > 0 else [])
        k("s_waitcnt lgkmcnt(0)")
        aml = areads(AM, 256*(q-1)) if q > 0 else []
        phase(AP_, APk, BP, first, aml, shift_ops(AX, False) if q > 0 else [], rg=5)
    k.stamp(3)
    k("s_nop 11")
    for r in range(16):
        k(f"v_add_f32_dpp v{AX+r}, v{AP_+r}, v{AX+r} row_shr:8 {DPP}")
    k("""
    s_mov_b32 s42, 0xff00ff00
    s_mov_b32 s43, 0xff00ff00
    s_mov_b64 exec, s[42:43]
    """)
    for r in range(16):
        k(f"v_add_f32 v{AY+r}, v{AP_+r}, v{AY+r}")
    k("s_mov_b64 exec, -1")
    k(f"""
    v_mul_u32_u24 v16, 264, v7
    v_lshl_add_u32 v16, v9, 5, v16
    v_lshl_add_u32 v16, v8, 2, v16
    v_add_u32 v16, s34, v16
    """)
    for r in range(16):
        k(f"v_cvt_pk_bf16_f32 v{32+r}, v{AX+r}, v{AY+r}")
    for r in range(16):
        k(f"ds_write_b32 v16, v{32+r} offset:{64*(r>>2)+8*(r&3)}")
    k(f"""
    s_lshl_b32 s44, s32, 16
    s_and_b32 s45, s32, 0xffff0000
    s_lshl_b32 s46, s33, 16
    s_and_b32 s47, s33, 0xffff0000
    v_mul_u32_u24 v17, 264, v2
    v_lshl_add_u32 v17, v1, 2, v17
    s_waitcnt lgkmcnt(0)
    s_barrier
    """)
    Y = 48
    for e in range(4):
        for c in range(4):
            k(f"ds_read_b32 v{Y+4*e+c}, v17 offset:{c*WREG+1056*e}")
    k("s_waitcnt vmcnt(0) lgkmcnt(0)")
    T = 64; O = 96
    k("""
    v_mov_b32 v28, s44
    v_mov_b32 v29, s45
    v_mov_b32 v30, s46
    v_mov_b32 v31, s47
    """)
    for e in range(4):
        for sg in range(2):
            for hh in range(2):
                a = T + 4*sg + 2*hh
                k.unpack(a, a + 1, KV + 4*e + 2*sg + hh)
                k(f"v_pk_mul_f32 {vr(a,2)}, {vr(a,2)}, {vr(28+2*hh,2)}")
                k.round2(a, a + 1, T + 8)
        for c in range(4):
            k.unpack(T + 10 + c, T + 14 + c, Y + 4*e + c)
        for d in range(4):
            k(f"v_pk_add_f32 {vr(T+2*d,2)}, {vr(T+2*d,2)}, {vr(T+10+2*d,2)}")
            k(f"v_cvt_pk_bf16_f32 v{O+4*e+d}, v{T+2*d}, v{T+2*d+1}")
    k(f"s_add_u32 s39, s38, {L.YT}")
    for e in range(4):
        k(f"buffer_store_dwordx4 {vr(O+4*e,4)}, v4, s[28:31], s39 offen")
        k(f"s_add_u32 s39, s39, {32*20480}")
    k.stamp(4)
    k("s_waitcnt vmcnt(0)")
    k.stamp(5)
    k.stamp_end(6)
    k("s_endpgm")

    k.lab(packl)
    labs = [k.newlab("pk") for _ in range(4)]
    k(f"""
    s_sub_u32 s21, s2, {160+NMOD}
    v_lshrrev_b32 v3, 3, v0                ; row
    v_and_b32 v4, 7, v0                    ; chunk
    v_mul_u32_u24 v5, 144, v3
    v_lshl_add_u32 v5, v4, 4, v5
    v_and_b32 v6, 15, v1
    v_lshrrev_b32 v7, 4, v1                ; g
    v_lshrrev_b32 v8, 2, v6
    v_lshl_add_u32 v8, v7, 3, v8           ; 8g + (i>>2)
    v_mul_u32_u24 v8, 144, v8
    v_and_b32 v9, 3, v6
    v_lshl_add_u32 v8, v9, 3, v8
    s_lshl_b32 s22, s20, 5
    v_add_u32 v8, s22, v8
    v_lshlrev_b32 v9, 4, v1                ; lane*16
    s_cmp_lt_u32 s21, 20
    s_cbranch_scc1 {labs[0]}
    s_cmp_lt_u32 s21, 40
    s_cbranch_scc1 {labs[1]}
    s_cmp_lt_u32 s21, 94
    s_cbranch_scc1 {labs[2]}
    s_branch {labs[3]}
    """)
    for m in range(4):
        k.lab(labs[m])
        N = [640, 640, 1728, 640][m]; Kd = [640, 640, 640, 1728][m]
        pitch = N * 2
        nks = 10 if m < 3 else 9
        ub = [0, 20, 40, 94][m]
        ncb = N // 64
        k.srd(24, 12 + 2*m, Kd * N * 2)
        magic = {10: (52429, 19), 27: (2428, 16)}[ncb]
        k(f"""
        s_sub_u32 s32, s21, {ub}
        s_mul_i32 s33, s32, {magic[0]}
        s_lshr_b32 s33, s33, {magic[1]}
        s_mul_i32 s34, s33, {ncb}
        s_sub_u32 s34, s32, s34
        v_mul_u32_u24 v10, {pitch}, v3
        v_lshl_add_u32 v10, v4, 4, v10
        s_mul_i32 s35, s33, {nks*32*pitch}
        s_lshl_b32 s36, s34, 7
        s_add_u32 s35, s35, s36
        """)
        R = 32
        for i in range(nks):
            k(f"buffer_load_dwordx4 {vr(R+4*i,4)}, v10, s[24:27], s35 offen")
            if i < nks - 1:
                k(f"s_add_u32 s35, s35, {32*pitch}")
        k(f"""
        s_lshl_b32 s36, s34, 2
        s_add_u32 s36, s36, s20             ; ntg
        """)
        if m == 0:
            k(f"""
            s_mul_i32 s37, s36, 20
            s_mul_i32 s38, s33, 10
            s_add_u32 s37, s37, s38
            s_lshl_b32 s37, s37, 10
            s_add_u32 s37, s37, {L.W1P}
            """)
            dconst = [i * 1024 for i in range(nks)]
        else:
            nt_ = 7 if m == 2 else 5
            mg = (9363, 16) if nt_ == 7 else (52429, 18)
            k(f"""
            s_mul_i32 s38, s36, {mg[0]}
            s_lshr_b32 s38, s38, {mg[1]}     ; j
            s_mul_i32 s39, s38, {nt_}
            s_sub_u32 s39, s36, s39          ; nt
            """)
            if m < 3:
                CK = L.CK3 if m == 1 else L.CK4
                k(f"""
                s_mul_i32 s37, s38, {20*nt_}
                s_mul_i32 s40, s33, {CK*nt_}
                s_add_u32 s37, s37, s40
                s_add_u32 s37, s37, s39
                s_lshl_b32 s37, s37, 10
                s_add_u32 s37, s37, {L.W2P if m == 1 else L.W3P}
                """)
                dconst = [(((i // CK) * 2 * CK + (i % CK)) * nt_) * 1024 for i in range(nks)]
            else:
                CK = L.CK5
                k(f"""
                s_mul_i32 s40, s33, 21846
                s_lshr_b32 s40, s40, 16          ; h
                s_mul_i32 s41, s40, 3
                s_sub_u32 s41, s33, s41          ; kq%3
                s_mul_i32 s37, s38, {54*5}
                s_mul_i32 s41, s41, {18*5}
                s_add_u32 s37, s37, s41
                s_mul_i32 s40, s40, {CK*5}
                s_add_u32 s37, s37, s40
                s_add_u32 s37, s37, s39
                s_lshl_b32 s37, s37, 10
                s_add_u32 s37, s37, {L.W4P}
                """)
                dconst = [(((i // CK) * 2 * CK + (i % CK)) * 5) * 1024 for i in range(nks)]
        for i in range(nks):
            k(f"s_waitcnt vmcnt({nks-1-i})")
            k(f"ds_write_b128 v5, {vr(R+4*i,4)} offset:{4608*i}")
        k("s_waitcnt lgkmcnt(0)")
        k("s_barrier")
        for i in range(nks):
            k(f"ds_read_b64_tr_b16 {vr(R+4*i,2)}, v8 offset:{4608*i}")
            k(f"ds_read_b64_tr_b16 {vr(R+4*i+2,2)}, v8 offset:{4608*i+576}")
        if m in (0, 2):
            k("v_mov_b32 v12, 0")
            k("v_mov_b32 v13, 0x3f803f80")
        for i in range(nks):
            k(f"s_waitcnt lgkmcnt({2*(nks-1-i)})" if 2*(nks-1-i) <= 15 else "s_waitcnt lgkmcnt(15)")
            k(f"s_add_u32 s38, s37, {dconst[i]}")
            k(f"buffer_store_dwordx4 {vr(R+4*i,4)}, v9, s[28:31], s38 offen")
            if m in (0, 2):
                for d in range(4):
                    k(f"v_dot2_f32_bf16 v12, v{R+4*i+d}, v13, v12")
        if m in (0, 2):
            k(f"""
            s_nop 2
            v_mov_b32 v13, v12
            s_nop 1
            v_permlane32_swap_b32 v13, v12
            v_add_f32 v12, v12, v13
            v_mov_b32 v13, v12
            s_nop 1
            v_permlane16_swap_b32 v13, v12
            v_add_f32 v12, v12, v13
            s_mul_i32 s38, s33, {1792*4}
            s_lshl_b32 s39, s36, 6
            s_add_u32 s38, s38, s39
            s_add_u32 s38, s38, {L.CS3P if m == 2 else L.CS1P}
            v_lshlrev_b32 v14, 2, v1
            v_cmp_gt_u32 vcc, 16, v1
            s_and_saveexec_b64 s[40:41], vcc
            buffer_store_dword v12, v14, s[28:31], s38 offen
            """)
        k("s_endpgm")

    k.lab(modl)
    k("""
    s_load_dwordx4 s[12:15], s[0:1], 88
    s_sub_u32 s32, s2, 160
    v_and_b32 v3, 7, v0              ; cc
    v_lshrrev_b32 v4, 3, v0          ; rsub
    v_lshlrev_b32 v5, 1, v4          ; c offset
    v_mul_u32_u24 v6, 7680, v4
    s_lshl_b32 s36, s32, 7
    v_lshl_add_u32 v7, v3, 4, s36
    v_add_u32 v6, v6, v7
    s_waitcnt lgkmcnt(0)
    """)
    k.srd(16, 12, 1280); k.srd(20, 14, 640 * 7680)
    C, W, A, T = 10, 32, 112, 120
    for it in range(20):
        k(f"buffer_load_ushort v{C+it}, v5, s[16:19], 0 offen offset:{64*it}")
    for it in range(20):
        k(f"s_mov_b32 s37, {it*32*7680}")
        k(f"buffer_load_dwordx4 {vr(W+4*it,4)}, v6, s[20:23], s37 offen")
    k("s_waitcnt vmcnt(20)")
    for it in range(20):
        k(f"v_lshlrev_b32 v{C+it}, 16, v{C+it}")
        k(f"v_mul_f32 v{T+it}, 0xbfb8aa3b, v{C+it}")
        k(f"v_exp_f32 v{T+it}, v{T+it}")
    for it in range(20):
        k(f"v_add_f32 v{T+it}, 1.0, v{T+it}")
        k(f"v_rcp_f32 v{T+it}, v{T+it}")
    k("s_nop 0")
    for it in range(20):
        k(f"v_mul_f32 v{C+it}, v{C+it}, v{T+it}")
    for it in range(0, 20, 2):
        k.round2(C + it, C + it + 1, T)
    for j in range(8):
        k(f"v_mov_b32 v{A+j}, 0")
    for it in range(20):
        k(f"s_waitcnt vmcnt({19-it})")
        for d in range(4):
            k.unpack(T, T + 1, W + 4*it + d)
            k(f"v_fmac_f32 v{A+2*d}, v{C+it}, v{T}")
            k(f"v_fmac_f32 v{A+2*d+1}, v{C+it}, v{T+1}")
    k(f"""
    v_lshlrev_b32 v7, 5, v0
    ds_write_b128 v7, {vr(A,4)}
    ds_write_b128 v7, {vr(A+4,4)} offset:16
    s_waitcnt lgkmcnt(0)
    s_barrier
    v_cmp_gt_u32 vcc, 64, v0
    s_and_saveexec_b64 s[42:43], vcc
    s_cbranch_execz {end}
    v_lshlrev_b32 v7, 2, v0
    """)
    for r in range(32):
        k(f"ds_read_b32 v{W+r}, v7 offset:{256*r}")
    k("s_waitcnt lgkmcnt(0)")
    for st in (16, 8, 4, 2, 1):
        for r in range(st):
            k(f"v_add_f32 v{W+r}, v{W+r}, v{W+r+st}")
    a_ = W
    k(f"""
    s_movk_i32 s22, 640
    v_cvt_pk_bf16_f32 v{a_}, v{a_}, v{a_}
    v_lshlrev_b32 v{a_}, 16, v{a_}
    v_add_f32 v{a_+1}, 1.0, v{a_}
    v_cvt_pk_bf16_f32 v{a_+1}, v{a_+1}, v{a_+1}
    v_lshlrev_b32 v{a_+1}, 16, v{a_+1}
    s_lshl_b32 s33, s32, 6
    v_add_u32 v{a_+2}, s33, v0
    v_subrev_u32 v{a_+3}, 640, v{a_+2}
    v_cmp_gt_u32 vcc, 640, v{a_+3}
    v_subrev_u32 v{a_+3}, 2560, v{a_+2}
    v_cmp_gt_u32 s[40:41], s22, v{a_+3}
    s_or_b64 vcc, vcc, s[40:41]
    v_cndmask_b32 v{a_}, v{a_}, v{a_+1}, vcc
    s_lshl_b32 s21, s32, 8
    s_add_u32 s21, s21, {L.MODF}
    buffer_store_dword v{a_}, v7, s[28:31], s21 offen
    """)
    k.lab(end)
    k("s_endpgm")
    k.lab("k1_pf")
    k(f"""
    s_load_dwordx2 s[4:5], s[0:1], 0
    v_lshrrev_b32 v2, 6, v0
    v_and_b32 v1, 63, v0
    v_readfirstlane_b32 s20, v2
    v_lshlrev_b32 v1, 4, v1
    s_sub_u32 s21, s2, {160+NMOD+NPACK}
    s_lshr_b32 s21, s21, 3
    s_lshl_b32 s21, s21, 2
    s_add_u32 s21, s21, s20          ; 0..31
    s_mul_i32 s21, s21, 10240
    s_and_b32 s22, s2, 7
    s_mul_i32 s22, s22, 327680
    s_add_u32 s21, s21, s22
    s_waitcnt lgkmcnt(0)
    """)
    k.srd(16, 4, SZ_SD)
    for i in range(10):
        k(f"buffer_load_dwordx4 {vr(8+4*i,4)}, v1, s[16:19], s21 offen offset:{(i%4)*1024}")
        if i % 4 == 3:
            k("s_add_u32 s21, s21, 4096")
    k("s_waitcnt vmcnt(0)")
    k("s_endpgm")
    return k

def build(kerns, path):
    hdr = open(os.path.join(os.path.dirname(os.path.abspath(__file__)), "..", NAME + ".s.ref")).read().split("\n")
    com = [l for l in hdr if l.startswith(";") and "@launch" not in l and "Override launch" not in l and "grid=ceil" not in l]
    s = "\n".join(com) + "\n"
    for k in kerns:
        s += f"; @launch kernel={k.name} grid=({k.grid},1,1) block=({k.block},1,1) lds={k.lds}\n"
    s += '.amdgcn_target "amdgcn-amd-amdhsa--gfx950"\n.text\n'
    for k in kerns:
        s += k.text()
    s += '.section .rodata,"a"\n'
    for k in kerns:
        s += k.kd()
    open(path, "w").write(s)

if __name__ == "__main__":
    out = sys.argv[1] if len(sys.argv) > 1 else os.path.join(os.path.dirname(os.path.abspath(__file__)), "..", NAME + ".s")
    if MERGE:
        k = Kern("k01_kernel", 864, 256, 46080, vgpr=256, sgpr=64)
        if os.environ.get("ORD") == "kvfirst":
            k("""
            s_cmp_ge_u32 s2, 864
            s_cbranch_scc1 k1_end
            s_cmp_lt_u32 s2, 480
            s_cbranch_scc1 k01_k0
            s_sub_u32 s2, s2, 480
            s_branch k01_k1
            """)
        else:
            k("""
            s_cmp_ge_u32 s2, 864
            s_cbranch_scc1 k1_end
            s_cmp_lt_u32 s2, 160
            s_cbranch_scc1 k01_k1
            s_cmp_lt_u32 s2, 600
            s_cbranch_scc1 k01_a
            s_cmp_lt_u32 s2, 819
            s_cbranch_scc1 k01_b
            s_cmp_lt_u32 s2, 824
            s_cbranch_scc1 k1_end
            s_sub_u32 s2, s2, 384
            s_branch k01_k0
            """)
            k.lab("k01_b")
            k("s_sub_u32 s2, s2, 440")
            k("s_branch k01_k1")
            k.lab("k01_a")
            k("s_sub_u32 s2, s2, 160")
        k.lab("k01_k0")
        gen_k0(k)
        k.lab("k01_k1")
        gen_k1(k)
        kerns = [k]
    else:
        kerns = [gen_k0(), gen_k1()]
    try:
        import gen2
        kerns += gen2.kernels(Kern, vr)
    except ImportError:
        pass
    build(kerns, out)
    print("wrote", out)
```

```python
import os, struct
import layout as L
SZ_SD = 2048 * 640 * 2
C0 = -2.0 * 0.7978845608028654 * 1.4426950408889634
C1 = C0 * 0.044715
def fhex(x):
    return "0x%08x" % struct.unpack("<I", struct.pack("<f", x))[0]
def vr(a, n): return f"v[{a}:{a+n-1}]" if n > 1 else f"v{a}"
def ar(a, n): return f"a[{a}:{a+n-1}]"
E = lambda n, d: int(os.environ.get(n, d))
SPIN = E("SPIN", 20000)
XSC = os.environ.get("XSC", "sc1")

class VQ:
    def __init__(self, k): self.k, self.q, self.seen = k, [], set()
    def note(self, tag): self.q.append(tag); self.seen.add(tag)
    def issue(self, text, tag): self.k(text); self.q.append(tag); self.seen.add(tag)
    def waittext(self, tag, extra=""):
        assert tag in self.seen, f"wait for {tag} before issue"
        idx = [i for i, t in enumerate(self.q) if t == tag]
        if not idx:
            return f"s_waitcnt {extra}" if extra else None
        n = len(self.q) - 1 - idx[-1]
        self.q = self.q[idx[-1] + 1:] if n <= 63 else self.q[-63:]
        return f"s_waitcnt vmcnt({min(n, 63)}) {extra}"
    def wait(self, tag, extra=""):
        t = self.waittext(tag, extra)
        if t: self.k(t)
    def drain(self, extra=""):
        self.k(f"s_waitcnt vmcnt(0) {extra}"); self.q = []

def il(main, side, frac=1.0):
    out = []; n = max(1, int(len(main) * frac)); m = len(side); si = 0
    for i, x in enumerate(main):
        out.append(x)
        want = min(m, m * (i + 1) // n)
        while si < want:
            out.append(side[si]); si += 1
    out += side[si:]
    return out

def zipl(*ls):
    out = []; ls = [list(l) for l in ls]
    while any(ls):
        for l in ls:
            if l: out.append(l.pop(0))
    return out

def ln_ops(s1, s2, t, n):
    return [f"v_mul_f32 v{s1}, {fhex(1.0/n)}, v{s1}", f"v_mul_f32 v{s2}, {fhex(1.0/n)}, v{s2}",
            f"v_fma_f32 v{s2}, -v{s1}, v{s1}, v{s2}", f"v_max_f32 v{s2}, 0, v{s2}",
            f"v_cvt_pk_bf16_f32 v{t}, v{s1}, v{s2}", f"v_lshlrev_b32 v{s1}, 16, v{t}", f"v_and_b32 v{s2}, 0xffff0000, v{t}",
            f"v_add_f32 v{s2}, {fhex(1e-5)}, v{s2}", f"v_cvt_pk_bf16_f32 v{t}, v{s2}, v{s2}", f"v_lshlrev_b32 v{s2}, 16, v{t}",
            f"v_sqrt_f32 v{s2}, v{s2}", "s_nop 0", f"v_cvt_pk_bf16_f32 v{t}, v{s2}, v{s2}", f"v_lshlrev_b32 v{s2}, 16, v{t}",
            f"v_rcp_f32 v{s2}, v{s2}", "s_nop 0", f"v_mul_f32 v{s1}, v{s1}, v{s2}", f"v_sub_f32 v{s1}, 0, v{s1}"]

def reduce16_ops(regs):
    o = []
    for ci, ctl in enumerate(("quad_perm:[1,0,3,2]", "quad_perm:[2,3,0,1]", "row_half_mirror", "row_mirror")):
        if len(regs) < 3 or ci == 0: o.append("s_nop 1")
        for a in regs: o.append(f"v_add_f32_dpp v{a}, v{a}, v{a} {ctl} row_mask:0xf bank_mask:0xf")
    return o

def reduce_g_ops(regs, t):
    o = []
    for sw in ("v_permlane32_swap_b32", "v_permlane16_swap_b32"):
        for i, a in enumerate(regs): o.append(f"v_mov_b32 v{t+i}, v{a}")
        o.append("s_nop 1")
        for i, a in enumerate(regs): o.append(f"{sw} v{t+i}, v{a}")
        o.append("s_nop 1")
        for i, a in enumerate(regs): o.append(f"v_add_f32 v{a}, v{a}, v{t+i}")
    return o

def gelu_ops(z, t, vc, n):
    o = []
    for i in range(0, n, 2): o.append(f"v_pk_mul_f32 {vr(t+i,2)}, {vr(z+i,2)}, {vr(z+i,2)}")
    for i in range(0, n, 2): o.append(f"v_pk_fma_f32 {vr(t+i,2)}, {vr(t+i,2)}, {vr(vc,2)}, {vr(vc,2)} op_sel:[0,0,1] op_sel_hi:[1,0,1]")
    for i in range(0, n, 2): o.append(f"v_pk_mul_f32 {vr(t+i,2)}, {vr(t+i,2)}, {vr(z+i,2)}")
    for i in range(n): o.append(f"v_exp_f32 v{t+i}, v{t+i}")
    for i in range(0, n, 2): o.append(f"v_pk_add_f32 {vr(t+i,2)}, {vr(t+i,2)}, 1.0 op_sel_hi:[1,0]")
    for i in range(n): o.append(f"v_rcp_f32 v{t+i}, v{t+i}")
    for i in range(0, n, 2): o.append(f"v_pk_mul_f32 {vr(z+i,2)}, {vr(z+i,2)}, {vr(t+i,2)}")
    return o

BC = "op_sel:[0,1,0] op_sel_hi:[1,1,0]"

YL, AT, MODL = 0, 40960, 122880
RSL = 138240
CSL = 139264
EX = 143360
CS3L = 162816
LDS_TOTAL = 163840

G4MAP = """s_and_b32 s57, s26, 7
    s_lshr_b32 s27, s26, 3
    s_and_b32 s58, s2, 7
    s_lshl_b32 s58, s58, 2
    s_add_u32 s58, s58, s27""" if os.environ.get("G4_1D", "1") == "1" else ""
G3MAP = """s_and_b32 s52, s26, 15
    s_lshr_b32 s27, s26, 4
    s_and_b32 s53, s2, 7
    s_lshl_b32 s53, s53, 1
    s_add_u32 s53, s53, s27""" if os.environ.get("G3_1D", "0") == "1" else ""
def gen_chain(Kern):
    kern = Kern("chain_kernel", 256, 256, LDS_TOTAL, vgpr=256, sgpr=100, agpr=256)
    class KW:
        def __init__(s): s.clock = 0.0; s.last = 0.0; s.src = None; s.interval = 80; s.busy = False
        def cost(s, ln):
            op = ln.split()[0]
            if op.startswith("v_mfma"): return 16
            if op.startswith(("v_exp", "v_rcp", "v_sqrt", "v_rsq", "v_permlane")): return 8.3
            if op.startswith("ds_write"): return 35
            if op.startswith("ds_"): return 13
            if op.startswith("buffer_"): return 14
            if op.startswith("v_"): return 4.2
            return 4.5
        def __call__(s, txt):
            for ln in txt.strip("\n").split("\n"):
                ln = ln.strip()
                if not ln: continue
                kern(ln)
                if ln.startswith(";"): continue
                s.clock += s.cost(ln)
                if s.src and not s.busy and s.clock - s.last >= s.interval and not ln.startswith(("s_cmp", "s_cbranch", "s_mov_b32 m0", "s_add_u32 m0", "s_mov_b64 exec", "s_mov_b32 exec", "v_cmp", "v_readfirstlane", "s_nop")) and s.safe:
                    s.busy = True
                    if s.src(): s.last = s.clock
                    s.busy = False
        safe = True
        def lab(s, l): kern.lab(l)
        def newlab(s, p="L"): return kern.newlab(p)
        def srd(s, d, b, size, off=0): kern.srd(d, b, size, off)
    k = KW()
    end = "chain_end"
    STOP = os.environ.get("STOP", "")
    vq = VQ(k)
    nst = [0, 0]
    SKIP = 8
    def stamp(grp=None):
        if os.environ.get("PROF3") and nst[0] < 18 and not (os.environ.get("PG3") and nst[1] < SKIP and (nst.__setitem__(1, nst[1] + 1) or True) and nst[1] > 1):
            op = "s_memtime" if os.environ.get("PROF3") == "cyc" else "s_memrealtime"
            k(f"{op} s[{64+2*nst[0]}:{65+2*nst[0]}]"); nst[0] += 1
    def emit(lst):
        for x in lst: k(x)
    class Pend:
        def __init__(s, items=()): s.items = list(items)
        def add(s, items): s.items += list(items)
        def pop(s, n=1):
            if getattr(s, "late", False) and n < 50: return
            for _ in range(n):
                if s.items:
                    t, tg = s.items.pop(0); vq.issue(t, tg)
        def has(s, tag): return any(tg == tag for _, tg in s.items)
    stamp()
    k(f"""
    s_cmp_ge_u32 s2, 256
    s_cbranch_scc1 {end}
    s_load_dwordx2 s[4:5], s[0:1], 0
    s_load_dwordx2 s[6:7], s[0:1], 104
    s_load_dwordx2 s[10:11], s[0:1], 120
    v_lshrrev_b32 v2, 6, v0
    v_and_b32 v1, 63, v0
    v_readfirstlane_b32 s20, v2
    s_and_b32 s25, s2, 7                ; x
    s_lshr_b32 s26, s2, 3               ; idx
    s_lshl_b32 s23, s25, 3
    s_lshr_b32 s27, s26, 2
    s_add_u32 s23, s23, s27
    s_and_b32 s24, s26, 3               ; j
    s_and_b32 s21, s20, 1
    s_lshr_b32 s22, s20, 1              ; kh
    v_lshrrev_b32 v3, 4, v1             ; g  (= r4)
    v_and_b32 v4, 15, v1                ; m  (= c)
    v_lshlrev_b32 v8, 4, v1             ; lane*16
    s_waitcnt lgkmcnt(0)
    """)
    k.srd(28, 10, 0x10000000)
    XR, XF, PM, T, ONE = 32, 72, 152, 192, 224
    SA, NB_ = 216, 220
    HBR = 16
    k(f"""
    s_mul_i32 s25, s20, 10240
    s_add_u32 s10, s25, {YL}
    s_mul_i32 s11, s23, 40960
    s_add_u32 s11, s11, s25
    s_add_u32 s11, s11, {L.YT}
    s_lshl_b32 s12, s20, 10
    s_add_u32 s13, s12, {L.MODF + 7680}
    s_add_u32 s12, s12, {MODL + 7680}
    s_lshl_b32 s14, s21, 10
    s_add_u32 s14, s14, {CSL}
    s_mul_i32 s15, s21, {1792*4}
    s_mul_i32 s25, s24, 640
    s_add_u32 s15, s15, s25
    s_add_u32 s15, s15, {L.CS1P}
    """)
    first = []
    for i in range(10):
        pre = "s_mov_b32 m0, s10\ns_add_u32 s10, s10, 4096\n" if i % 4 == 0 else ""
        post = "\ns_add_u32 s11, s11, 4096" if i % 4 == 3 else ""
        first.append((pre + f"buffer_load_dwordx4 v8, s[28:31], s11 offen offset:{(i%4)*1024} lds" + post, "y"))
    first.append(("s_mov_b32 m0, s12\ns_nop 0\nbuffer_load_dwordx4 v8, s[28:31], s13 offen lds", "y"))
    first.append((f"s_mov_b32 m0, {MODL + 7680 + 4096}\ns_mov_b32 s13, {L.MODF + 7680 + 4096}\nbuffer_load_dwordx4 v8, s[28:31], s13 offen lds", "y"))
    first.append(("s_mov_b32 m0, s14\ns_nop 0\nbuffer_load_dwordx4 v8, s[28:31], s15 offen lds", "y"))
    first = Pend(first)
    first.pop(100)
    realk = k
    class Cap:
        def __init__(s): s.L = []
        def __call__(s, txt):
            for ln in txt.strip("\n").split("\n"):
                ln = ln.strip()
                if ln: s.L.append(ln)
        def srd(s, d, b, size):
            s(f"s_mov_b32 s{d}, s{b}\ns_mov_b32 s{d+1}, s{b+1}\ns_mov_b32 s{d+2}, {size}\ns_mov_b32 s{d+3}, 0x00020000")
    cap = Cap()
    k = cap
    k.srd(32, 6, SZ_SD)
    vY, vPM, vAW, vA0e, vA0o, vA1e, vA1o = 226, 227, 228, 229, 230, 231, 232
    vCS, vCS4, vRS, vHB = 233, 234, 235, 236
    vHP, vHL, vFP, vFL, vPL = 241, 242, 243, 244, 245
    vEXW, vEXR = 246, 247
    k(f"""
    s_mul_i32 s36, s24, 200
    s_mul_i32 s37, s21, 100
    s_add_u32 s36, s36, s37
    s_mul_i32 s37, s22, 50
    s_add_u32 s36, s36, s37
    s_lshl_b32 s36, s36, 10
    s_add_u32 s37, s36, {L.W2C}
    s_add_u32 s36, s36, {L.W1C}
    v_lshrrev_b32 v2, 1, v3
    s_lshl_b32 s26, s21, 2
    v_add_u32 v2, s26, v2
    v_and_b32 v7, 7, v4
    v_xor_b32 v2, v2, v7
    v_lshlrev_b32 v2, 4, v2
    v_lshl_add_u32 v{vY}, v4, 8, v2
    v_and_b32 v2, 1, v3
    v_lshl_add_u32 v{vY}, v2, 3, v{vY}
    s_mul_i32 s26, s22, 20480
    s_add_u32 s27, s26, {YL}
    v_add_u32 v{vY}, s27, v{vY}
    v_lshlrev_b32 v{vPM}, 5, v4
    v_add_u32 v{vPM}, {MODL}, v{vPM}
    s_lshl_b32 s27, s21, 3
    v_add_u32 v2, s27, v3
    v_xor_b32 v2, v2, v7
    v_lshlrev_b32 v2, 4, v2
    v_and_b32 v7, 3, v4
    v_lshl_add_u32 v2, v7, 8, v2
    v_lshrrev_b32 v7, 2, v4
    v_lshl_add_u32 v2, v7, 10, v2
    s_add_u32 s27, s26, {AT}
    v_add_u32 v{vAW}, s27, v2
    v_xor_b32 v2, v4, v3                 ; m ^ g
    v_lshlrev_b32 v2, 4, v2
    v_lshl_add_u32 v2, v3, 8, v2
    v_xor_b32 v7, 64, v2                 ; odd-ks
    s_mul_i32 s26, s22, 30720
    s_add_u32 s26, s26, {AT}
    s_mul_i32 s27, s22, 10240
    s_sub_u32 s27, {AT + 20480}, s27
    v_add_u32 v{vA0e}, s26, v2
    v_add_u32 v{vA0o}, s26, v7
    v_add_u32 v{vA1e}, s27, v2
    v_add_u32 v{vA1o}, s27, v7
    v_lshlrev_b32 v2, 4, v3
    s_mul_i32 s26, s21, {96*4}
    s_add_u32 s26, s26, {CSL}
    v_add_u32 v{vCS}, s26, v2
    s_mul_i32 s26, s21, {16*4}
    s_add_u32 s26, s26, {CSL + 64*4}
    v_add_u32 v{vCS4}, s26, v2
    s_lshl_b32 s26, s22, 7
    s_add_u32 s26, s26, {RSL}
    v_lshl_add_u32 v{vRS}, v4, 3, s26
    s_mul_i32 s39, s24, 5
    s_mul_i32 s40, s21, 3
    s_add_u32 s40, s40, s39
    s_add_u32 s41, s39, 2                ; ksL = 5j + 2
    v_lshrrev_b32 v12, 1, v3             ; g>>1
    v_and_b32 v13, 1, v3
    v_lshlrev_b32 v13, 3, v13            ; (g&1)*8
    """)
    for t in range(5):
        if t < 4:
            k(f"s_add_u32 s26, s40, {t//2}")
            k(f"v_add_u32 v14, {2*(t&1)}, v12")
        else:
            k(f"s_mov_b32 s26, s41")
            k(f"s_lshl_b32 s27, s21, 1")
            k(f"v_add_u32 v14, s27, v12")
        k(f"""
        s_and_b32 s27, s26, 1
        s_lshl_b32 s27, s27, 2
        v_add_u32 v15, s27, v14
        v_xor_b32 v15, v15, v4
        v_lshlrev_b32 v15, 4, v15
        v_lshl_add_u32 v15, v14, 8, v15
        v_add_u32 v15, v15, v13
        s_mul_i32 s27, s22, 20
        s_add_u32 s27, s27, s26
        s_lshl_b32 s27, s27, 10
        s_add_u32 s27, s27, {AT}
        v_add_u32 v{vHB+t}, s27, v15
        """)
    def fm_store_addr(vP, vL, shift_sgpr, nks, rowbase_s, half_s, kk):
        o = f"v_add_u32 v{vP}, {rowbase_s}, v4\n"
        if shift_sgpr:
            o += f"v_add_u32 v{vP}, {shift_sgpr}, v{vP}\ns_movk_i32 s27, 2048\nv_cmp_gt_u32 s[60:61], s27, v{vP}\n"
        o += f"""
        v_lshrrev_b32 v{vL}, 4, v{vP}
        v_and_b32 v{vP}, 15, v{vP}
        s_mov_b32 s27, {nks*1024}
        v_mul_lo_u32 v{vL}, v{vL}, s27
        v_lshl_add_u32 v{vL}, v{vP}, 4, v{vL}
        v_and_b32 v{vP}, 1, v3
        v_lshlrev_b32 v{vP}, 9, v{vP}
        v_lshrrev_b32 v2, 1, v3
        v_lshl_add_u32 v{vP}, v2, 8, v{vP}
        v_add_u32 v{vP}, v{vP}, v{vL}
        s_lshl_b32 s27, {half_s}, 9
        v_lshl_add_u32 v{vL}, v2, 8, v{vL}
        v_add_u32 v{vL}, s27, v{vL}
        v_and_b32 v2, 1, v3
        v_lshl_add_u32 v{vL}, v2, 3, v{vL}
        """
        kk(o)
    k(f"""
    s_lshr_b32 s26, s24, 1
    s_add_u32 s26, s26, 1
    s_sub_u32 s27, 0, s26
    s_and_b32 s42, s24, 1
    s_cmp_eq_u32 s42, 1
    s_cselect_b32 s42, s27, s26          ; shift: j 0:+1 1:-1 2:+2 3:-2
    s_lshl_b32 s43, s23, 5
    s_lshl_b32 s26, s22, 4
    s_add_u32 s43, s43, s26
    """)
    fm_store_addr(vHP, vHL, "s42", 20, "s43", "s21", k)
    fm_store_addr(vFP, vFL, None, 20, "s43", "s21", k)
    k(f"""
    s_lshl_b32 s44, s40, 10
    s_add_u32 s38, s44, {L.X1}
    s_add_u32 s44, s44, {L.H1S}
    s_lshl_b32 s45, s41, 10
    s_add_u32 s39, s45, {L.X1}           ; X1 leftover
    s_add_u32 s45, s45, {L.H1S}
    s_lshl_b32 s46, s23, 2
    s_add_u32 s46, s46, s24
    s_lshl_b32 s46, s46, 7
    s_add_u32 s49, s46, {L.F2}           ; F2 flag
    s_add_u32 s46, s46, {L.F1}           ; F1 flag
    ; G2 poll lanes: 0:(rb-1,2kh) 1:(rb,2kh) 2:(rb,2kh+1) 3:(rb+1,2kh+1)
    v_add_u32 v7, 1, v1
    v_lshrrev_b32 v7, 1, v7
    v_add_u32 v7, s23, v7
    v_subrev_u32 v7, 1, v7
    v_max_i32 v7, 0, v7
    v_min_i32 v7, 63, v7
    v_lshrrev_b32 v2, 1, v1
    s_lshl_b32 s26, s22, 1
    v_add_u32 v2, s26, v2
    v_lshl_add_u32 v7, v7, 2, v2
    v_lshlrev_b32 v{vPL}, 7, v7
    ; G2 X bases
    s_lshl_b32 s26, s23, 1
    s_add_u32 s27, s26, s22
    s_mul_i32 s27, s27, 20
    s_mul_i32 s3, s22, 10
    s_add_u32 s27, s27, s3
    s_lshl_b32 s27, s27, 10
    s_add_u32 s50, s27, {L.H1S}
    s_add_u32 s27, s26, 1
    s_sub_u32 s27, s27, s22
    s_mul_i32 s27, s27, 20
    s_add_u32 s27, s27, s3
    s_lshl_b32 s27, s27, 10
    s_add_u32 s51, s27, {L.H1S}
    s_mul_i32 s26, s20, 5120
    s_add_u32 s26, s26, {EX}
    v_add_u32 v{vEXW}, s26, v8
    s_xor_b32 s27, s20, 2
    s_mul_i32 s27, s27, 5120
    s_add_u32 s27, s27, {EX}
    v_add_u32 v{vEXR}, s27, v8
    ; G3 / G4 tile ids (2D XCD partition: XCD pair shares 512 rows, each XCD takes half of the columns)
    s_lshr_b32 s26, s2, 3                ; idx
    s_and_b32 s3, s2, 7                  ; x
    s_and_b32 s4, s3, 1                  ; x&1
    s_lshr_b32 s3, s3, 1                 ; x>>1
    s_and_b32 s52, s26, 7
    s_lshl_b32 s27, s4, 3
    s_add_u32 s52, s52, s27              ; j16 = 8(x&1) + (idx&7)
    s_lshr_b32 s27, s26, 3
    s_lshl_b32 s53, s3, 2
    s_add_u32 s53, s53, s27
    s_and_b32 s57, s26, 3
    s_lshl_b32 s27, s4, 2
    s_add_u32 s57, s57, s27              ; j8 = 4(x&1) + (idx&3)
    s_lshr_b32 s27, s26, 2
    s_lshl_b32 s58, s3, 3
    s_add_u32 s58, s58, s27
    {G4MAP}
    {G3MAP}
    s_mul_i32 s54, s52, {140*1024}
    s_add_u32 s54, s54, {L.W3C}
    s_mul_i32 s59, s57, {270*1024}
    s_add_u32 s59, s59, {L.W4C}
    v_mov_b32 v{ONE}, 0x3f803f80
    """)
    for s in range(2):
        for b in (SA, NB_):
            k(f"v_mov_b32 v{b+2*s}, 0"); k(f"v_mov_b32 v{b+2*s+1}, 0")
    k = realk
    capL = cap.L
    def tile_dma(sbase, f0, n, s0, tag):
        q = (n + 3) // 4
        o = []
        for i in range(q):
            pre = ""
            if i == 0:
                pre = f"s_mul_i32 s25, s20, {q}\n" + (f"s_min_u32 s25, s25, {n-q}\n" if n % 4 else "") + f"s_lshl_b32 s25, s25, 10\ns_add_u32 s62, s25, {s0*1024}\ns_add_u32 s63, s25, s{sbase}\ns_add_u32 s63, s63, {f0*1024}\ns_mov_b32 m0, s62\n"
            elif i % 4 == 0:
                pre = "s_add_u32 s62, s62, 4096\ns_add_u32 s63, s63, 4096\ns_mov_b32 m0, s62\n"
            o.append((pre + f"buffer_load_dwordx4 v8, s[28:31], s63 offen offset:{(i%4)*1024} lds", tag))
        return o
    w2reg = lambda f: 200 + 4*f if f < 14 else 4*(f - 14)
    def wlist(sreg, tagp, reg=lambda f: 4*f):
        o = []
        for f in range(50):
            pre = f"s_add_u32 s{sreg}, s{sreg}, 4096\n" if (f and f % 4 == 0) else ""
            o.append((pre + f"buffer_load_dwordx4 {ar(reg(f),4)}, v8, s[28:31], s{sreg} offen offset:{(f%4)*1024}", f"{tagp}{f//5}"))
        return o
    w1 = Pend(wlist(36, "w1_"))
    w2 = Pend(wlist(37, "w2_", w2reg))
    w2l = w2.items
    w1.add(w2l[:14]); w2.items = w2l[14:]
    ksdone = [0]; nw2 = [14]
    def g1src():
        if w1.items:
            w1.pop(1); return True
        f = nw2[0]
        if f < 50 and (f - 14) // 5 < ksdone[0]:
            w2.pop(1); nw2[0] += 1; return True
        return False
    k.interval = E("IV1", 78); k.last = k.clock; k.src = g1src
    for x in capL: k(x)
    vq.wait("y")
    k("s_barrier")
    stamp()
    k(f"v_xor_b32 v12, 32, v{vY}")
    def rd_x(c_):
        t, s_ = c_ // 2, c_ % 2
        va = vY if s_ == 0 else 12
        return [f"ds_read_b64 {vr(XR+4*c_,2)}, v{va} offset:{t*4096}", f"ds_read_b64 {vr(XR+4*c_+2,2)}, v{va} offset:{t*4096+128}"]
    emit(rd_x(0) + rd_x(1) + rd_x(2))
    for c_ in range(10):
        s_ = c_ % 2
        nxt = rd_x(c_ + 3) if c_ + 3 < 10 else []
        k(f"s_waitcnt lgkmcnt({min(4, 2*(9-c_))})")
        v = []
        for d in range(4):
            x = XR + 4*c_ + d
            v.append(f"v_dot2_f32_bf16 v{NB_+2*s_}, v{x}, v{ONE}, v{NB_+2*s_}")
            v.append(f"v_lshlrev_b32 v{XF+8*c_+2*d}, 16, v{x}")
            v.append(f"v_dot2_f32_bf16 v{NB_+2*s_+1}, v{x}, v{x}, v{NB_+2*s_+1}")
            v.append(f"v_and_b32 v{XF+8*c_+2*d+1}, 0xffff0000, v{x}")
        emit(il(v, nxt, 0.6))
    k("s_nop 2")
    emit(reduce16_ops([NB_, NB_+1, NB_+2, NB_+3]))
    emit(zipl(ln_ops(NB_, NB_+1, T, 640), ln_ops(NB_+2, NB_+3, T+1, 640)))
    stamp()
    def rd_c(t):
        b = t & 1
        o = []
        for vi, vec in enumerate((4, 3)):
            o.append(f"ds_read_b128 {vr(PM+16*b+8*vi,4)}, v{vPM} offset:{vec*2560+t*512}")
            o.append(f"ds_read_b128 {vr(PM+16*b+8*vi+4,4)}, v{vPM} offset:{vec*2560+t*512+16}")
        return o
    for s in range(2):
        k(f"v_mov_b32 v{SA+2*s}, 0"); k(f"v_mov_b32 v{SA+2*s+1}, 0")
    k(f"v_xor_b32 v12, 64, v{vAW}")
    emit(rd_c(0))
    for c_ in range(10):
        t, s = c_ // 2, c_ % 2
        nxt = rd_c(t + 1) if (s == 0 and t < 4) else []
        if s == 0: k(f"s_waitcnt lgkmcnt({1 if c_ else 0})")
        M = PM + 16*(t & 1); S_ = SA + 2*s; N_ = NB_ + 2*s
        X_ = XF + 8*c_; R_ = XR + 4*c_
        v = []
        for d in range(4): v.append(f"v_pk_fma_f32 {vr(X_+2*d,2)}, {vr(X_+2*d,2)}, {vr(N_,2)}, {vr(N_,2)} {BC}")
        for d in range(4): v.append(f"v_pk_fma_f32 {vr(X_+2*d,2)}, {vr(X_+2*d,2)}, {vr(M+2*d,2)}, {vr(M+8+2*d,2)}")
        for d in range(4): v.append(f"v_cvt_pk_bf16_f32 v{R_+d}, v{X_+2*d}, v{X_+2*d+1}")
        for d in range(4):
            v.append(f"v_dot2_f32_bf16 v{S_}, v{R_+d}, v{ONE}, v{S_}")
            v.append(f"v_dot2_f32_bf16 v{S_+1}, v{R_+d}, v{R_+d}, v{S_+1}")
        emit(il(v, nxt, 0.6))
        k(f"ds_write_b128 v{vAW if s == 0 else 12}, {vr(R_,4)} offset:{4096*t}")
    while w1.has("w1_9"): w1.pop(1)
    k("s_nop 1")
    emit(reduce16_ops([SA, SA+1, SA+2, SA+3]))
    emit(zipl(ln_ops(SA, SA+1, T, 640), ln_ops(SA+2, SA+3, T+1, 640)))
    k(f"""
    s_lshl_b32 s26, s20, 6
    v_lshl_add_u32 v2, v3, 3, s26
    v_add_u32 v2, {RSL}, v2
    ds_write_b64 v2, {vr(SA,2)}
    ds_write_b64 v2, {vr(SA+2,2)} offset:32
    s_waitcnt lgkmcnt(0)
    s_barrier
    """)
    stamp()
    ACC, AF, RCV = 32, 72, 88
    CS, CS2, RS, GT, VC, PK = 112, 132, 152, 160, 30, 180
    def aread(ks):
        b = AF + 8 * (ks & 1)
        va, vb = (vA0e, vA1e) if ks % 2 == 0 else (vA0o, vA1o)
        return [f"ds_read_b128 {vr(b,4)}, v{va} offset:{ks*1024}", f"ds_read_b128 {vr(b+4,4)}, v{vb} offset:{ks*1024}"]
    side = []
    for t in range(4):
        side.append(f"ds_read_b128 {vr(CS+4*t,4)}, v{vCS} offset:{64*t}")
        side.append(f"ds_read_b128 {vr(CS2+4*t,4)}, v{vCS} offset:{64*t+1024}")
    side.append(f"ds_read_b128 {vr(CS+16,4)}, v{vCS4}")
    side.append(f"ds_read_b128 {vr(CS2+16,4)}, v{vCS4} offset:1024")
    side.append(f"ds_read_b64 {vr(RS,2)}, v{vRS}")
    for t in range(5): side.append(f"ds_read_b64 {vr(HBR+2*t,2)}, v{vHB+t}")
    emit(aread(0))
    for ks in range(10):
        ksdone[0] = ks
        vq.wait(f"w1_{ks}", "lgkmcnt(0)")
        b = AF + 8 * (ks & 1)
        mf = []
        for t in range(5):
            for rt in range(2):
                a = ACC + (rt * 5 + t) * 4
                c = "0" if ks == 0 else vr(a, 4)
                mf.append(f"v_mfma_f32_16x16x32_bf16 {vr(a,4)}, {ar((ks*5+t)*4,4)}, {vr(b+4*rt,4)}, {c}")
        ds = aread(ks + 1) if ks < 9 else []
        ds += side[:2]; side = side[2:]
        for i, m_ in enumerate(mf):
            k(m_)
            if i % 2 == 1 and i < 8 and ds: k(ds.pop(0))
        emit(ds)
    assert not side
    stamp()
    def exchange():
        k("s_nop 4")
        for t in range(5):
            k(f"ds_write_b128 v{vEXW}, {vr(ACC+(5+t)*4,4)} offset:{1024*t}")
    def exchange2():
        k("s_waitcnt lgkmcnt(0)")
        k("s_barrier")
        for t in range(5):
            k(f"ds_read_b128 {vr(RCV+4*t,4)}, v{vEXR} offset:{1024*t}")
    ksdone[0] = 10
    k("s_waitcnt lgkmcnt(0)")
    exchange()
    for t in range(5):
        for i in (0, 2):
            k(f"v_pk_add_f32 {vr(CS+4*t+i,2)}, {vr(CS+4*t+i,2)}, {vr(CS2+4*t+i,2)}")
    for t in range(5):
        for i in (0, 2): k(f"v_pk_mul_f32 {vr(CS+4*t+i,2)}, {vr(CS+4*t+i,2)}, {vr(RS,2)} op_sel_hi:[1,0]")
    k(f"v_mov_b32 v{VC}, {fhex(C1)}")
    k(f"v_mov_b32 v{VC+1}, {fhex(C0)}")
    exchange2()
    for t in range(5):
        z = ACC + 4*t
        k(f"s_waitcnt lgkmcnt({4-t})")
        for i in (0, 2): k(f"v_pk_add_f32 {vr(z+i,2)}, {vr(z+i,2)}, {vr(RCV+4*t+i,2)}")
    for t in range(5):
        z = ACC + 4*t
        for i in (0, 2): k(f"v_pk_fma_f32 {vr(z+i,2)}, {vr(z+i,2)}, {vr(RS,2)}, {vr(CS+4*t+i,2)} op_sel:[0,1,0] op_sel_hi:[1,1,1]")
    emit(gelu_ops(ACC, 192, VC, 20))
    k.src = None
    for t in range(5):
        k(f"v_cvt_pk_bf16_f32 v{PK+2*t}, v{ACC+4*t}, v{ACC+4*t+1}")
        k(f"v_cvt_pk_bf16_f32 v{PK+2*t+1}, v{ACC+4*t+2}, v{ACC+4*t+3}")
    def pair_swaps(pk, npairs):
        k("s_nop 1")
        for p in range(npairs):
            k(f"v_permlane16_swap_b32 v{pk+4*p}, v{pk+4*p+2}")
            k(f"v_permlane16_swap_b32 v{pk+4*p+1}, v{pk+4*p+3}")
    pair_swaps(PK, 2)
    k("s_mov_b64 exec, s[60:61]")
    vq.issue(f"buffer_store_dwordx4 {vr(PK,4)}, v{vHP}, s[28:31], s44 offen", "st")
    vq.issue(f"buffer_store_dwordx4 {vr(PK+4,4)}, v{vHP}, s[28:31], s44 offen offset:1024", "st")
    vq.issue(f"buffer_store_dwordx2 {vr(PK+8,2)}, v{vHL}, s[28:31], s45 offen", "st")
    k("s_mov_b64 exec, -1")
    def signal(sreg):
        vq.drain()
        k("s_barrier")
        l = k.newlab("sig")
        k(f"""
        s_cmp_lg_u32 s20, 0
        s_cbranch_scc1 {l}
        v_mov_b32 v2, 1
        v_mov_b32 v7, 0
        s_mov_b64 exec, 1
        buffer_store_dword v2, v7, s[28:31], s{sreg} offen
        s_mov_b64 exec, -1
        """)
        k.lab(l)
    stamp()
    signal(46)
    stamp()
    def finish():
        if os.environ.get("PROF3"):
            n = nst[0]
            k(f"""
            s_waitcnt vmcnt(0) lgkmcnt(0)
            s_lshl_b32 s26, s2, 2
            s_add_u32 s26, s26, s20
            s_lshl_b32 s26, s26, 7
            s_add_u32 s26, s26, {L.PROFOFF + 0x100000}
            v_mov_b32 v7, 0
            s_mov_b64 exec, 1
            """)
            for i in range(n):
                k(f"v_mov_b32 v2, s{64+2*i}")
                k(f"buffer_store_dword v2, v7, s[28:31], s26 offen offset:{4*i}")
                k("s_nop 0")
        k("s_endpgm")
    if STOP == "G1":
        finish(); k.lab(end); k("s_endpgm"); return kern

    def poll(vfl, nl, sbase):
        l = k.newlab("poll"); d = k.newlab("polld")
        k(f"""
        s_mov_b32 s47, 0
        s_mov_b64 exec, {(1 << nl) - 1}
        """)
        k.lab(l)
        k(f"""
        buffer_load_dword v2, v{vfl}, s[28:31], {sbase} offen sc1
        s_add_u32 s47, s47, 1
        s_waitcnt vmcnt(0)
        v_cmp_ne_u32 vcc, 1, v2
        s_cmp_ge_u32 s47, {SPIN}
        s_cbranch_scc1 {d}
        s_cbranch_vccnz {l}
        """)
        k.lab(d)
        k("s_mov_b64 exec, -1")
        vq.q = []

    w1.pop(100); w2.pop(100)
    w3 = Pend(tile_dma(54, 0, 40, 0, "w3"))
    w3.pop(100)
    k(f"s_mov_b32 s48, {L.F1}")
    poll(vPL, 4, "s48")
    stamp()
    XV = 72
    def xload(reg, ks, s0, tagp, agpr):
        o = []
        for rt in range(2):
            pre = f"s_add_u32 s{s0}, s{s0}, 4096\ns_add_u32 s{s0+1}, s{s0+1}, 4096\n" if (rt == 0 and ks and ks % 4 == 0) else ""
            r = reg + (ks*2+rt)*4
            o.append((pre + f"buffer_load_dwordx4 {ar(r,4) if agpr else vr(r,4)}, v8, s[28:31], s{s0+rt} offen offset:{(ks%4)*1024} {XSC}", f"{tagp}{ks}"))
        return o
    px = Pend()
    for ks in range(10): px.add(xload(XV, ks, 50, "x2_", False))
    NPRE = E("NPRE", 5)
    px.pop(2 * NPRE)
    w3 = Pend(tile_dma(54, 40, 80, 40, "w3") + tile_dma(54, 120, 20, 120, "w3"))
    vP3, vL3, vST, vF3 = 226, 227, 228, 229
    k(f"""
    s_lshl_b32 s26, s53, 3
    s_lshl_b32 s27, s20, 1
    s_add_u32 s56, s26, s27              ; G3 row tile of rt'=0 : 8rb128 + 2w
    s_mul_i32 s6, s56, 20480
    s_add_u32 s6, s6, {L.X1}             ; G3 X base rt0
    s_add_u32 s7, s6, 20480
    s_lshl_b32 s26, s53, 2
    s_add_u32 s26, s26, s20
    s_lshl_b32 s26, s26, 9
    s_add_u32 s8, s26, {L.F2}            ; G3 poll base
    v_lshlrev_b32 v{vST}, 3, v4
    v_lshl_add_u32 v{vST}, v3, 8, v{vST} ; g*256 + m*8
    s_lshl_b32 s9, s56, 10
    s_add_u32 s9, s9, {L.ST2}            ; G3 stats base
    s_and_b32 s42, s52, 1
    s_mul_i32 s12, s52, 7
    s_add_u32 s13, s12, 1
    s_lshr_b32 s13, s13, 1               ; ksP = (7j+1)>>1
    s_add_u32 s26, s13, 3
    s_sub_u32 s27, s13, 1
    s_cmp_eq_u32 s42, 1
    s_cselect_b32 s12, s27, s26          ; ksL
    s_lshl_b32 s13, s13, 10
    s_add_u32 s13, s13, {L.H3}
    s_lshl_b32 s12, s12, 10
    s_add_u32 s12, s12, {L.H3}
    s_lshl_b32 s14, s56, 4
    s_lshl_b32 s15, s53, 4
    s_add_u32 s15, s15, s52
    s_lshl_b32 s15, s15, 2
    s_add_u32 s15, s15, s20
    s_lshl_b32 s15, s15, 7
    s_add_u32 s15, s15, {L.F3}           ; F3 flag
    ; ST2 store offset for G2: [rowtile][part = 2j+nh][m][2]
    s_lshr_b32 s26, s43, 4
    s_lshl_b32 s26, s26, 3
    s_lshl_b32 s27, s24, 1
    s_add_u32 s26, s26, s27
    s_add_u32 s26, s26, s21
    s_lshl_b32 s26, s26, 7
    s_add_u32 s19, s26, {L.ST2}
    """)
    fm_store_addr(vP3, vL3, None, 54, "s14", "s42", k)
    for ks in range(10):
        vq.wait(f"x2_{ks}")
        i = 0
        for t in range(5):
            for rt in range(2):
                a = ACC + (rt * 5 + t) * 4
                c = "0" if ks == 0 else vr(a, 4)
                k(f"v_mfma_f32_16x16x32_bf16 {vr(a,4)}, {ar(w2reg(ks*5+t),4)}, {vr(XV+(ks*2+rt)*4,4)}, {c}")
            if px.items:
                if t in (0, 2): px.pop(1)
            elif t in (0, 1, 3): w3.pop(1)
    stamp()
    exchange()
    for t in range(5):
        k(f"v_lshlrev_b32 v{CS+4*t}, 16, v{HBR+2*t}")
        k(f"v_and_b32 v{CS+4*t+1}, 0xffff0000, v{HBR+2*t}")
        k(f"v_lshlrev_b32 v{CS+4*t+2}, 16, v{HBR+2*t+1}")
        k(f"v_and_b32 v{CS+4*t+3}, 0xffff0000, v{HBR+2*t+1}")
    for t in range(5):
        for i in (0, 2): k(f"v_pk_add_f32 {vr(ACC+4*t+i,2)}, {vr(ACC+4*t+i,2)}, {vr(CS+4*t+i,2)}")
    k("v_mov_b32 v28, 0")
    k("v_mov_b32 v29, 0")
    w3.pop(100)
    exchange2()
    for t in range(5):
        z = ACC + 4*t
        k(f"s_waitcnt lgkmcnt({4-t})")
        for i in (0, 2): k(f"v_pk_add_f32 {vr(z+i,2)}, {vr(z+i,2)}, {vr(RCV+4*t+i,2)}")
        k(f"v_cvt_pk_bf16_f32 v{PK+2*t}, v{z}, v{z+1}")
        k(f"v_cvt_pk_bf16_f32 v{PK+2*t+1}, v{z+2}, v{z+3}")
    for r in range(10):
        k(f"v_dot2_f32_bf16 v28, v{PK+r}, v{ONE}, v28")
        k(f"v_dot2_f32_bf16 v29, v{PK+r}, v{PK+r}, v29")
    pair_swaps(PK, 2)
    vq.issue(f"buffer_store_dwordx4 {vr(PK,4)}, v{vFP}, s[28:31], s38 offen", "st")
    vq.issue(f"buffer_store_dwordx4 {vr(PK+4,4)}, v{vFP}, s[28:31], s38 offen offset:1024", "st")
    vq.issue(f"buffer_store_dwordx2 {vr(PK+8,2)}, v{vFL}, s[28:31], s39 offen", "st")
    emit(reduce_g_ops([28, 29], GT))
    k("v_lshlrev_b32 v2, 3, v4")
    k("s_mov_b64 exec, 0xffff")
    vq.issue("buffer_store_dwordx2 v[28:29], v2, s[28:31], s19 offen", "st")
    k("s_mov_b64 exec, -1")
    stamp()
    signal(49)
    stamp()
    if STOP == "G2":
        finish(); k.lab(end); k("s_endpgm"); return kern

    w3.pop(100)
    k(f"""
    v_and_b32 v2, 31, v1
    v_lshlrev_b32 v2, 4, v2
    v_lshrrev_b32 v7, 5, v1
    v_mul_u32_u24 v7, {1792*4}, v7
    v_add_u32 v2, v2, v7
    s_mul_i32 s26, s52, 448
    s_add_u32 s26, s26, {L.CS3P}
    s_mov_b32 m0, {CS3L}
    v_lshlrev_b32 v7, 7, v1
    """)
    vq.issue("buffer_load_dwordx4 v2, s[28:31], s26 offen lds", "cs3")
    poll(7, 4, "s8")
    stamp()
    px = Pend()
    for ks in range(20): px.add(xload(0, ks, 6, "x3_", True))
    STR = 16
    for rt in range(2):
        px.add([(f"buffer_load_dwordx2 {vr(STR+4*rt,2)}, v{vST}, s[28:31], s9 offen offset:{1024*rt} sc1", "st2"),
                (f"buffer_load_dwordx2 {vr(STR+4*rt+2,2)}, v{vST}, s[28:31], s9 offen offset:{1024*rt+128} sc1", "st2")])
    px.pop(2 * NPRE)
    k("s_barrier")
    def step_slot(st):
        if st == 0 or st == 16: return 140
        if 1 <= st <= 8: return (st - 1) * 10
        if st == 9 or st == 25: return 150
        if 10 <= st <= 15: return 80 + (st - 10) * 10
        if 17 <= st <= 24: return (st - 17) * 10
        if st == 26: return 80
    w4_issue = lambda f0, n, s0, tag="w4": tile_dma(59, f0, n, s0, tag)
    w4a = Pend(w4_issue(0, 10, 140))
    CS3, CS3b = 88, 116
    k(f"""
    s_lshl_b32 s26, s42, 6
    v_lshlrev_b32 v2, 4, v3
    v_add_u32 v7, {CS3L}, v2
    v_add_u32 v2, s26, v7
    s_mul_i32 s26, s42, {6*64}
    s_sub_u32 s26, {6*64}, s26
    v_add_u32 v7, s26, v7
    """)
    for t in range(6):
        k(f"ds_read_b128 {vr(CS3+4*t,4)}, v2 offset:{64*t}")
        k(f"ds_read_b128 {vr(CS3b+4*t,4)}, v2 offset:{64*t+512}")
    k(f"ds_read_b128 {vr(CS3+24,4)}, v7")
    k(f"ds_read_b128 {vr(CS3b+24,4)}, v7 offset:512")
    vX4, vO4P, vO4L, vGB, vP4, vXA = 230, 231, 232, 233, 234, 235
    k(f"""
    s_and_b32 s36, s57, 1
    s_lshl_b32 s43, s58, 6
    s_lshl_b32 s26, s21, 5
    s_add_u32 s43, s43, s26
    s_lshl_b32 s26, s22, 4
    s_add_u32 s43, s43, s26
    s_mul_i32 s40, s57, 5
    s_add_u32 s41, s40, 1
    s_lshr_b32 s41, s41, 1               ; ksP
    s_add_u32 s26, s41, 2
    s_sub_u32 s27, s41, 1
    s_cmp_eq_u32 s36, 1
    s_cselect_b32 s40, s27, s26          ; ksL
    s_lshl_b32 s44, s41, 10
    s_lshl_b32 s45, s40, 10
    s_lshl_b32 s26, s36, 9
    s_add_u32 s45, s45, s26
    s_lshr_b32 s26, s58, 1
    s_lshl_b32 s26, s26, 4
    s_mul_i32 s27, s22, 7
    s_add_u32 s26, s26, s27
    s_lshl_b32 s26, s26, 2
    s_and_b32 s27, s58, 1
    s_lshl_b32 s27, s27, 1
    s_add_u32 s26, s26, s27
    s_add_u32 s26, s26, s21
    s_lshl_b32 s26, s26, 7
    s_add_u32 s48, s26, {L.F3}
    v_lshlrev_b32 v{vP4}, 9, v1
    s_lshl_b32 s26, s58, 2
    s_lshl_b32 s27, s21, 1
    s_add_u32 s26, s26, s27
    s_add_u32 s27, s26, s22
    s_mul_i32 s27, s27, 54
    s_mul_i32 s39, s22, 27
    s_add_u32 s27, s27, s39
    s_lshl_b32 s27, s27, 10
    s_add_u32 s50, s27, {L.H3}
    s_add_u32 s27, s26, 1
    s_sub_u32 s27, s27, s22
    s_mul_i32 s27, s27, 54
    s_add_u32 s27, s27, s39
    s_lshl_b32 s27, s27, 10
    s_add_u32 s51, s27, {L.H3}
    v_add_u32 v9, s43, v4
    v_lshrrev_b32 v11, 4, v9
    v_and_b32 v10, 15, v9
    v_mul_u32_u24 v11, 20480, v11
    v_lshl_add_u32 v11, v10, 4, v11
    v_lshrrev_b32 v2, 1, v3
    v_lshl_add_u32 v11, v2, 8, v11
    v_and_b32 v7, 1, v3
    v_lshl_add_u32 v{vX4}, v7, 3, v11
    v_mul_u32_u24 v9, 1280, v9
    v_lshlrev_b32 v7, 5, v7
    v_lshl_add_u32 v7, v2, 4, v7         ; (g&1)*32 + (g>>1)*16
    v_add_u32 v{vO4P}, v9, v7
    v_lshl_add_u32 v{vO4L}, v3, 3, v9
    v_lshlrev_b32 v{vGB}, 4, v3
    v_add_u32 v9, s43, v4
    v_lshrrev_b32 v10, 4, v9
    v_mul_u32_u24 v10, 20480, v10
    v_and_b32 v11, 1, v9
    v_lshl_add_u32 v10, v11, 3, v10
    v_lshl_add_u32 v10, v3, 7, v10       ; + g*128
    v_bfe_u32 v11, v9, 1, 3
    s_mul_i32 s26, s57, 20
    s_lshl_b32 s27, s36, 2
    s_add_u32 s27, s27, s26
    s_mul_i32 s3, s36, 16
    s_sub_u32 s3, 16, s3
    s_add_u32 s3, s3, s26""")
    for t in range(5):
        k(f"""
        {"s_add_u32 s4, s27, %d" % (4*t) if t < 4 else "s_mov_b32 s4, s3"}
        v_add_u32 v2, s4, v3
        v_bfe_u32 v2, v2, 1, 3
        v_xor_b32 v2, v2, v11
        v_lshl_add_u32 v2, v2, 4, v10
        s_lshl_b32 s4, s4, 7
        v_add_u32 v{vXA+t}, s4, v2
        """)
    k(f"""
    s_mul_i32 s37, s57, 320
    s_add_u32 s37, s37, {L.MODF + 5*2560}
    s_mul_i32 s26, s36, 256
    s_sub_u32 s26, 256, s26
    s_add_u32 s38, s37, s26              ; gb t=4
    s_lshl_b32 s26, s36, 6
    s_add_u32 s37, s37, s26              ; gb t<4
    s_mul_i32 s26, s57, 160
    s_lshl_b32 s27, s36, 5
    s_add_u32 s46, s26, s27
    s_mul_i32 s27, s36, 128
    s_sub_u32 s27, 128, s27
    s_add_u32 s49, s26, s27              ; leftover
    s_waitcnt lgkmcnt(0)
    """)
    for t in range(7):
        for i in (0, 2):
            k(f"v_pk_add_f32 {vr(CS3+4*t+i,2)}, {vr(CS3+4*t+i,2)}, {vr(CS3b+4*t+i,2)}")
    ACC3, WB, NWB = 32, 160, 8
    k(f"v_mov_b32 v12, v8")
    k(f"v_add_u32 v13, 0x10000, v8")
    k(f"v_add_u32 v14, 0x20000, v8")
    def wread(slot, buf, base=WB):
        o = slot * 1024
        return f"ds_read_b128 {ar(base+4*buf,4)}, v{12 + (o >> 16)} offset:{o & 0xffff}"
    groups = [(0, 4, 0), (4, 2, 80), (6, 1, 120)]
    uses = [(gi, ks, t) for gi in range(3) for ks in range(20) for t in range(groups[gi][1])]
    def slot3(u):
        gi, ks, t = u; return groups[gi][2] + ks * groups[gi][1] + t
    for i in range(NWB - 1): k(wread(slot3(uses[i]), i % NWB))
    w4b = Pend()
    for i, u in enumerate(uses):
        gi, ks, t = u
        nahead = min(NWB - 2, len(uses) - 1 - i)
        if os.environ.get("PG3") and ((gi == 0 and t == 0 and ks in (1, 10)) or (gi > 0 and ks == 0 and t == 0)): stamp()
        if gi == 0 and t == 0: vq.wait(f"x3_{ks}", f"lgkmcnt({nahead})")
        else: k(f"s_waitcnt lgkmcnt({nahead})")
        for rt in range(2):
            a = ACC3 + (rt * 7 + groups[gi][0] + t) * 4
            c = "0" if ks == 0 else vr(a, 4)
            k(f"v_mfma_f32_16x16x32_bf16 {vr(a,4)}, {ar(WB+4*(i%NWB),4)}, {ar((ks*2+rt)*4,4)}, {c}")
        if i + NWB - 1 < len(uses): k(wread(slot3(uses[i + NWB - 1]), (i + NWB - 1) % NWB))
        if gi == 0 and t in (0, 2): px.pop(1)
        if gi == 0 and ks >= 17 and t in (1, 3): w4a.pop(1)
        if gi == 1 and ks == 0 and t == 1:
            k("s_barrier")
            w4b.add(w4_issue(10, 80, 0) + w4_issue(90, 10, 150))
        if gi >= 1 and (ks > 0) and t == 0: w4b.pop(1)
    stamp()
    w4b.pop(100)
    k("s_barrier")
    w4c = Pend(w4_issue(100, 60, 80))
    vq.wait("st2")
    for rt in range(2):
        k(f"v_add_f32 v{STR+4*rt}, v{STR+4*rt}, v{STR+4*rt+2}")
        k(f"v_add_f32 v{STR+4*rt+1}, v{STR+4*rt+1}, v{STR+4*rt+3}")
    k("s_nop 0")
    emit(reduce_g_ops([STR, STR+1, STR+4, STR+5], 24))
    emit(zipl(ln_ops(STR, STR+1, STR+2, 640), ln_ops(STR+4, STR+5, STR+6, 640)))
    k(f"v_mov_b32 v{VC}, {fhex(C1)}")
    k(f"v_mov_b32 v{VC+1}, {fhex(C0)}")
    PK3, GT3 = 144, 176
    for rt in range(2):
        RS3 = STR + 4*rt
        A0 = ACC3 + rt * 28
        for t in range(7):
            for i in (0, 2): k(f"v_pk_mul_f32 {vr(GT3+4*t+i,2)}, {vr(CS3+4*t+i,2)}, {vr(RS3,2)} op_sel_hi:[1,0]")
        for t in range(7):
            z = A0 + 4*t
            for i in (0, 2): k(f"v_pk_fma_f32 {vr(z+i,2)}, {vr(z+i,2)}, {vr(RS3,2)}, {vr(GT3+4*t+i,2)} op_sel:[0,1,0] op_sel_hi:[1,1,1]")
        g_ = gelu_ops(A0, GT3, VC, 28)
        for i, x in enumerate(g_):
            k(x)
            if i % 12 == 5: w4c.pop(1)
        for t in range(7):
            k(f"v_cvt_pk_bf16_f32 v{PK3+16*rt+2*t}, v{A0+4*t}, v{A0+4*t+1}")
            k(f"v_cvt_pk_bf16_f32 v{PK3+16*rt+2*t+1}, v{A0+4*t+2}, v{A0+4*t+3}")
        pair_swaps(PK3 + 16*rt, 3)
        off = rt * 54 * 1024
        k(f"s_add_u32 s26, s13, {off}")
        k(f"s_add_u32 s27, s12, {off}")
        vq.issue(f"buffer_store_dwordx4 {vr(PK3+16*rt,4)}, v{vP3}, s[28:31], s26 offen", "st")
        vq.issue(f"buffer_store_dwordx2 {vr(PK3+16*rt+12,2)}, v{vL3}, s[28:31], s27 offen", "st")
        lab = k.newlab("j15")
        k("s_cmp_eq_u32 s52, 15")
        k(f"s_cbranch_scc1 {lab}")
        k(f"buffer_store_dwordx4 {vr(PK3+16*rt+4,4)}, v{vP3}, s[28:31], s26 offen offset:1024")
        k(f"buffer_store_dwordx4 {vr(PK3+16*rt+8,4)}, v{vP3}, s[28:31], s26 offen offset:2048")
        k.lab(lab)
    stamp()
    vq.drain()
    k(f"""
    v_mov_b32 v2, 1
    v_mov_b32 v7, 0
    s_mov_b64 exec, 1
    buffer_store_dword v2, v7, s[28:31], s15 offen
    s_mov_b64 exec, -1
    """)
    stamp()
    if STOP == "G3":
        finish(); k.lab(end); k("s_endpgm"); return kern

    w4c.pop(100)
    poll(vP4, 9, "s48")
    stamp()
    x4l = {ks: xload(0, ks, 50, "x4_", True) for ks in range(27)}
    x4 = lambda ks: x4l[ks]
    NX0 = 16
    pend = Pend()
    for ks in range(NX0): pend.add(x4(ks) if not (os.environ.get("G4NOX") and ks >= NPRE) else [("s_nop 0", f"x4_{ks}")])
    pend.pop(2 * NPRE)
    k("s_barrier")
    X1R, XAR, GB = 96, 106, 116
    rl = []
    for t in range(5):
        if t < 4:
            rl.append((f"s_add_u32 s26, s44, {L.X1 + (t//2)*1024 + (t&1)*512}\nbuffer_load_dwordx2 {vr(X1R+2*t,2)}, v{vX4}, s[28:31], s26 offen sc1", "res"))
        else:
            rl.append((f"s_add_u32 s26, s45, {L.X1}\nbuffer_load_dwordx2 {vr(X1R+2*t,2)}, v{vX4}, s[28:31], s26 offen sc1", "res"))
        rl.append((f"s_mov_b32 s26, {L.YT}\nbuffer_load_dwordx2 {vr(XAR+2*t,2)}, v{vXA+t}, s[28:31], s26 offen", "res"))
    for t in range(4):
        rl.append((f"buffer_load_dwordx4 {vr(GB+4*t,4)}, v{vGB}, s[28:31], s37 offen offset:{64*t}", "res"))
    rl.append((f"buffer_load_dwordx4 {vr(GB+16,4)}, v{vGB}, s[28:31], s38 offen", "res"))
    WB4 = 216
    k(f"""
    s_mul_i32 s26, s22, 5120
    v_add_u32 v12, s26, v8
    v_add_u32 v13, 0x10000, v12
    v_add_u32 v14, 0x20000, v12
    """)
    refill = {1: (16, 17, 18), 2: (19, 20, 21), 3: (22, 23, 24), 4: (25, 26)}
    uses = [(st, t) for st in range(27) for t in range(5)]
    NW4 = 8
    slot4 = lambda u: step_slot(u[0]) + u[1]
    for i in range(NW4 - 1): k(wread(slot4(uses[i]), i % NW4, WB4))
    done_bar = set()
    for i, u in enumerate(uses):
        st, t = u
        nahead = min(NW4 - 2, len(uses) - 1 - i)
        if t == 0:
            assert not pend.has(f"x4_{st}"), st
            vq.wait(f"x4_{st}", f"lgkmcnt({nahead})")
        else: k(f"s_waitcnt lgkmcnt({nahead})")
        for rt in range(2):
            a_ = ACC + (rt * 5 + t) * 4
            c_ = "0" if st == 0 else vr(a_, 4)
            k(f"v_mfma_f32_16x16x32_bf16 {vr(a_,4)}, {ar(WB4+4*(i%NW4),4)}, {ar((st*2+rt)*4,4)}, {c_}")
        j_ = i + NW4 - 1
        if j_ < len(uses):
            nst_ = uses[j_][0]
            c = (nst_ - 1) // 3
            if nst_ >= 4 and (nst_ - 1) % 3 == 0 and uses[j_][1] == 0 and c not in done_bar:
                done_bar.add(c)
                need = {5: "w4_1", 6: "w4_2", 7: "w4_3", 8: "w4_4"}.get(c)
                if need:
                    assert not pend.has(need), (i, need)
                    vq.wait(need, "lgkmcnt(5)")
                else:
                    k("s_waitcnt lgkmcnt(5)")
                k("s_barrier")
                if c in refill:
                    runs = {1: [(16, 1), (17, 2)], 2: [(19, 3)], 3: [(22, 3)], 4: [(25, 1), (26, 1)]}[c]
                    wl_ = []
                    for s0_, n_ in runs: wl_ += w4_issue(s0_ * 10, 10 * n_, step_slot(s0_), f"w4_{c}")
                    xl_ = []
                    for s_ in refill[c]: xl_ += x4(s_)
                    if os.environ.get("G4NOW"): wl_ = [("s_nop 0", f"w4_{c}")]
                    if os.environ.get("G4NOX"): xl_ = [("s_nop 0", tg) for _, tg in xl_]
                    pend.add(wl_ + xl_)
                if c == 5: pend.add(rl if not os.environ.get("G4NOR") else [("s_nop 0", "res")])
            k(wread(slot4(uses[j_]), j_ % NW4, WB4))
        pend.pop(1)
    pend.pop(100)
    stamp()
    k("s_barrier")
    RCV = 72
    exchange()
    vq.wait("res")
    U = 136
    for t in range(5):
        for src, dst in ((X1R, U), (XAR, U + 20)):
            k(f"v_lshlrev_b32 v{dst+4*t}, 16, v{src+2*t}")
            k(f"v_and_b32 v{dst+4*t+1}, 0xffff0000, v{src+2*t}")
            k(f"v_lshlrev_b32 v{dst+4*t+2}, 16, v{src+2*t+1}")
            k(f"v_and_b32 v{dst+4*t+3}, 0xffff0000, v{src+2*t+1}")
    for t in range(5):
        for i in (0, 2): k(f"v_pk_add_f32 {vr(ACC+4*t+i,2)}, {vr(ACC+4*t+i,2)}, {vr(U+4*t+i,2)}")
    exchange2()
    for t in range(5):
        z = ACC + 4*t
        k(f"s_waitcnt lgkmcnt({4-t})")
        for i in (0, 2): k(f"v_pk_add_f32 {vr(z+i,2)}, {vr(z+i,2)}, {vr(RCV+4*t+i,2)}")
        for i in (0, 2): k(f"v_pk_fma_f32 {vr(z+i,2)}, {vr(z+i,2)}, {vr(GB+4*t+i,2)}, {vr(U+20+4*t+i,2)}")
        k(f"v_cvt_pk_bf16_f32 v{PK+2*t}, v{z}, v{z+1}")
        k(f"v_cvt_pk_bf16_f32 v{PK+2*t+1}, v{z+2}, v{z+3}")
    pair_swaps(PK, 2)
    k(f"buffer_store_dwordx4 {vr(PK,4)}, v{vO4P}, s[32:35], s46 offen")
    k(f"buffer_store_dwordx4 {vr(PK+4,4)}, v{vO4P}, s[32:35], s46 offen offset:64")
    k(f"buffer_store_dwordx2 {vr(PK+8,2)}, v{vO4L}, s[32:35], s49 offen")
    stamp()
    finish()
    k.lab(end)
    k("s_endpgm")
    return kern
```

```python
S, D, F = 2048, 640, 1728
def _al(x, a=4096): return (x + a - 1) // a * a
_off = 0
def _alloc(n):
    global _off
    o = _off
    _off = _al(_off + n)
    return o
KVR_CH = 4352
KVR = _alloc(640 * KVR_CH + 8192)
KV4 = _alloc(160 * 2048 * 8)
Q4 = _alloc(160 * 2048 * 8)
ST1 = _alloc(2048 * 8)
YT  = _alloc(160 * 2048 * 8)
MODF = _alloc(6 * 640 * 4 + 1024)
CS3P = _alloc(2 * 1792 * 4)
CS1P = _alloc(2 * 1792 * 4)
XA = _alloc(S * D * 2)
H1S = _alloc(S * D * 2)
X1 = _alloc(S * D * 2)
H3 = _alloc(S * F * 2)
ST2 = _alloc(128 * 8 * 128)
W1C = _alloc(4 * 200 * 1024)
W2C = _alloc(4 * 200 * 1024)
W3C = _alloc(16 * 140 * 1024)
W4C = _alloc(8 * 270 * 1024)
FLG = _alloc(1536 * 128)
F1 = FLG
F2 = FLG + 256 * 128
F3 = FLG + 512 * 128
FLG_BYTES = 1536 * 128
WS_END = _off
PROFOFF = 0x4000000
```

```python
import sys, os
sys.path.insert(0, os.path.dirname(os.path.abspath(__file__)))
import layout as L

NAME = "adaLN_cond__ssm_conv_h3__mixer_s_mlp__prompt"
SZ_SD = 2048 * 640 * 2

class Kern:
    order = {}
    def __init__(self, name, grid, block, lds, vgpr=256, sgpr=102, agpr=0):
        self.name, self.grid, self.block, self.lds = name, grid, block, lds
        self.vgpr, self.sgpr, self.agpr = vgpr, (102 if (os.environ.get("PROF") or os.environ.get("PROF2")) else sgpr), agpr
        self.L = []
        self.nlab = 0
    def __call__(self, s):
        for ln in s.strip("\n").split("\n"):
            ln = ln.strip()
            if ln:
                self.L.append("    " + ln)
    def lab(self, s):
        self.L.append(s + ":")
    def newlab(self, p="L"):
        self.nlab += 1
        return f"{self.name}_{p}{self.nlab}"
    def srd(self, d, b, size, off=0):
        if off:
            self(f"s_add_u32 s{d}, s{b}, {off}")
            self(f"s_addc_u32 s{d+1}, s{b+1}, 0")
        else:
            self(f"s_mov_b32 s{d}, s{b}")
            self(f"s_mov_b32 s{d+1}, s{b+1}")
        self(f"s_mov_b32 s{d+2}, {size}")
        self(f"s_mov_b32 s{d+3}, 0x00020000")
    def round2(self, a, b, t):
        self(f"v_cvt_pk_bf16_f32 v{t}, v{a}, v{b}")
        self(f"v_lshlrev_b32 v{a}, 16, v{t}")
        self(f"v_and_b32 v{b}, 0xffff0000, v{t}")
    def unpack(self, lo, hi, src):
        self(f"v_lshlrev_b32 v{lo}, 16, v{src}")
        self(f"v_and_b32 v{hi}, 0xffff0000, v{src}")
    def stamp(self, i):
        if os.environ.get("PROF"):
            self(f"s_memtime s[{80+2*i}:{81+2*i}]")
    def stamp_end(self, n):
        if os.environ.get("PROF"):
            l = self.newlab("prof")
            self(f"""
            s_waitcnt lgkmcnt(0)
            s_cmp_lg_u32 s2, {int(os.environ.get("PROFWG", "0"))}
            s_cbranch_scc1 {l}
            s_load_dwordx2 s[76:77], s[0:1], 112
            s_waitcnt lgkmcnt(0)
            s_mov_b32 s78, 256
            s_mov_b32 s79, 0x00020000
            v_mov_b32 v1, 0
            """)
            for i in range(n):
                self(f"s_sub_u32 s75, s{80+2*i}, s80")
                self(f"v_mov_b32 v2, s75")
                self(f"buffer_store_dword v2, v1, s[76:79], 0 offen offset:{4*i}")
            self.lab(l)
    def text(self):
        sc = self.name in os.environ.get("SC1", "k0_kernel,k1_kernel,chain_kernel").split(",")
        Ls = [(l + " sc1" if (sc and l.strip().startswith("buffer_store")) else l) for l in self.L]
        if os.environ.get("PROF2"):
            idx = Kern.order.setdefault(self.name, len(Kern.order))
            pre = ["    s_memrealtime s[90:91]", "    v_lshrrev_b32 v1, 6, v0", "    s_mov_b32 s93, s2", "    v_readfirstlane_b32 s92, v1"]
            Ls = [(f"    s_branch {self.name}_pend" if l.strip() == "s_endpgm" else l) for l in Ls]
            post = f"""{self.name}_pend:
    s_mov_b64 exec, -1
    s_waitcnt vmcnt(0) lgkmcnt(0)
    s_memrealtime s[94:95]
    s_load_dwordx2 s[96:97], s[0:1], 120
    s_lshl_b32 s93, s93, 3
    s_add_u32 s93, s93, s92
    s_lshl_b32 s93, s93, 4
    s_add_u32 s93, s93, {0x4000000 + idx * 0x20000}
    s_getreg_b32 s92, hwreg(HW_REG_XCC_ID)
    s_waitcnt lgkmcnt(0)
    s_mov_b32 s98, 0x10000000
    s_mov_b32 s99, 0x00020000
    v_mov_b32 v0, s90
    v_mov_b32 v1, s94
    v_mov_b32 v2, s92
    v_mov_b32 v3, 0x1234
    v_mov_b32 v4, s93
    s_mov_b64 exec, 1
    buffer_store_dwordx4 v[0:3], v4, s[96:99], 0 offen
    s_endpgm""".split("\n")
            Ls = pre + Ls + post
        return (f".globl {self.name}\n.p2align 8\n.type {self.name},@function\n{self.name}:\n" + "\n".join(Ls) + "\n")
    def kd(self):
        acc = (self.vgpr + 3) // 4 * 4
        nfv = self.vgpr if not self.agpr else acc + self.agpr
        return f""".p2align 6
.amdhsa_kernel {self.name}
  .amdhsa_next_free_vgpr {nfv}
  .amdhsa_next_free_sgpr {self.sgpr}
  .amdhsa_accum_offset {acc}
  .amdhsa_group_segment_fixed_size 0
  .amdhsa_kernarg_size 128
  .amdhsa_user_sgpr_count 2
  .amdhsa_user_sgpr_kernarg_segment_ptr 1
  .amdhsa_system_sgpr_workgroup_id_x 1
  .amdhsa_float_denorm_mode_32 3
.end_amdhsa_kernel
"""

def vr(a, n):
    return f"v[{a}:{a+n-1}]"

MERGE = os.environ.get("MERGE", "0") == "1"
CNT_OFF = 128

def signal(k, cnt_sgpr_or_imm):
    l = k.newlab("sig")
    k(f"""
    s_mov_b64 exec, -1
    s_waitcnt vmcnt(0)
    s_barrier
    v_cmp_eq_u32 vcc, 0, v0
    s_and_saveexec_b64 s[42:43], vcc
    s_cbranch_execz {l}
    v_mov_b32 v1, 1
    v_mov_b32 v2, {cnt_sgpr_or_imm}
    buffer_atomic_add v1, v2, s[48:51], 0 offen
    """)
    k.lab(l)
    k("s_endpgm")

def poll(k, voff, target, vtmp):
    l = k.newlab("poll"); d = k.newlab("polld")
    k("s_mov_b32 s52, 0")
    k("s_cmp_lg_u32 s20, 0")
    k(f"s_cbranch_scc1 {d}")
    k.lab(l)
    k(f"""
    buffer_load_dword v{vtmp}, v{voff}, s[48:51], 0 offen sc0 sc1
    s_waitcnt vmcnt(0)
    v_readfirstlane_b32 s53, v{vtmp}
    s_add_u32 s52, s52, 1
    s_cmp_ge_u32 s53, {target}
    s_cbranch_scc1 {d}
    s_cmp_ge_u32 s52, 0x100000
    s_cbranch_scc1 {d}
    s_sleep {int(os.environ.get("SLP", 8))}
    s_branch {l}
    """)
    k.lab(d)
    k("s_barrier")

def gen_mod(k, wg0, blk0, end):
    k(f"""
    s_load_dwordx4 s[12:15], s[0:1], 88
    s_load_dwordx2 s[10:11], s[0:1], 120
    s_sub_u32 s32, s2, {wg0 - blk0}
    v_and_b32 v3, 7, v0              ; cc
    v_lshrrev_b32 v4, 3, v0          ; rsub
    v_lshlrev_b32 v5, 1, v4          ; c offset
    v_mul_u32_u24 v6, 7680, v4
    s_lshl_b32 s36, s32, 7
    v_lshl_add_u32 v7, v3, 4, s36
    v_add_u32 v6, v6, v7
    s_waitcnt lgkmcnt(0)
    """)
    k.srd(16, 12, 1280); k.srd(20, 14, 640 * 7680); k.srd(28, 10, 0x10000000)
    C, W, A, T = 10, 32, 112, 120
    for it in range(20):
        k(f"buffer_load_ushort v{C+it}, v5, s[16:19], 0 offen offset:{64*it}")
    for it in range(20):
        k(f"s_mov_b32 s37, {it*32*7680}")
        k(f"buffer_load_dwordx4 {vr(W+4*it,4)}, v6, s[20:23], s37 offen")
    k("s_waitcnt vmcnt(20)")
    for it in range(20):
        k(f"v_lshlrev_b32 v{C+it}, 16, v{C+it}")
        k(f"v_mul_f32 v{T+it}, 0xbfb8aa3b, v{C+it}")
        k(f"v_exp_f32 v{T+it}, v{T+it}")
    for it in range(20):
        k(f"v_add_f32 v{T+it}, 1.0, v{T+it}")
        k(f"v_rcp_f32 v{T+it}, v{T+it}")
    k("s_nop 0")
    for it in range(20):
        k(f"v_mul_f32 v{C+it}, v{C+it}, v{T+it}")
    for it in range(0, 20, 2):
        k.round2(C + it, C + it + 1, T)
    for j in range(8):
        k(f"v_mov_b32 v{A+j}, 0")
    for it in range(20):
        k(f"s_waitcnt vmcnt({19-it})")
        for d in range(4):
            k.unpack(T, T + 1, W + 4*it + d)
            k(f"v_fmac_f32 v{A+2*d}, v{C+it}, v{T}")
            k(f"v_fmac_f32 v{A+2*d+1}, v{C+it}, v{T+1}")
    k(f"""
    v_lshlrev_b32 v7, 5, v0
    ds_write_b128 v7, {vr(A,4)}
    ds_write_b128 v7, {vr(A+4,4)} offset:16
    s_waitcnt lgkmcnt(0)
    s_barrier
    v_cmp_gt_u32 vcc, 64, v0
    s_and_saveexec_b64 s[42:43], vcc
    s_cbranch_execz {end}
    v_lshlrev_b32 v7, 2, v0
    """)
    for r in range(32):
        k(f"ds_read_b32 v{W+r}, v7 offset:{256*r}")
    k("s_waitcnt lgkmcnt(0)")
    for st in (16, 8, 4, 2, 1):
        for r in range(st):
            k(f"v_add_f32 v{W+r}, v{W+r}, v{W+r+st}")
    a_ = W
    k(f"""
    s_movk_i32 s22, 640
    v_cvt_pk_bf16_f32 v{a_}, v{a_}, v{a_}
    v_lshlrev_b32 v{a_}, 16, v{a_}
    v_add_f32 v{a_+1}, 1.0, v{a_}
    v_cvt_pk_bf16_f32 v{a_+1}, v{a_+1}, v{a_+1}
    v_lshlrev_b32 v{a_+1}, 16, v{a_+1}
    s_lshl_b32 s33, s32, 6
    v_add_u32 v{a_+2}, s33, v0
    v_subrev_u32 v{a_+3}, 640, v{a_+2}
    v_cmp_gt_u32 vcc, 640, v{a_+3}
    v_subrev_u32 v{a_+3}, 2560, v{a_+2}
    v_cmp_gt_u32 s[40:41], s22, v{a_+3}
    s_or_b64 vcc, vcc, s[40:41]
    v_cndmask_b32 v{a_}, v{a_}, v{a_+1}, vcc
    s_lshl_b32 s21, s32, 8
    s_add_u32 s21, s21, {L.MODF}
    buffer_store_dword v{a_}, v7, s[28:31], s21 offen
    """)
    k("s_endpgm")

def gen_k0(k=None):
    if k is None:
        k = Kern("k0_kernel", 456, 256, 24576, vgpr=144, sgpr=64)
    end = "k0_end"; modl = "k0_mod"
    k(f"""
    s_cmp_ge_u32 s2, 456
    s_cbranch_scc1 {end}
    s_cmp_ge_u32 s2, 416
    s_cbranch_scc1 k0_pf
    s_cmp_ge_u32 s2, 352
    s_cbranch_scc1 k0_st
    s_cmp_ge_u32 s2, 320
    s_cbranch_scc1 k0_mod
    s_load_dwordx2 s[12:13], s[0:1], 0
    s_load_dwordx4 s[4:7], s[0:1], 8
    s_load_dwordx2 s[8:9], s[0:1], 24
    s_load_dwordx2 s[10:11], s[0:1], 120
    s_waitcnt lgkmcnt(0)
    """)
    k.srd(28, 10, 0x10000000)
    k.srd(16, 4, SZ_SD); k.srd(20, 6, SZ_SD); k.srd(24, 8, 640 * 8); k.srd(44, 12, SZ_SD)
    k(f"""
    s_mul_i32 s32, s2, 52429
    s_lshr_b32 s32, s32, 19
    s_mul_i32 s33, s32, 10
    s_sub_u32 s33, s2, s33           ; cb
    v_and_b32 v1, 15, v0             ; cgl
    v_lshrrev_b32 v2, 4, v0          ; rg
    s_lshl_b32 s34, s32, 6
    v_lshl_add_u32 v3, v2, 2, s34    ; s0
    v_mul_u32_u24 v4, 1280, v3
    s_lshl_b32 s35, s33, 7
    v_lshl_add_u32 v5, v1, 3, s35
    v_add_u32 v4, v4, v5             ; voff
    v_subrev_u32 v6, 3840, v4
    v_subrev_u32 v7, 2560, v4
    v_subrev_u32 v8, 1280, v4
    """)
    KR, VR_, SKR, SKF, KF, KVF, T = 10, 24, 32, 40, 56, 84, 100
    k(f"buffer_load_dwordx2 {vr(KR,2)}, v6, s[16:19], 0 offen")
    k(f"buffer_load_dwordx2 {vr(KR+2,2)}, v7, s[16:19], 0 offen")
    k(f"buffer_load_dwordx2 {vr(KR+4,2)}, v8, s[16:19], 0 offen")
    for i in range(4):
        k(f"buffer_load_dwordx2 {vr(KR+6+2*i,2)}, v4, s[16:19], 0 offen offset:{i*1280}")
    k(f"v_lshlrev_b32 v{T}, 2, v5")
    k(f"buffer_load_dwordx4 {vr(SKR,4)}, v{T}, s[24:27], 0 offen")
    k(f"buffer_load_dwordx4 {vr(SKR+4,4)}, v{T}, s[24:27], 0 offen offset:16")
    for i in range(4):
        k(f"buffer_load_dwordx2 {vr(VR_+2*i,2)}, v4, s[20:23], 0 offen offset:{i*1280}")
    QR = 112
    for i in range(4):
        k(f"buffer_load_dwordx2 {vr(QR+2*i,2)}, v4, s[44:47], 0 offen offset:{i*1280}")
    k(f"""
    v_lshlrev_b32 v{T}, 9, v1
    v_sub_u32 v{T+1}, 15, v2
    v_lshl_add_u32 v{T}, v{T+1}, 3, v{T}
    v_lshrrev_b32 v{T+1}, 2, v2
    v_lshlrev_b32 v{T+1}, 11, v{T+1}
    v_lshl_add_u32 v{T+1}, v1, 7, v{T+1}
    v_add_u32 v{T+1}, 8192, v{T+1}
    v_bfe_u32 v{T+2}, v1, 1, 3
    v_and_b32 v{T+3}, 3, v2
    v_lshlrev_b32 v{T+3}, 1, v{T+3}
    v_xor_b32 v{T+2}, v{T+2}, v{T+3}
    v_xor_b32 v{T+3}, 1, v{T+2}
    v_lshl_add_u32 v{T+2}, v{T+2}, 4, v{T+1}
    v_lshl_add_u32 v{T+3}, v{T+3}, 4, v{T+1}
    s_waitcnt vmcnt(8)
    """)
    for c in range(4):
        k.unpack(SKF + c, SKF + 4 + c, SKR + 2*c)
        k.unpack(SKF + 8 + c, SKF + 12 + c, SKR + 2*c + 1)
    for r in range(7):
        k.unpack(KF + 4*r, KF + 4*r + 1, KR + 2*r)
        k.unpack(KF + 4*r + 2, KF + 4*r + 3, KR + 2*r + 1)
    for s_ in range(4):
        for p in range(2):
            A = KVF + 4*s_ + 2*p
            k(f"v_pk_mul_f32 {vr(A,2)}, {vr(KF+4*s_+2*p,2)}, {vr(SKF+12+2*p,2)}")
            for j in (2, 1, 0):
                k(f"v_pk_fma_f32 {vr(A,2)}, {vr(KF+4*(s_+3-j)+2*p,2)}, {vr(SKF+4*j+2*p,2)}, {vr(A,2)}")
            k.round2(A, A + 1, T + 4)
    k("s_waitcnt vmcnt(4)")
    for s_ in range(4):
        for p in range(2):
            k.unpack(T + 4, T + 5, VR_ + 2*s_ + p)
            k(f"v_pk_mul_f32 {vr(KVF+4*s_+2*p,2)}, {vr(KVF+4*s_+2*p,2)}, {vr(T+4,2)}")
    O = KF; O2 = KF + 8
    for s_ in range(4):
        k(f"v_cvt_pk_bf16_f32 v{O+2*s_}, v{KVF+4*s_}, v{KVF+4*s_+1}")
        k(f"v_cvt_pk_bf16_f32 v{O+2*s_+1}, v{KVF+4*s_+2}, v{KVF+4*s_+3}")
    for c in range(4):
        for d in range(2):
            k(f"v_cvt_pk_bf16_f32 v{O2+2*c+d}, v{KVF+4*(3-2*d)+c}, v{KVF+4*(2-2*d)+c}")
    for c in range(4):
        k(f"ds_write_b64 v{T}, {vr(O2+2*c,2)} offset:{128*c}")
    k(f"ds_write_b128 v{T+2}, {vr(O,4)}")
    k(f"ds_write_b128 v{T+3}, {vr(O+4,4)}")
    k("s_waitcnt vmcnt(0)")
    k(f"ds_write_b128 v{T+2}, {vr(QR,4)} offset:8192")
    k(f"ds_write_b128 v{T+3}, {vr(QR+4,4)} offset:8192")
    k(f"""
    v_lshlrev_b32 v{T}, 4, v0
    v_lshrrev_b32 v{T+1}, 3, v0
    v_mul_u32_u24 v{T+1}, {L.KVR_CH}, v{T+1}
    v_and_b32 v{T+2}, 7, v0
    v_lshl_add_u32 v{T+3}, v{T+2}, 4, v{T+1}
    v_lshrrev_b32 v{T+4}, 7, v0
    v_mul_u32_u24 v{T+4}, 20480, v{T+4}
    v_and_b32 v{T+5}, 127, v0
    v_lshl_add_u32 v{T+4}, v{T+5}, 4, v{T+4}
    s_mul_i32 s36, s33, {64*L.KVR_CH}
    s_lshr_b32 s37, s32, 1
    s_mul_i32 s37, s37, 272
    s_add_u32 s36, s36, s37
    s_add_u32 s36, s36, {L.KVR}
    s_and_b32 s37, s32, 1
    s_lshl_b32 s38, s37, 7
    s_sub_u32 s38, 128, s38
    s_add_u32 s38, s38, s36
    s_mul_i32 s39, s32, {4*20480}
    s_lshl_b32 s40, s33, 11
    s_add_u32 s39, s39, s40
    s_add_u32 s39, s39, {L.KV4}
    s_waitcnt lgkmcnt(0)
    s_barrier
    """)
    for i in range(4):
        k(f"ds_read_b128 {vr(KR+4*i,4)}, v{T} offset:{4096*i}")
    for i in range(2):
        k(f"ds_read_b128 {vr(QR+4*i,4)}, v{T} offset:{4096*(4+i)}")
    k(f"s_add_u32 s41, s39, {L.Q4 - L.KV4}")
    for i in range(2):
        k(f"s_waitcnt lgkmcnt({5-i})")
        k(f"buffer_store_dwordx4 {vr(KR+4*i,4)}, v{T+3}, s[28:31], s38 offen")
        k(f"s_add_u32 s38, s38, {32*L.KVR_CH}")
    for i in range(2):
        k(f"s_waitcnt lgkmcnt({3-i})")
        k(f"buffer_store_dwordx4 {vr(KR+8+4*i,4)}, v{T+4}, s[28:31], s39 offen")
        k(f"s_add_u32 s39, s39, 40960")
    for i in range(2):
        k(f"s_waitcnt lgkmcnt({1-i})")
        k(f"buffer_store_dwordx4 {vr(QR+4*i,4)}, v{T+4}, s[28:31], s41 offen")
        k(f"s_add_u32 s41, s41, 40960")
    hl = k.newlab(); zl = k.newlab()
    k(f"""
    v_cmp_eq_u32 vcc, 0, v{T+2}
    s_and_saveexec_b64 s[42:43], vcc
    s_cmp_eq_u32 s37, 0
    s_cbranch_scc1 {hl}
    s_cmp_eq_u32 s32, 31
    s_cbranch_scc1 {zl}
    """)
    for i in range(2):
        k(f"buffer_store_dwordx4 {vr(KR+4*i,4)}, v{T+1}, s[28:31], s36 offen offset:{272+256}")
        k(f"s_add_u32 s36, s36, {32*L.KVR_CH}")
    k(f"s_branch {zl}")
    k.lab(hl)
    k(f"""
    s_cmp_lg_u32 s32, 0
    s_cbranch_scc1 {zl}
    v_mov_b32 v{T+8}, 0
    v_mov_b32 v{T+9}, 0
    v_mov_b32 v{T+10}, 0
    v_mov_b32 v{T+11}, 0
    """)
    for i in range(2):
        k(f"buffer_store_dwordx4 {vr(T+8,4)}, v{T+1}, s[28:31], s36 offen offset:256")
        k(f"s_add_u32 s36, s36, {32*L.KVR_CH}")
    k.lab(zl)
    if MERGE:
        k(f"s_lshl_b32 s44, s33, 2")
        k(f"s_add_u32 s44, s44, {CNT_OFF}")
        signal(k, "s44")
    else:
        k("s_endpgm")
    k.lab(end)
    k("s_endpgm")
    k.lab("k0_mod")
    k("s_cmp_ge_u32 s2, 350")
    k(f"s_cbranch_scc1 {end}")
    gen_mod(k, 320, 0, end)
    k.lab("k0_st")
    import gen3
    k(f"""
    s_load_dwordx2 s[4:5], s[0:1], 0
    s_load_dwordx2 s[10:11], s[0:1], 120
    v_and_b32 v1, 63, v0
    v_lshrrev_b32 v2, 6, v0              ; wave
    v_lshrrev_b32 v5, 3, v1              ; r
    v_and_b32 v6, 7, v1                  ; c
    s_sub_u32 s21, s2, 352
    s_lshl_b32 s21, s21, 5
    v_lshl_add_u32 v7, v2, 3, v5
    v_add_u32 v7, s21, v7                ; row
    v_mul_u32_u24 v9, 1280, v7
    v_lshl_add_u32 v9, v6, 4, v9
    v_mov_b32 v20, 0x3f803f80
    s_waitcnt lgkmcnt(0)
    """)
    k.srd(16, 4, SZ_SD); k.srd(28, 10, 0x10000000)
    for t in range(10):
        k(f"buffer_load_dwordx4 {vr(32+4*t,4)}, v9, s[16:19], 0 offen offset:{128*t}")
    for i in range(8): k(f"v_mov_b32 v{12+i}, 0")
    for t in range(10):
        k(f"s_waitcnt vmcnt({9-t})")
        for d in range(4):
            k(f"v_dot2_f32_bf16 v{12+2*(d&1)}, v{32+4*t+d}, v20, v{12+2*(d&1)}")
            k(f"v_dot2_f32_bf16 v{13+2*(d&1)}, v{32+4*t+d}, v{32+4*t+d}, v{13+2*(d&1)}")
    k("s_nop 2")
    k("v_add_f32 v12, v12, v14")
    k("v_add_f32 v13, v13, v15")
    for ctl in ("quad_perm:[1,0,3,2]", "quad_perm:[2,3,0,1]", "row_half_mirror"):
        k("s_nop 1")
        k(f"v_add_f32_dpp v12, v12, v12 {ctl} row_mask:0xf bank_mask:0xf")
        k(f"v_add_f32_dpp v13, v13, v13 {ctl} row_mask:0xf bank_mask:0xf")
    for x in gen3.ln_ops(12, 13, 16, 640):
        k(x); k("s_nop 0")
    k(f"""
    v_lshlrev_b32 v7, 3, v7
    v_cmp_eq_u32 vcc, 0, v6
    s_and_saveexec_b64 s[42:43], vcc
    s_mov_b32 s21, {L.ST1}
    buffer_store_dwordx2 v[12:13], v7, s[28:31], s21 offen
    s_endpgm
    """)
    k.lab("k0_pf")
    k(f"""
    s_load_dwordx2 s[4:5], s[0:1], 32
    v_lshrrev_b32 v2, 6, v0
    v_and_b32 v1, 63, v0
    v_readfirstlane_b32 s20, v2
    v_lshlrev_b32 v1, 4, v1
    s_sub_u32 s21, s2, 416
    s_lshr_b32 s21, s21, 3
    s_lshl_b32 s21, s21, 2
    s_add_u32 s21, s21, s20          ; 0..19
    s_mul_i32 s23, s21, 3072
    s_lshl_b32 s21, s21, 3
    s_and_b32 s22, s2, 7
    s_add_u32 s21, s21, s22          ; cg
    s_lshl_b32 s21, s21, 14
    s_waitcnt lgkmcnt(0)
    """)
    k.srd(16, 4, 640 * 4096)
    if not os.environ.get("NOCPF"):
        k("s_getpc_b64 s[24:25]")
        k.lab("k0_pcref")
        KSTART = k.name
        k(f"""
        s_sub_u32 s24, s24, k0_pcref-{KSTART}
        s_subb_u32 s25, s25, 0
        """)
        for i in range(3):
            k(f"""
            s_add_u32 s26, s23, {1024*i}
            s_min_u32 s26, s26, (chain_end-{KSTART}-1020)&0xfffffff0
            v_add_u32 v2, s26, v1
            v_mov_b32 v5, s25
            v_add_co_u32 v4, vcc, s24, v2
            v_addc_co_u32 v5, vcc, 0, v5, vcc
            global_load_dwordx4 {vr(72+4*i,4)}, v[4:5], off
            """)
    for i in range(0 if MERGE else 16):
        k(f"buffer_load_dwordx4 {vr(8+4*i,4)}, v1, s[16:19], s21 offen offset:{(i%4)*1024}")
        if i % 4 == 3:
            k("s_add_u32 s21, s21, 4096")
    k("s_waitcnt vmcnt(0)")
    k("s_endpgm")
    return k

WREG = 9472
def gen_k1(k=None):
    NPACK = 154
    NMOD = 30
    if k is None:
        k = Kern("k1_kernel", 160 + NMOD + NPACK + 64, 256, 46080 + 32768 - 8192, vgpr=256, sgpr=72)
    end = "k1_end"; packl = "k1_pack"; modl = "k1_modf"
    k(f"""
    s_cmp_ge_u32 s2, {160+NMOD+NPACK+64}
    s_cbranch_scc1 {end}
    s_cmp_ge_u32 s2, {160+NMOD+NPACK}
    s_cbranch_scc1 k1_pf
    s_load_dwordx4 s[4:7], s[0:1], 32
    s_load_dwordx2 s[10:11], s[0:1], 120   ; ws
    s_load_dwordx8 s[12:19], s[0:1], 56    ; w1 w2 w3 w4
    s_load_dwordx2 s[46:47], s[0:1], 112
    v_lshrrev_b32 v2, 6, v0
    v_and_b32 v1, 63, v0                   ; lane
    v_readfirstlane_b32 s20, v2
    s_waitcnt lgkmcnt(0)
    """)
    k.srd(28, 10, 0x10000000)
    k.srd(48, 46, 256)
    k(f"""
    s_cmp_ge_u32 s2, {160+NMOD}
    s_cbranch_scc1 {packl}
    s_cmp_ge_u32 s2, 160
    s_cbranch_scc1 {modl}
    """)
    if os.environ.get("PRIO", "1") == "1": k("s_setprio 3")
    k.stamp(0)
    k.srd(24, 4, 640 * 4096)
    k(f"""
    s_lshl_b32 s21, s2, 3
    s_add_u32 s22, s6, s21
    s_addc_u32 s23, s7, 0
    s_load_dwordx2 s[32:33], s[22:23], 0
    s_lshl_b32 s22, s2, 4
    s_add_u32 s22, s22, {L.MODF}
    s_add_u32 s22, s10, s22
    s_addc_u32 s23, s11, 0
    s_load_dwordx4 s[56:59], s[22:23], 0       ; sa
    s_load_dwordx4 s[60:63], s[22:23], 2560    ; c1
    s_load_dwordx4 s[64:67], s[22:23], 5120    ; ga
    s_lshl_b32 s21, s2, 2
    s_add_u32 s21, s21, s20                 ; ch
    s_mul_i32 s34, s20, {WREG}
    v_lshlrev_b32 v3, 4, v1                 ; lane*16
    s_lshl_b32 s35, s21, 12                 ; ch*4096
    s_add_u32 s36, s34, 256
    s_mov_b32 m0, s36
    s_mul_i32 s37, s21, {L.KVR_CH}
    s_add_u32 s37, s37, {L.KVR}
    """)
    for i in range(4):
        k(f"buffer_load_dwordx4 v3, s[24:27], s35 offen offset:{1024*i} lds")
    KV = 240
    QL = 4 * WREG
    k(f"""
    v_lshrrev_b32 v4, 3, v0
    v_mul_u32_u24 v4, 20480, v4
    s_lshr_b32 s38, s2, 1
    s_and_b32 s38, s38, 7
    v_and_b32 v5, 7, v0
    v_xor_b32 v5, s38, v5
    v_lshl_add_u32 v4, v5, 4, v4            ; (t>>3)*20480 + ((t&7)^sw)*16
    s_lshl_b32 s38, s2, 7                   ; cg*128
    s_add_u32 s39, s38, {L.KV4}
    """)
    def uloads():
        if MERGE:
            k(f"""
            s_lshr_b32 s36, s2, 4
            s_lshl_b32 s36, s36, 2
            s_add_u32 s36, s36, {CNT_OFF}
            v_mov_b32 v16, s36
            """)
            poll(k, 16, 32, 17)
            for i in range(4):
                k(f"buffer_load_dwordx4 {vr(32+4*i,4)}, v3, s[28:31], s37 offen offset:{1024*i} sc1")
            k("s_add_u32 s37, s37, 4096")
            k(f"buffer_load_dwordx4 {vr(48,4)}, v3, s[28:31], s37 offen sc1")
        else:
            k(f"""
            s_add_u32 s36, s34, 4352
            s_mov_b32 m0, s36
            s_nop 0
            """)
            for i in range(4):
                k(f"buffer_load_dwordx4 v3, s[28:31], s37 offen offset:{1024*i} lds")
            k(f"""
            s_add_u32 s36, s34, {4352+4096}
            s_mov_b32 m0, s36
            s_add_u32 s37, s37, 4096
            buffer_load_dwordx4 v3, s[28:31], s37 offen lds
            """)
        k(f"""
        s_lshl_b32 s36, s20, 10
        s_add_u32 s53, s36, {QL}
        s_add_u32 s54, s36, {L.ST1}
        v_lshlrev_b32 v6, 4, v1
        """)
        for e in range(4):
            k(f"buffer_load_dwordx4 {vr(KV+4*e,4)}, v4, s[28:31], s39 offen")
            k(f"s_add_u32 s55, s39, {L.Q4 - L.KV4}")
            k(f"s_add_u32 m0, s53, {4096*e}")
            k(f"s_add_u32 s39, s39, {32*20480}")
            k(f"buffer_load_dwordx4 v4, s[28:31], s55 offen lds")
            k(f"s_add_u32 m0, s53, {16384 + 4096*e}")
            k(f"s_add_u32 s55, s54, {4096*e}")
            k(f"buffer_load_dwordx4 v6, s[28:31], s55 offen lds")
    if not MERGE:
        uloads()
    k(f"""
    v_lshl_add_u32 v5, v1, 2, s34
    v_mov_b32 v6, 0
    ds_write_b32 v5, v6
    v_and_b32 v7, 15, v1                    ; n16
    v_bfe_u32 v8, v1, 4, 1                  ; ph
    v_lshrrev_b32 v9, 5, v1                 ; g
    v_mul_u32_u24 v10, 272, v7
    v_lshl_add_u32 v10, v9, 4, v10
    v_add_u32 v10, s34, v10
    v_add_u32 v10, {4352+4}, v10
    v_lshlrev_b32 v11, 2, v8
    v_sub_u32 v10, v10, v11
    v_and_b32 v12, 7, v1
    v_mul_u32_u24 v13, 272, v12
    v_lshl_add_u32 v13, v9, 4, v13
    v_add_u32 v13, s34, v13
    v_add_u32 v13, {4352+4}, v13
    v_sub_u32 v13, v13, v11                 ; vBP
    v_bfe_u32 v11, v1, 3, 1                 ; a'
    v_lshlrev_b32 v11, 4, v11
    v_sub_u32 v11, 16, v11
    v_and_b32 v14, 31, v1
    v_lshlrev_b32 v14, 3, v14
    v_lshl_add_u32 v14, v9, 4, v14
    v_add_u32 v14, s34, v14
    v_add_u32 v14, 8, v14                   ; vA
    v_cmp_ne_u32 vcc, 0, v12
    v_mov_b32 v16, 0
    s_nop 1
    v_cndmask_b32 v15, v16, -1, vcc
    """)
    if MERGE:
        uloads()
        k(f"""
        s_add_u32 s36, s34, 4352
        v_add_u32 v16, s36, v3
        """)
        for i in range(5):
            k(f"s_waitcnt vmcnt({8-i})")
            k(f"ds_write_b128 v16, {vr(32+4*i,4)} offset:{1024*i}")
    k("s_waitcnt vmcnt(12) lgkmcnt(0)")
    B0, B1, BP, AX, AY, AP_, AM, APk = 32, 64, 96, 128, 144, 160, 176, 208
    k.stamp(1)
    def aread(reg, off):
        return f"ds_read_b64 {vr(reg,2)}, v14 offset:{off}\n    ds_read_b64 {vr(reg+2,2)}, v14 offset:{off+8}"
    for ks in range(8):
        k(aread(AM+4*ks, 256*7+32*ks))
    TB = 16
    for ks in range(8):
        k(f"ds_read2_b32 {vr(B1+4*ks,2)}, v10 offset0:{8*ks} offset1:{8*ks+1}")
        k(f"ds_read2_b32 {vr(B1+4*ks+2,2)}, v10 offset0:{8*ks+2} offset1:{8*ks+3}")
    prd = []
    for ks in range(8):
        prd.append(f"ds_read_b32 v{TB+ks}, v10 offset:{32*ks+16}")
    for ks in range(8):
        prd.append(f"ds_read2_b32 {vr(BP+4*ks,2)}, v13 offset0:{8*ks} offset1:{8*ks+1}")
        prd.append(f"ds_read2_b32 {vr(BP+4*ks+2,2)}, v13 offset0:{8*ks+2} offset1:{8*ks+3}")
        prd.append(f"ds_read_b32 v{TB+8+ks}, v13 offset:{32*ks+16}")
    al0 = []; alp = []
    for ks in range(8):
        for d in range(4):
            hi = B1 + 4*ks + d + 1 if d < 3 else TB + ks
            al0.append(f"v_alignbit_b32 v{B0+4*ks+d}, v{hi}, v{B1+4*ks+d}, 16")
            hi = BP + 4*ks + d + 1 if d < 3 else TB + 8 + ks
            alp.append(f"v_alignbit_b32 v{BP+4*ks+d}, v{hi}, v{BP+4*ks+d}, v11")
    k.stamp(2)
    DPP = "row_mask:0xf bank_mask:0xf bound_ctrl:0"
    def mfma(acc, a, b, first):
        c = "0" if first else vr(acc, 16)
        k(f"v_mfma_f32_32x32x16_bf16 {vr(acc,16)}, {vr(a,4)}, {vr(b,4)}, {c}")
    def phase(acc, Areg, Breg, first, reads, late, pad=True, rg=8):
        reads = list(reads); late = list(late)
        for ks in range(8):
            mfma(acc, Areg + 4*ks, Breg + 4*ks, first and ks == 0)
            n = (len(reads) + (rg - 1 - ks)) // (rg - ks) if ks < rg else 0
            for s in reads[:n]:
                k(s)
            reads = reads[n:]
            if ks < 2:
                if pad and late and n < 5:
                    k(f"s_nop {4 - n}")
            else:
                n = (len(late) + (7 - ks)) // (8 - ks)
                for s in late[:n]:
                    k(s)
                late = late[n:]
        assert not late and not reads
    def shift_ops(acc, masked):
        if masked:
            return [f"v_and_b32_dpp v{acc+r}, v{acc+r}, v15 row_shr:1 {DPP}" for r in range(16)]
        return [f"v_mov_b32_dpp v{acc+r}, v{acc+r} row_shr:1 {DPP}" for r in range(16)]
    def areads(reg, off):
        o = []
        for ks in range(8):
            o += aread(reg + 4*ks, off + 32*ks).split("\n")
        return o
    for q in range(7, -1, -1):
        first = (q == 7)
        k("s_waitcnt lgkmcnt(0)")
        apl = areads(APk, 256*(q+8))
        if first:
            for ks in range(8):
                mfma(AY, AM + 4*ks, B1 + 4*ks, ks == 0)
                if ks == 0:
                    for x in prd[:16]: k(x)
                elif ks == 1:
                    for x in prd[16:]: k(x)
                elif ks == 2:
                    k("s_waitcnt lgkmcnt(15)")
                    k("s_waitcnt lgkmcnt(0)")
                    for x in al0[:4]: k(x)
                else:
                    for x in al0[4 + (ks-3)*6: 4 + (ks-2)*6]: k(x)
            k("s_nop 0")
            phase(AX, AM, B0, True, apl, alp[:16] + shift_ops(AY, False) + alp[16:] + ["s_nop 0"])
        else:
            phase(AY, AM, B1, False, apl, shift_ops(AP_, True))
            phase(AX, AM, B0, False, [], shift_ops(AY, False) if q > 0 else [])
        k("s_waitcnt lgkmcnt(0)")
        aml = areads(AM, 256*(q-1)) if q > 0 else []
        phase(AP_, APk, BP, first, aml, shift_ops(AX, False) if q > 0 else [], rg=5)
    k.stamp(3)
    k("s_nop 11")
    for r in range(16):
        k(f"v_add_f32_dpp v{AX+r}, v{AP_+r}, v{AX+r} row_shr:8 {DPP}")
    k("""
    s_mov_b32 s42, 0xff00ff00
    s_mov_b32 s43, 0xff00ff00
    s_mov_b64 exec, s[42:43]
    """)
    for r in range(16):
        k(f"v_add_f32 v{AY+r}, v{AP_+r}, v{AY+r}")
    k("s_mov_b64 exec, -1")
    k(f"""
    v_mul_u32_u24 v16, 264, v7
    v_lshl_add_u32 v16, v9, 5, v16
    v_lshl_add_u32 v16, v8, 2, v16
    v_add_u32 v16, s34, v16
    """)
    for r in range(16):
        k(f"v_cvt_pk_bf16_f32 v{32+r}, v{AX+r}, v{AY+r}")
    for r in range(16):
        k(f"ds_write_b32 v16, v{32+r} offset:{64*(r>>2)+8*(r&3)}")
    k(f"""
    s_lshl_b32 s44, s32, 16
    s_and_b32 s45, s32, 0xffff0000
    s_lshl_b32 s46, s33, 16
    s_and_b32 s47, s33, 0xffff0000
    v_mul_u32_u24 v17, 264, v2
    v_lshl_add_u32 v17, v1, 2, v17
    s_waitcnt lgkmcnt(0)
    s_barrier
    """)
    Y = 48
    for e in range(4):
        for c in range(4):
            k(f"ds_read_b32 v{Y+4*e+c}, v17 offset:{c*WREG+1056*e}")
    k("s_waitcnt vmcnt(0) lgkmcnt(0)")
    T = 64; O = 96
    QF, SR, PP = 112, 144, 160
    k(f"""
    v_mov_b32 v28, s44
    v_mov_b32 v29, s45
    v_mov_b32 v30, s46
    v_mov_b32 v31, s47
    v_lshlrev_b32 v18, 4, v0
    v_add_u32 v18, {QL}, v18
    """)
    for e in range(4):
        k(f"ds_read_b128 {vr(QF+32+4*e,4)}, v18 offset:{4096*e}") if False else None
    for e in range(4):
        k(f"ds_read_b128 {vr(176+4*e,4)}, v18 offset:{4096*e}")
        k(f"ds_read_b128 {vr(SR+4*e,4)}, v18 offset:{16384+4096*e}")
    for c in range(4):
        k(f"v_mov_b32 v{PP+c}, s{64+c}")
        k(f"v_mov_b32 v{PP+4+c}, s{64+c}")
    for c in range(4):
        k(f"v_mul_f32 v{PP+c}, s{60+c}, v{PP+c}")
        k(f"v_mul_f32 v{PP+4+c}, s{56+c}, v{PP+4+c}")
    k("s_waitcnt lgkmcnt(0)")
    BCX = "op_sel:[0,1,0] op_sel_hi:[1,1,0]"
    for e in range(4):
        for sg in range(2):
            for hh in range(2):
                a = T + 4*sg + 2*hh
                k.unpack(a, a + 1, KV + 4*e + 2*sg + hh)
                k(f"v_pk_mul_f32 {vr(a,2)}, {vr(a,2)}, {vr(28+2*hh,2)}")
                k.round2(a, a + 1, T + 8)
        for c in range(4):
            k.unpack(T + 10 + c, T + 14 + c, Y + 4*e + c)
        for d in range(4):
            k.unpack(QF + 2*d, QF + 2*d + 1, 176 + 4*e + d)
        for d in range(4):
            k(f"v_pk_add_f32 {vr(T+2*d,2)}, {vr(T+2*d,2)}, {vr(T+10+2*d,2)}")
        for d in range(4):
            S_ = SR + 4*e + 2*(d // 2)
            k(f"v_pk_fma_f32 {vr(QF+8+2*d,2)}, {vr(QF+2*d,2)}, {vr(S_,2)}, {vr(S_,2)} {BCX}")
        for d in range(4):
            k(f"v_pk_fma_f32 {vr(QF+8+2*d,2)}, {vr(QF+8+2*d,2)}, {vr(PP+2*(d%2),2)}, {vr(PP+4+2*(d%2),2)}")
        for d in range(4):
            k(f"v_pk_fma_f32 {vr(T+2*d,2)}, {vr(T+2*d,2)}, {vr(QF+8+2*d,2)}, {vr(QF+2*d,2)}")
        for d in range(4):
            k(f"v_cvt_pk_bf16_f32 v{O+4*e+d}, v{T+2*d}, v{T+2*d+1}")
    k(f"s_add_u32 s39, s38, {L.YT}")
    for e in range(4):
        k(f"buffer_store_dwordx4 {vr(O+4*e,4)}, v4, s[28:31], s39 offen")
        k(f"s_add_u32 s39, s39, {32*20480}")
    k.stamp(4)
    k("s_waitcnt vmcnt(0)")
    k.stamp(5)
    k.stamp_end(6)
    k("s_endpgm")

    k.lab(packl)
    labs = [k.newlab("pk") for _ in range(4)]
    k(f"""
    s_sub_u32 s21, s2, {160+NMOD}
    v_lshrrev_b32 v3, 3, v0                ; row
    v_and_b32 v4, 7, v0                    ; chunk
    v_mul_u32_u24 v5, 144, v3
    v_lshl_add_u32 v5, v4, 4, v5
    v_and_b32 v6, 15, v1
    v_lshrrev_b32 v7, 4, v1                ; g
    v_lshrrev_b32 v8, 2, v6
    v_lshl_add_u32 v8, v7, 3, v8           ; 8g + (i>>2)
    v_mul_u32_u24 v8, 144, v8
    v_and_b32 v9, 3, v6
    v_lshl_add_u32 v8, v9, 3, v8
    s_lshl_b32 s22, s20, 5
    v_add_u32 v8, s22, v8
    v_lshlrev_b32 v9, 4, v1                ; lane*16
    s_cmp_lt_u32 s21, 20
    s_cbranch_scc1 {labs[0]}
    s_cmp_lt_u32 s21, 40
    s_cbranch_scc1 {labs[1]}
    s_cmp_lt_u32 s21, 94
    s_cbranch_scc1 {labs[2]}
    s_branch {labs[3]}
    """)
    for m in range(4):
        k.lab(labs[m])
        N = [640, 640, 1728, 640][m]; Kd = [640, 640, 640, 1728][m]
        pitch = N * 2
        nks = 10 if m < 3 else 9
        ub = [0, 20, 40, 94][m]
        ncb = N // 64
        k.srd(24, 12 + 2*m, Kd * N * 2)
        magic = {10: (52429, 19), 27: (2428, 16)}[ncb]
        k(f"""
        s_sub_u32 s32, s21, {ub}
        s_mul_i32 s33, s32, {magic[0]}
        s_lshr_b32 s33, s33, {magic[1]}
        s_mul_i32 s34, s33, {ncb}
        s_sub_u32 s34, s32, s34
        v_mul_u32_u24 v10, {pitch}, v3
        v_lshl_add_u32 v10, v4, 4, v10
        s_mul_i32 s35, s33, {nks*32*pitch}
        s_lshl_b32 s36, s34, 7
        s_add_u32 s35, s35, s36
        """)
        R = 32
        for i in range(nks):
            k(f"buffer_load_dwordx4 {vr(R+4*i,4)}, v10, s[24:27], s35 offen")
            if i < nks - 1:
                k(f"s_add_u32 s35, s35, {32*pitch}")
        k(f"""
        s_lshl_b32 s36, s34, 2
        s_add_u32 s36, s36, s20             ; ntg
        """)
        if m < 2:
            k(f"""
            s_mul_i32 s38, s36, 6554
            s_lshr_b32 s38, s38, 16          ; j = ntg/10
            s_mul_i32 s39, s38, 10
            s_sub_u32 s39, s36, s39          ; a
            s_cmp_ge_u32 s39, 5
            s_cselect_b32 s40, 1, 0          ; nh
            s_sub_u32 s41, s39, 6
            s_cmp_eq_u32 s39, 5
            s_cselect_b32 s41, 4, s41
            s_cmp_eq_u32 s40, 1
            s_cselect_b32 s39, s41, s39      ; local t
            s_mul_i32 s37, s38, 200
            s_mul_i32 s40, s40, 100
            s_add_u32 s37, s37, s40
            s_mul_i32 s40, s33, 50
            s_add_u32 s37, s37, s40
            s_add_u32 s37, s37, s39
            s_lshl_b32 s37, s37, 10
            s_add_u32 s37, s37, {L.W1C if m == 0 else L.W2C}
            s_movk_i32 s41, 5120
            """)
        elif m == 2:
            k(f"""
            s_mul_i32 s38, s36, 9363
            s_lshr_b32 s38, s38, 16          ; j16 = ntg/7
            s_mul_i32 s39, s38, 7
            s_sub_u32 s39, s36, s39          ; a
            s_add_u32 s40, s39, 6
            s_sub_u32 s41, s39, 1
            s_cmp_eq_u32 s39, 0
            s_cselect_b32 s41, 6, s41        ; odd j: local = (a+6)%7
            s_and_b32 s40, s38, 1
            s_cmp_eq_u32 s40, 1
            s_cselect_b32 s39, s41, s39      ; local t
            s_mov_b32 s41, 4
            s_mov_b32 s40, s39
            s_cmp_ge_u32 s39, 4
            s_cselect_b32 s41, 2, s41
            s_add_u32 s42, s39, 76
            s_cmp_ge_u32 s39, 4
            s_cselect_b32 s40, s42, s40
            s_cmp_eq_u32 s39, 6
            s_cselect_b32 s41, 1, s41
            s_cselect_b32 s40, 120, s40
            s_mul_i32 s42, s33, 10
            s_mul_i32 s42, s42, s41          ; kq*10*stride
            s_add_u32 s40, s40, s42
            s_mul_i32 s37, s38, 140
            s_add_u32 s37, s37, s40
            s_lshl_b32 s37, s37, 10
            s_add_u32 s37, s37, {L.W3C}
            s_lshl_b32 s41, s41, 10
            """)
        else:
            k(f"""
            s_mul_i32 s38, s36, 13108
            s_lshr_b32 s38, s38, 16          ; j8 = ntg/5
            s_mul_i32 s39, s38, 5
            s_sub_u32 s39, s36, s39          ; a
            s_sub_u32 s41, s39, 1
            s_cmp_eq_u32 s39, 0
            s_cselect_b32 s41, 4, s41        ; odd j: local = (a+4)%5
            s_and_b32 s40, s38, 1
            s_cmp_eq_u32 s40, 1
            s_cselect_b32 s39, s41, s39      ; local t
            s_mul_i32 s40, s33, 21846
            s_lshr_b32 s40, s40, 16
            s_mul_i32 s41, s40, 3
            s_sub_u32 s41, s33, s41          ; kq%3
            s_mul_i32 s37, s38, 270
            s_mul_i32 s41, s41, 90
            s_add_u32 s37, s37, s41
            s_mul_i32 s40, s40, 5
            s_add_u32 s37, s37, s40
            s_add_u32 s37, s37, s39
            s_lshl_b32 s37, s37, 10
            s_add_u32 s37, s37, {L.W4C}
            s_movk_i32 s41, 10240
            """)
        for i in range(nks):
            k(f"s_waitcnt vmcnt({nks-1-i})")
            k(f"ds_write_b128 v5, {vr(R+4*i,4)} offset:{4608*i}")
        k("s_waitcnt lgkmcnt(0)")
        k("s_barrier")
        for i in range(nks):
            k(f"ds_read_b64_tr_b16 {vr(R+4*i,2)}, v8 offset:{4608*i}")
            k(f"ds_read_b64_tr_b16 {vr(R+4*i+2,2)}, v8 offset:{4608*i+576}")
        if m in (0, 2):
            k("v_mov_b32 v12, 0")
            k("v_mov_b32 v13, 0x3f803f80")
        for i in range(nks):
            k(f"s_waitcnt lgkmcnt({2*(nks-1-i)})" if 2*(nks-1-i) <= 15 else "s_waitcnt lgkmcnt(15)")
            k(f"buffer_store_dwordx4 {vr(R+4*i,4)}, v9, s[28:31], s37 offen")
            k(f"s_add_u32 s37, s37, s41")
            if m in (0, 2):
                for d in range(4):
                    k(f"v_dot2_f32_bf16 v12, v{R+4*i+d}, v13, v12")
        if m in (0, 2):
            k(f"""
            s_nop 2
            v_mov_b32 v13, v12
            s_nop 1
            v_permlane32_swap_b32 v13, v12
            v_add_f32 v12, v12, v13
            v_mov_b32 v13, v12
            s_nop 1
            v_permlane16_swap_b32 v13, v12
            v_add_f32 v12, v12, v13
            s_mul_i32 s38, s33, {1792*4}
            s_lshl_b32 s39, s36, 6
            s_add_u32 s38, s38, s39
            s_add_u32 s38, s38, {L.CS3P if m == 2 else L.CS1P}
            v_lshlrev_b32 v14, 2, v1
            v_cmp_gt_u32 vcc, 16, v1
            s_and_saveexec_b64 s[40:41], vcc
            buffer_store_dword v12, v14, s[28:31], s38 offen
            """)
        k("s_endpgm")

    k.lab(modl)
    gen_mod(k, 160, 30, end)
    k.lab(end)
    k("s_endpgm")
    k.lab("k1_pf")
    k(f"""
    s_load_dwordx2 s[4:5], s[0:1], 0
    v_lshrrev_b32 v2, 6, v0
    v_and_b32 v1, 63, v0
    v_readfirstlane_b32 s20, v2
    v_lshlrev_b32 v1, 4, v1
    s_sub_u32 s21, s2, {160+NMOD+NPACK}
    s_lshr_b32 s21, s21, 3
    s_lshl_b32 s21, s21, 2
    s_add_u32 s21, s21, s20          ; 0..31
    s_mul_i32 s21, s21, 10240
    s_and_b32 s22, s2, 7
    s_mul_i32 s22, s22, 327680
    s_add_u32 s21, s21, s22
    s_waitcnt lgkmcnt(0)
    """)
    k.srd(16, 4, SZ_SD)
    k(f"""
    s_load_dwordx2 s[10:11], s[0:1], 120
    s_sub_u32 s23, s2, {160+NMOD+NPACK}
    s_lshl_b32 s23, s23, 2
    s_add_u32 s23, s23, s20              ; 0..255
    v_mov_b32 v60, 0
    v_mov_b32 v61, 0
    v_mov_b32 v62, 0
    v_mov_b32 v63, 0
    s_lshl_b32 s24, s23, 10
    s_add_u32 s25, s24, {L.FLG}
    s_sub_u32 s26, s24, {192*1024}
    s_add_u32 s27, s26, {L.H1S}
    s_cmp_ge_u32 s23, 192
    s_cselect_b32 s25, s27, s25
    s_add_u32 s27, s26, {L.H1S + 127*20480 - 20480}
    s_cmp_ge_u32 s23, 212
    s_cselect_b32 s25, s27, s25
    s_waitcnt lgkmcnt(0)
    """)
    k.srd(28, 10, 0x10000000)
    zl = k.newlab("nz")
    k(f"""
    s_cmp_ge_u32 s23, 232
    s_cbranch_scc1 {zl}
    buffer_store_dwordx4 v[60:63], v1, s[28:31], s25 offen
    """)
    k.lab(zl)
    k("s_endpgm")
    return k

def build(kerns, path):
    hdr = open(os.path.join(os.path.dirname(os.path.abspath(__file__)), "..", NAME + ".s.ref")).read().split("\n")
    com = [l for l in hdr if l.startswith(";") and "@launch" not in l and "Override launch" not in l and "grid=ceil" not in l]
    s = "\n".join(com) + "\n"
    for k in kerns:
        s += f"; @launch kernel={k.name} grid=({k.grid},1,1) block=({k.block},1,1) lds={k.lds}\n"
    s += '.amdgcn_target "amdgcn-amd-amdhsa--gfx950"\n.text\n'
    for k in kerns:
        s += k.text()
    s += '.section .rodata,"a"\n'
    for k in kerns:
        s += k.kd()
    open(path, "w").write(s)

if __name__ == "__main__":
    out = sys.argv[1] if len(sys.argv) > 1 else os.path.join(os.path.dirname(os.path.abspath(__file__)), "..", NAME + ".s")
    if MERGE:
        k = Kern("k01_kernel", 864, 256, 46080, vgpr=256, sgpr=64)
        if os.environ.get("ORD") == "kvfirst":
            k("""
            s_cmp_ge_u32 s2, 864
            s_cbranch_scc1 k1_end
            s_cmp_lt_u32 s2, 480
            s_cbranch_scc1 k01_k0
            s_sub_u32 s2, s2, 480
            s_branch k01_k1
            """)
        else:
            k("""
            s_cmp_ge_u32 s2, 864
            s_cbranch_scc1 k1_end
            s_cmp_lt_u32 s2, 160
            s_cbranch_scc1 k01_k1
            s_cmp_lt_u32 s2, 600
            s_cbranch_scc1 k01_a
            s_cmp_lt_u32 s2, 819
            s_cbranch_scc1 k01_b
            s_cmp_lt_u32 s2, 824
            s_cbranch_scc1 k1_end
            s_sub_u32 s2, s2, 384
            s_branch k01_k0
            """)
            k.lab("k01_b")
            k("s_sub_u32 s2, s2, 440")
            k("s_branch k01_k1")
            k.lab("k01_a")
            k("s_sub_u32 s2, s2, 160")
        k.lab("k01_k0")
        gen_k0(k)
        k.lab("k01_k1")
        gen_k1(k)
        kerns = [k]
    else:
        kerns = [gen_k0(), gen_k1()]
    try:
        import gen3
        kerns += [gen3.gen_chain(Kern)]
    except ImportError:
        raise
    build(kerns, out)
    print("wrote", out)
```

```python
S, D, F = 2048, 640, 1728
def _al(x, a=4096): return (x + a - 1) // a * a
_off = 0
def _alloc(n):
    global _off
    o = _off
    _off = _al(_off + n)
    return o
KVR_CH = 4352
KVR = _alloc(640 * KVR_CH + 8192)
MODP = _alloc(4 * 3840 * 4)
Q4 = _alloc(160 * 2048 * 8)
ST1 = _alloc(2048 * 8)
YT  = _alloc(160 * 2048 * 8)
MODF = _alloc(6 * 640 * 4 + 1024)
CS3P = _alloc(2 * 1792 * 4)
CS1P = _alloc(2 * 1792 * 4)
XA = _alloc(S * D * 2)
H1S = _alloc(S * D * 2)
X1 = _alloc(S * D * 2)
H3 = _alloc(S * F * 2)
ST2 = _alloc(128 * 8 * 128)
W1C = _alloc(4 * 200 * 1024)
W2C = _alloc(4 * 200 * 1024)
W3C = _alloc(16 * 140 * 1024)
W4C = _alloc(8 * 270 * 1024)
FLG = _alloc(2048 * 128)
F1 = FLG
F2 = FLG + 256 * 128
F3 = FLG + 512 * 128
FS = FLG + 1536 * 128
FM = FLG + 1664 * 128
FF = FLG + 1904 * 128
FC = FLG + 1968 * 128
FH = FLG + 1984 * 128
FLG_KB = 256
PFK = _alloc(320 * 128)
PFS = _alloc(128 * 128)
PFM = _alloc(240 * 128)
WS_END = _off
PROFOFF = 0x4000000
```

```python
import sys, os
sys.path.insert(0, os.path.dirname(os.path.abspath(__file__)))
import layout as L

NAME = "adaLN_cond__ssm_conv_h3__mixer_s_mlp__prompt"
SZ_SD = 2048 * 640 * 2

class Kern:
    order = {}
    def __init__(self, name, grid, block, lds, vgpr=256, sgpr=102, agpr=0):
        self.name, self.grid, self.block, self.lds = name, grid, block, lds
        self.vgpr, self.sgpr, self.agpr = vgpr, (102 if (os.environ.get("PROF") or os.environ.get("PROF2")) else sgpr), agpr
        self.L = []
        self.nlab = 0
    def __call__(self, s):
        for ln in s.strip("\n").split("\n"):
            ln = ln.strip()
            if ln:
                self.L.append("    " + ln)
    def lab(self, s):
        self.L.append(s + ":")
    def newlab(self, p="L"):
        self.nlab += 1
        return f"{self.name}_{p}{self.nlab}"
    def srd(self, d, b, size, off=0):
        if off:
            self(f"s_add_u32 s{d}, s{b}, {off}")
            self(f"s_addc_u32 s{d+1}, s{b+1}, 0")
        else:
            self(f"s_mov_b32 s{d}, s{b}")
            self(f"s_mov_b32 s{d+1}, s{b+1}")
        self(f"s_mov_b32 s{d+2}, {size}")
        self(f"s_mov_b32 s{d+3}, 0x00020000")
    def round2(self, a, b, t):
        self(f"v_cvt_pk_bf16_f32 v{t}, v{a}, v{b}")
        self(f"v_lshlrev_b32 v{a}, 16, v{t}")
        self(f"v_and_b32 v{b}, 0xffff0000, v{t}")
    def unpack(self, lo, hi, src):
        self(f"v_lshlrev_b32 v{lo}, 16, v{src}")
        self(f"v_and_b32 v{hi}, 0xffff0000, v{src}")
    def stamp(self, i):
        if os.environ.get("PROF"):
            self(f"s_memtime s[{80+2*i}:{81+2*i}]")
    def stamp_end(self, n):
        if os.environ.get("PROF"):
            l = self.newlab("prof")
            self(f"""
            s_waitcnt lgkmcnt(0)
            s_cmp_lg_u32 s2, {int(os.environ.get("PROFWG", "0"))}
            s_cbranch_scc1 {l}
            s_load_dwordx2 s[76:77], s[0:1], 112
            s_waitcnt lgkmcnt(0)
            s_mov_b32 s78, 256
            s_mov_b32 s79, 0x00020000
            v_mov_b32 v1, 0
            """)
            for i in range(n):
                self(f"s_sub_u32 s75, s{80+2*i}, s80")
                self(f"v_mov_b32 v2, s75")
                self(f"buffer_store_dword v2, v1, s[76:79], 0 offen offset:{4*i}")
            self.lab(l)
    def text(self):
        sc = self.name in os.environ.get("SC1", "k0_kernel,k1_kernel,chain_kernel").split(",")
        Ls = [(l + " sc1" if (sc and l.strip().startswith("buffer_store")) else l) for l in self.L]
        if os.environ.get("PROF2"):
            idx = Kern.order.setdefault(self.name, len(Kern.order))
            pre = ["    s_memrealtime s[90:91]", "    v_lshrrev_b32 v1, 6, v0", "    s_mov_b32 s93, s2", "    v_readfirstlane_b32 s92, v1"]
            Ls = [(f"    s_branch {self.name}_pend" if l.strip() == "s_endpgm" else l) for l in Ls]
            post = f"""{self.name}_pend:
    s_mov_b64 exec, -1
    s_waitcnt vmcnt(0) lgkmcnt(0)
    s_memrealtime s[94:95]
    s_load_dwordx2 s[96:97], s[0:1], 120
    s_lshl_b32 s93, s93, 3
    s_add_u32 s93, s93, s92
    s_lshl_b32 s93, s93, 4
    s_add_u32 s93, s93, {0x4000000 + idx * 0x20000}
    s_getreg_b32 s92, hwreg(HW_REG_XCC_ID)
    s_waitcnt lgkmcnt(0)
    s_mov_b32 s98, 0x10000000
    s_mov_b32 s99, 0x00020000
    v_mov_b32 v0, s90
    v_mov_b32 v1, s94
    v_mov_b32 v2, s92
    v_mov_b32 v3, 0x1234
    v_mov_b32 v4, s93
    s_mov_b64 exec, 1
    buffer_store_dwordx4 v[0:3], v4, s[96:99], 0 offen
    s_endpgm""".split("\n")
            Ls = pre + Ls + post
        return (f".globl {self.name}\n.p2align 8\n.type {self.name},@function\n{self.name}:\n" + "\n".join(Ls) + "\n")
    def kd(self):
        acc = (self.vgpr + 3) // 4 * 4
        nfv = self.vgpr if not self.agpr else acc + self.agpr
        return f""".p2align 6
.amdhsa_kernel {self.name}
  .amdhsa_next_free_vgpr {nfv}
  .amdhsa_next_free_sgpr {self.sgpr}
  .amdhsa_accum_offset {acc}
  .amdhsa_group_segment_fixed_size 0
  .amdhsa_kernarg_size 128
  .amdhsa_user_sgpr_count 2
  .amdhsa_user_sgpr_kernarg_segment_ptr 1
  .amdhsa_system_sgpr_workgroup_id_x 1
  .amdhsa_float_denorm_mode_32 3
.end_amdhsa_kernel
"""

def vr(a, n):
    return f"v[{a}:{a+n-1}]"

MERGE = os.environ.get("MERGE", "0") == "1"
CNT_OFF = 128

def signal(k, cnt_sgpr_or_imm):
    l = k.newlab("sig")
    k(f"""
    s_mov_b64 exec, -1
    s_waitcnt vmcnt(0)
    s_barrier
    v_cmp_eq_u32 vcc, 0, v0
    s_and_saveexec_b64 s[42:43], vcc
    s_cbranch_execz {l}
    v_mov_b32 v1, 1
    v_mov_b32 v2, {cnt_sgpr_or_imm}
    buffer_atomic_add v1, v2, s[48:51], 0 offen
    """)
    k.lab(l)
    k("s_endpgm")

def poll(k, voff, target, vtmp):
    l = k.newlab("poll"); d = k.newlab("polld")
    k("s_mov_b32 s52, 0")
    k("s_cmp_lg_u32 s20, 0")
    k(f"s_cbranch_scc1 {d}")
    k.lab(l)
    k(f"""
    buffer_load_dword v{vtmp}, v{voff}, s[48:51], 0 offen sc0 sc1
    s_waitcnt vmcnt(0)
    v_readfirstlane_b32 s53, v{vtmp}
    s_add_u32 s52, s52, 1
    s_cmp_ge_u32 s53, {target}
    s_cbranch_scc1 {d}
    s_cmp_ge_u32 s52, 0x100000
    s_cbranch_scc1 {d}
    s_sleep {int(os.environ.get("SLP", 8))}
    s_branch {l}
    """)
    k.lab(d)
    k("s_barrier")


WREG = 9472
NT = os.environ.get("NT", "nt")
NTP = os.environ.get("NTP", "nt")
def gen_k0():
    import gen3
    k = Kern("k0_kernel", 512, 256, 8192, vgpr=128, sgpr=72)
    end = "k0_end"
    SPIN = int(os.environ.get("SPIN", 20000))
    CONV0 = 608
    k(f"""
    s_cmp_ge_u32 s2, 512
    s_cbranch_scc1 {end}
    s_load_dwordx4 s[4:7], s[0:1], 8       ; k v
    s_load_dwordx2 s[8:9], s[0:1], 24      ; shift_k
    s_load_dwordx2 s[10:11], s[0:1], 120   ; ws
    s_load_dwordx2 s[60:61], s[0:1], 0     ; q
    s_load_dwordx2 s[62:63], s[0:1], 96    ; w_mod
    s_load_dwordx2 s[52:53], s[0:1], 88    ; c
    s_load_dwordx4 s[56:59], s[0:1], 32
    v_lshrrev_b32 v2, 6, v0
    v_and_b32 v1, 63, v0                   ; lane
    v_readfirstlane_b32 s20, v2
    s_waitcnt lgkmcnt(0)
    """)
    k.srd(28, 10, 0x10000000)
    k(f"""
    s_cmp_ge_u32 s2, 320
    s_cbranch_scc1 p_aux
    """)
    k("s_mov_b32 s45, s20")
    k.srd(16, 4, SZ_SD); k.srd(20, 6, SZ_SD); k.srd(24, 8, 640 * 8)
    k(f"""
    s_mul_i32 s32, s2, 52429
    s_lshr_b32 s32, s32, 19
    s_mul_i32 s33, s32, 10
    s_sub_u32 s33, s2, s33           ; cb
    v_and_b32 v1, 15, v0             ; cgl
    v_lshrrev_b32 v2, 4, v0          ; rg
    s_lshl_b32 s34, s32, 6
    v_lshl_add_u32 v3, v2, 2, s34    ; s0
    v_mul_u32_u24 v4, 1280, v3
    s_lshl_b32 s35, s33, 7
    v_lshl_add_u32 v5, v1, 3, s35
    v_add_u32 v4, v4, v5             ; voff
    v_subrev_u32 v6, 3840, v4
    v_subrev_u32 v7, 2560, v4
    v_subrev_u32 v8, 1280, v4
    """)
    KR, VR_, SKR, SKF, KF, KVF, T, QR = 10, 24, 32, 40, 56, 84, 100, 112
    k(f"buffer_load_dwordx2 {vr(KR,2)}, v6, s[16:19], 0 offen {NT}")
    k(f"buffer_load_dwordx2 {vr(KR+2,2)}, v7, s[16:19], 0 offen {NT}")
    k(f"buffer_load_dwordx2 {vr(KR+4,2)}, v8, s[16:19], 0 offen {NT}")
    for i in range(4):
        k(f"buffer_load_dwordx2 {vr(KR+6+2*i,2)}, v4, s[16:19], 0 offen offset:{i*1280} {NT}")
    k(f"v_lshlrev_b32 v{T}, 2, v5")
    k(f"buffer_load_dwordx4 {vr(SKR,4)}, v{T}, s[24:27], 0 offen")
    k(f"buffer_load_dwordx4 {vr(SKR+4,4)}, v{T}, s[24:27], 0 offen offset:16")
    for i in range(4):
        k(f"buffer_load_dwordx2 {vr(VR_+2*i,2)}, v4, s[20:23], 0 offen offset:{i*1280} {NT}")
    k(f"""
    v_lshlrev_b32 v{T}, 9, v1
    v_sub_u32 v{T+1}, 15, v2
    v_lshl_add_u32 v{T}, v{T+1}, 3, v{T}
    v_lshrrev_b32 v{T+1}, 3, v0
    v_mul_u32_u24 v{T+1}, {L.KVR_CH}, v{T+1}
    v_and_b32 v{T+2}, 7, v0
    v_lshl_add_u32 v{T+3}, v{T+2}, 4, v{T+1}
    v_lshlrev_b32 v{T+4}, 4, v0
    s_mul_i32 s36, s33, {64*L.KVR_CH}
    s_lshr_b32 s37, s32, 1
    s_mul_i32 s37, s37, 272
    s_add_u32 s36, s36, s37
    s_add_u32 s36, s36, {L.KVR}
    s_and_b32 s37, s32, 1
    s_lshl_b32 s38, s37, 7
    s_sub_u32 s38, 128, s38
    s_add_u32 s38, s38, s36
    s_waitcnt vmcnt(4)
    """)
    for c in range(4):
        k.unpack(SKF + c, SKF + 4 + c, SKR + 2*c)
        k.unpack(SKF + 8 + c, SKF + 12 + c, SKR + 2*c + 1)
    for r in range(7):
        k.unpack(KF + 4*r, KF + 4*r + 1, KR + 2*r)
        k.unpack(KF + 4*r + 2, KF + 4*r + 3, KR + 2*r + 1)
    for j in (3, 2, 1, 0):
        for s_ in range(4):
            for p in range(2):
                A = KVF + 4*s_ + 2*p
                if j == 3: k(f"v_pk_mul_f32 {vr(A,2)}, {vr(KF+4*s_+2*p,2)}, {vr(SKF+12+2*p,2)}")
                else: k(f"v_pk_fma_f32 {vr(A,2)}, {vr(KF+4*(s_+3-j)+2*p,2)}, {vr(SKF+4*j+2*p,2)}, {vr(A,2)}")
    O = KF; O2 = KF + 8
    for i in range(8):
        k(f"v_cvt_pk_bf16_f32 v{O+i}, v{KVF+2*i}, v{KVF+2*i+1}")
    k("s_waitcnt vmcnt(0)")
    for i in range(8):
        k(f"v_lshlrev_b32 v{KVF+2*i}, 16, v{O+i}")
        k(f"v_and_b32 v{KVF+2*i+1}, 0xffff0000, v{O+i}")
    for i in range(8):
        k.unpack(O + 8 + 2*(i % 4), O + 9 + 2*(i % 4), VR_ + i)
        k(f"v_pk_mul_f32 {vr(KVF+2*i,2)}, {vr(KVF+2*i,2)}, {vr(O+8+2*(i%4),2)}")
    for c in range(4):
        for d in range(2):
            k(f"v_cvt_pk_bf16_f32 v{O2+2*c+d}, v{KVF+4*(3-2*d)+c}, v{KVF+4*(2-2*d)+c}")
    for c in range(4):
        k(f"ds_write_b64 v{T}, {vr(O2+2*c,2)} offset:{128*c}")
    k(f"""
    s_waitcnt lgkmcnt(0)
    s_barrier
    """)
    for i in range(2):
        k(f"ds_read_b128 {vr(KR+4*i,4)}, v{T+4} offset:{4096*i}")
    for i in range(2):
        k(f"s_waitcnt lgkmcnt({1-i})")
        k(f"buffer_store_dwordx4 {vr(KR+4*i,4)}, v{T+3}, s[28:31], s38 offen")
        k(f"s_add_u32 s38, s38, {32*L.KVR_CH}")
    hl = k.newlab(); zl = k.newlab()
    k(f"""
    v_cmp_eq_u32 vcc, 0, v{T+2}
    s_and_saveexec_b64 s[66:67], vcc
    s_cmp_eq_u32 s37, 0
    s_cbranch_scc1 {hl}
    s_cmp_eq_u32 s32, 31
    s_cbranch_scc1 {zl}
    """)
    for i in range(2):
        k(f"buffer_store_dwordx4 {vr(KR+4*i,4)}, v{T+1}, s[28:31], s36 offen offset:{272+256}")
        k(f"s_add_u32 s36, s36, {32*L.KVR_CH}")
    k(f"s_branch {zl}")
    k.lab(hl)
    k(f"""
    s_cmp_lg_u32 s32, 0
    s_cbranch_scc1 {zl}
    v_mov_b32 v{T+8}, 0
    v_mov_b32 v{T+9}, 0
    v_mov_b32 v{T+10}, 0
    v_mov_b32 v{T+11}, 0
    """)
    for i in range(2):
        k(f"buffer_store_dwordx4 {vr(T+8,4)}, v{T+1}, s[28:31], s36 offen offset:256")
        k(f"s_add_u32 s36, s36, {32*L.KVR_CH}")
    k.lab(zl)
    k("s_endpgm")
    k.lab(end)
    k("s_endpgm")

    k.lab("p_aux")
    k(f"""
    s_sub_u32 s21, s2, 320               ; a
    s_cmp_ge_u32 s20, 2
    s_cbranch_scc1 p_misc
    s_cmp_eq_u32 s20, 1
    s_cbranch_scc1 p_aux1
    s_cmp_lt_u32 s21, 128
    s_cbranch_scc1 p_st
    s_sub_u32 s21, s21, 128
    s_branch p_mod
    """)
    k.lab("p_aux1")
    k(f"""
    s_cmp_ge_u32 s21, 56
    s_cbranch_scc1 {end}
    s_add_u32 s21, s21, 64
    """)
    k.lab("p_mod")
    C, W, A, T = 8, 32, 112, 120
    k(f"""
    s_lshr_b32 s32, s21, 2               ; cb
    s_and_b32 s33, s21, 3                ; kq
    v_lshrrev_b32 v4, 3, v1              ; row_l
    v_and_b32 v3, 7, v1                  ; chunk
    s_mul_i32 s34, s33, 160
    v_add_u32 v4, s34, v4
    v_lshlrev_b32 v5, 1, v4              ; c offset
    v_mul_u32_u24 v6, 7680, v4
    s_lshl_b32 s36, s32, 7
    v_lshl_add_u32 v7, v3, 4, s36
    v_add_u32 v6, v6, v7
    """)
    k.srd(16, 52, 1280); k.srd(24, 62, 640 * 7680)
    for it in range(20):
        k(f"buffer_load_ushort v{C+it}, v5, s[16:19], 0 offen offset:{16*it}")
    k("s_mov_b32 s37, 0")
    for it in range(20):
        k(f"buffer_load_dwordx4 {vr(W+4*it,4)}, v6, s[24:27], s37 offen {NT}")
        if it < 19: k(f"s_add_u32 s37, s37, {8*7680}")
    TT = T
    k("s_waitcnt vmcnt(20)")
    for h in range(0, 20, 4):
        for it in range(h, h+4): k(f"v_lshlrev_b32 v{C+it}, 16, v{C+it}")
        for it in range(h, h+4): k(f"v_mul_f32 v{TT+it-h}, 0xbfb8aa3b, v{C+it}")
        for it in range(h, h+4): k(f"v_exp_f32 v{TT+it-h}, v{TT+it-h}")
        for it in range(h, h+4): k(f"v_add_f32 v{TT+it-h}, 1.0, v{TT+it-h}")
        for it in range(h, h+4): k(f"v_rcp_f32 v{TT+it-h}, v{TT+it-h}")
        k("s_nop 0")
        for it in range(h, h+4): k(f"v_mul_f32 v{C+it}, v{C+it}, v{TT+it-h}")
        for it in (h, h+2): k.round2(C + it, C + it + 1, TT)
    for j in range(8): k(f"v_mov_b32 v{A+j}, 0")
    for it in range(20):
        k(f"s_waitcnt vmcnt({19-it})")
        for d in range(4): k.unpack(T + 2*d, T + 2*d + 1, W + 4*it + d)
        sel = "op_sel:[0,0,0] op_sel_hi:[1,0,1]" if it % 2 == 0 else "op_sel:[0,1,0] op_sel_hi:[1,1,1]"
        for d in range(4):
            k(f"v_pk_fma_f32 {vr(A+2*d,2)}, {vr(T+2*d,2)}, {vr(C+(it&~1),2)}, {vr(A+2*d,2)} {sel}")
    k("s_nop 1")
    for d in range(8):
        k(f"v_add_f32_dpp v{A+d}, v{A+d}, v{A+d} row_ror:8 row_mask:0xf bank_mask:0xf")
    for x in gen3.reduce_g_ops([A + d for d in range(8)], T): k(x)
    k(f"""
    v_lshlrev_b32 v7, 5, v3
    s_mul_i32 s36, s33, {3840*4}
    s_lshl_b32 s37, s32, 8
    s_add_u32 s37, s37, s36
    s_add_u32 s37, s37, {L.MODP}
    s_mov_b64 exec, 0xff
    buffer_store_dwordx4 {vr(A,4)}, v7, s[28:31], s37 offen
    buffer_store_dwordx4 {vr(A+4,4)}, v7, s[28:31], s37 offen offset:16
    s_endpgm
    """)
    k.lab("p_st")
    k.srd(16, 60, SZ_SD)
    k(f"""
    v_lshrrev_b32 v5, 3, v1              ; r
    v_and_b32 v6, 7, v1                  ; c
    s_lshl_b32 s23, s21, 4
    v_add_u32 v7, s23, v5
    v_mul_u32_u24 v9, 1280, v7
    v_lshl_add_u32 v9, v6, 4, v9
    v_mov_b32 v20, 0x3f803f80
    s_mov_b32 s24, 0
    """)
    for p in range(2):
        for t in range(10):
            k(f"buffer_load_dwordx4 {vr(32+40*p+4*t,4)}, v9, s[16:19], s24 offen offset:{128*t} {NT}")
        if p < 1: k(f"s_add_u32 s24, s24, {8*1280}")
    k(f"""
    v_and_b32 v21, 1, v5
    v_lshl_add_u32 v21, v6, 1, v21
    v_lshlrev_b32 v21, 7, v21
    v_lshrrev_b32 v22, 1, v5
    v_xor_b32 v22, v22, v6
    v_lshl_add_u32 v21, v22, 4, v21
    v_xor_b32 v23, 64, v21
    s_mul_i32 s25, s21, 20480
    s_add_u32 s25, s25, {L.Q4}
    """)
    for i in range(4): k(f"v_mov_b32 v{10+i}, 0")
    for p in range(2):
        for t in range(10):
            k(f"s_waitcnt vmcnt({19 - (10*p + t) + (10*p + t)})") if False else None
            X = 32 + 40*p + 4*t
            k(f"s_waitcnt vmcnt({min(63, 19 - (10*p + t) + (10*p + t))})") if False else None
            nld = 10*p + t
            k(f"s_waitcnt vmcnt({19 - nld + nld})") if False else None
            k(f"s_waitcnt vmcnt(19)")
            for d in range(4):
                k(f"v_dot2_f32_bf16 v{10+2*p}, v{X+d}, v20, v{10+2*p}")
                k(f"v_dot2_f32_bf16 v{11+2*p}, v{X+d}, v{X+d}, v{11+2*p}")
            O = 120 + 4*(t & 1)
            k(f"v_mov_b32 v{O}, v{X}")
            k(f"v_mov_b32 v{O+1}, v{X+1}")
            k(f"v_mov_b32 v{O+2}, v{X+2}")
            k(f"v_mov_b32 v{O+3}, v{X+3}")
            k(f"v_mov_b32_dpp v{O}, v{X+2} row_ror:8 row_mask:0xf bank_mask:0xc")
            k(f"v_mov_b32_dpp v{O+1}, v{X+3} row_ror:8 row_mask:0xf bank_mask:0xc")
            k(f"v_mov_b32_dpp v{O+2}, v{X} row_ror:8 row_mask:0xf bank_mask:0x3")
            k(f"v_mov_b32_dpp v{O+3}, v{X+1} row_ror:8 row_mask:0xf bank_mask:0x3")
            k(f"s_add_u32 s26, s25, {2048*t}")
            k(f"buffer_store_dwordx4 {vr(O,4)}, v{21 if p == 0 else 23}, s[28:31], s26 offen")
    k("s_nop 2")
    for ctl in ("quad_perm:[1,0,3,2]", "quad_perm:[2,3,0,1]", "row_half_mirror"):
        for i in range(4):
            k(f"v_add_f32_dpp v{10+i}, v{10+i}, v{10+i} {ctl} row_mask:0xf bank_mask:0xf")
    for x in gen3.zipl(*[gen3.ln_ops(10+2*p, 11+2*p, 24+p, 640) for p in range(2)]): k(x)
    k(f"""
    v_lshlrev_b32 v7, 3, v7
    v_cmp_eq_u32 vcc, 0, v6
    s_mov_b32 s23, {L.ST1}
    s_and_saveexec_b64 s[66:67], vcc
    """)
    for p in range(2):
        k(f"buffer_store_dwordx2 {vr(10+2*p,2)}, v7, s[28:31], s23 offen offset:{64*p}")
    k("s_endpgm")
    k.lab("p_misc")
    lm = k.newlab("m3")
    k(f"""
    s_lshr_b32 s22, s21, 3
    s_mov_b32 s23, s21
    s_cmp_eq_u32 s20, 2
    s_cbranch_scc1 {lm}
    s_cmp_ge_u32 s21, 64
    s_cbranch_scc1 {end}
    s_add_u32 s22, s22, 24
    s_add_u32 s23, s23, 192
    """)
    k.lab(lm)
    k(f"""
    v_lshlrev_b32 v1, 4, v1
    v_mov_b32 v60, 0
    v_mov_b32 v61, 0
    v_mov_b32 v62, 0
    v_mov_b32 v63, 0
    s_lshl_b32 s24, s23, 10
    s_add_u32 s25, s24, {L.FLG}
    s_add_u32 s26, s24, {L.H1S}
    s_add_u32 s27, s24, {L.H1S + 127*20480 - 20480}
    s_cmp_ge_u32 s23, 20
    s_cselect_b32 s26, s27, s26
    """)
    zl = k.newlab("nz"); zl2 = k.newlab("nz")
    k(f"""
    s_cmp_ge_u32 s23, {L.FLG_KB}
    s_cbranch_scc1 {zl}
    buffer_store_dwordx4 v[60:63], v1, s[28:31], s25 offen
    """)
    k.lab(zl)
    k(f"""
    s_cmp_ge_u32 s23, 40
    s_cbranch_scc1 {zl2}
    buffer_store_dwordx4 v[60:63], v1, s[28:31], s26 offen
    """)
    k.lab(zl2)
    k.srd(16, 56, 640 * 4096)
    k(f"""
    s_and_b32 s24, s2, 7
    s_mul_i32 s24, s24, 327680
    s_mul_i32 s21, s22, 10240
    s_add_u32 s21, s21, s24
    """)
    for i in range(10):
        if i and i % 4 == 0: k("s_add_u32 s21, s21, 4096")
        k(f"buffer_load_dwordx4 {vr(8+4*i,4)}, v1, s[16:19], s21 offen offset:{(i%4)*1024} {NTP}")
    if not os.environ.get("NOCPF"):
        k("s_getpc_b64 s[24:25]")
        k.lab("k0_pcref")
        k(f"""
        s_sub_u32 s24, s24, k0_pcref-{k.name}
        s_subb_u32 s25, s25, 0
        s_lshl_b32 s23, s22, 11
        """)
        for i in range(2):
            k(f"""
            s_add_u32 s26, s23, {1024*i}
            s_min_u32 s26, s26, (chain_end-{k.name}-1020)&0xfffffff0
            v_add_u32 v64, s26, v1
            v_mov_b32 v5, s25
            v_add_co_u32 v4, vcc, s24, v64
            v_addc_co_u32 v5, vcc, 0, v5, vcc
            global_load_dwordx4 {vr(72+4*i,4)}, v[4:5], off
            """)
    k("s_waitcnt vmcnt(0)")
    k("s_endpgm")
    return k

def gen_k1():
    k = Kern("k1_kernel", 256, 256, 4 * WREG + 64, vgpr=256, sgpr=100, agpr=32)
    end = "k1_end"
    k(f"""
    s_cmp_ge_u32 s2, 256
    s_cbranch_scc1 {end}
    s_load_dwordx4 s[4:7], s[0:1], 32
    s_load_dwordx2 s[10:11], s[0:1], 120   ; ws
    s_load_dwordx8 s[12:19], s[0:1], 56    ; w1 w2 w3 w4
    s_load_dwordx2 s[60:61], s[0:1], 0     ; q
    s_load_dwordx2 s[62:63], s[0:1], 96    ; w_mod
    s_load_dwordx2 s[52:53], s[0:1], 88    ; c
    v_lshrrev_b32 v2, 6, v0
    v_and_b32 v1, 63, v0                   ; lane
    v_readfirstlane_b32 s20, v2
    s_and_b32 s58, s2, 7                   ; x
    s_lshr_b32 s59, s2, 3                  ; idx
    s_waitcnt lgkmcnt(0)
    """)
    k.srd(28, 10, 0x10000000)
    SPIN = int(os.environ.get("SPIN", 20000))
    k("s_mov_b32 s46, 1")
    def flag_store(soff, vt):
        k(f"""
        v_mov_b32 v{vt}, s46
        v_mov_b32 v{vt+1}, 0
        s_mov_b64 exec, 1
        buffer_store_dword v{vt}, v{vt+1}, s[28:31], {soff} offen
        """)
    def poll(vaddr, vdat, execmask, sbase):
        l = k.newlab("pl"); d = k.newlab("pd")
        k(f"s_mov_b32 s47, 0")
        k(execmask)
        k.lab(l)
        k(f"""
        buffer_load_dword v{vdat}, v{vaddr}, s[28:31], {sbase} offen sc1
        s_add_u32 s47, s47, 1
        s_waitcnt vmcnt(0)
        v_cmp_ne_u32 vcc, s46, v{vdat}
        s_cmp_ge_u32 s47, {SPIN}
        s_cbranch_scc1 {d}
        s_cbranch_vccnz {l}
        """)
        k.lab(d)
        k("s_mov_b64 exec, -1")
    k(f"""
    s_cmp_ge_u32 s59, 20
    s_cbranch_scc1 k1_help
    s_mul_i32 s2, s58, 20
    s_add_u32 s2, s2, s59                  ; s2 := cg
    """)
    if os.environ.get("PRIO", "1") == "1": k("s_setprio 3")
    k.stamp(0)
    k.srd(24, 4, 640 * 4096)
    k(f"""
    s_lshl_b32 s21, s2, 3
    s_add_u32 s22, s6, s21
    s_addc_u32 s23, s7, 0
    s_load_dwordx2 s[32:33], s[22:23], 0
    s_lshl_b32 s21, s2, 2
    s_add_u32 s21, s21, s20                 ; ch
    s_mul_i32 s34, s20, {WREG}
    v_lshlrev_b32 v3, 4, v1                 ; lane*16
    s_lshl_b32 s35, s21, 12                 ; ch*4096
    s_add_u32 s36, s34, 256
    s_mov_b32 m0, s36
    s_mul_i32 s37, s21, {L.KVR_CH}
    s_add_u32 s37, s37, {L.KVR}
    """)
    for i in range(4):
        k(f"buffer_load_dwordx4 v3, s[24:27], s35 offen offset:{1024*i} lds")
    k(f"""
    v_lshrrev_b32 v4, 3, v0
    v_mul_u32_u24 v4, 20480, v4
    s_lshr_b32 s38, s2, 1
    s_and_b32 s38, s38, 7
    v_and_b32 v5, 7, v0
    v_xor_b32 v5, s38, v5
    v_lshl_add_u32 v4, v5, 4, v4            ; (t>>3)*20480 + ((t&7)^sw)*16
    s_lshl_b32 s38, s2, 7                   ; cg*128
    s_add_u32 s36, s34, 4352
    s_mov_b32 m0, s36
    s_nop 0
    """)
    for i in range(4):
        k(f"buffer_load_dwordx4 v3, s[28:31], s37 offen offset:{1024*i} lds")
    k(f"""
    s_add_u32 s36, s34, {4352+4096}
    s_mov_b32 m0, s36
    s_add_u32 s37, s37, 4096
    buffer_load_dwordx4 v3, s[28:31], s37 offen lds
    """)
    def late_load(i):
        e = i // 2
        if i % 2 == 0:
            k(f"s_add_u32 s39, s38, {L.Q4 + e*32*20480}")
            k(f"buffer_load_dwordx4 a[{4*e}:{4*e+3}], v4, s[28:31], s39 offen")
        else:
            k(f"v_lshlrev_b32 v16, 4, v0")
            k(f"s_mov_b32 s39, {L.ST1 + 4096*e}")
            k(f"buffer_load_dwordx4 a[{16+4*e}:{19+4*e}], v16, s[28:31], s39 offen")
    MS = lambda part, vec: (68 + 12*part + 4*vec) if part < 2 else (68 + 24 + 4*vec if (part == 2 and vec < 2) else None)
    mreg = {}
    free = [68, 72, 76, 80, 84, 12, 16, 48, 52, 56, 60, 64]
    k(f"""
    s_lshl_b32 s22, s2, 4
    s_add_u32 s22, s22, {L.MODP}
    s_add_u32 s22, s10, s22
    s_addc_u32 s23, s11, 0
    """)
    for part in range(4):
        for vec in range(3):
            r = free.pop(0); mreg[(part, vec)] = r
            k(f"s_load_dwordx4 s[{r}:{r+3}], s[22:23], {part*3840*4 + vec*2560}")
    k(f"""
    v_lshl_add_u32 v5, v1, 2, s34
    v_mov_b32 v6, 0
    ds_write_b32 v5, v6
    v_and_b32 v7, 15, v1                    ; n16
    v_bfe_u32 v8, v1, 4, 1                  ; ph
    v_lshrrev_b32 v9, 5, v1                 ; g
    v_mul_u32_u24 v10, 272, v7
    v_lshl_add_u32 v10, v9, 4, v10
    v_add_u32 v10, s34, v10
    v_add_u32 v10, {4352+4}, v10
    v_lshlrev_b32 v11, 2, v8
    v_sub_u32 v10, v10, v11
    v_and_b32 v12, 7, v1
    v_mul_u32_u24 v13, 272, v12
    v_lshl_add_u32 v13, v9, 4, v13
    v_add_u32 v13, s34, v13
    v_add_u32 v13, {4352+4}, v13
    v_sub_u32 v13, v13, v11                 ; vBP
    v_bfe_u32 v11, v1, 3, 1                 ; a'
    v_lshlrev_b32 v11, 4, v11
    v_sub_u32 v11, 16, v11
    v_and_b32 v14, 31, v1
    v_lshlrev_b32 v14, 3, v14
    v_lshl_add_u32 v14, v9, 4, v14
    v_add_u32 v14, s34, v14
    v_add_u32 v14, 8, v14                   ; vA
    v_cmp_ne_u32 vcc, 0, v12
    v_mov_b32 v16, 0
    s_nop 1
    v_cndmask_b32 v15, v16, -1, vcc
    """)
    k("s_waitcnt vmcnt(0) lgkmcnt(0)")
    B0, B1, BP, AX, AY, AP_, AM, APk = 32, 64, 96, 128, 144, 160, 176, 208
    k.stamp(1)
    def aread(reg, off):
        return f"ds_read_b64 {vr(reg,2)}, v14 offset:{off}\n    ds_read_b64 {vr(reg+2,2)}, v14 offset:{off+8}"
    for ks in range(8):
        k(aread(AM+4*ks, 256*7+32*ks))
    TB = 16
    for ks in range(8):
        k(f"ds_read2_b32 {vr(B1+4*ks,2)}, v10 offset0:{8*ks} offset1:{8*ks+1}")
        k(f"ds_read2_b32 {vr(B1+4*ks+2,2)}, v10 offset0:{8*ks+2} offset1:{8*ks+3}")
    prd = []
    for ks in range(8):
        prd.append(f"ds_read_b32 v{TB+ks}, v10 offset:{32*ks+16}")
    for ks in range(8):
        prd.append(f"ds_read2_b32 {vr(BP+4*ks,2)}, v13 offset0:{8*ks} offset1:{8*ks+1}")
        prd.append(f"ds_read2_b32 {vr(BP+4*ks+2,2)}, v13 offset0:{8*ks+2} offset1:{8*ks+3}")
        prd.append(f"ds_read_b32 v{TB+8+ks}, v13 offset:{32*ks+16}")
    al0 = []; alp = []
    for ks in range(8):
        for d in range(4):
            hi = B1 + 4*ks + d + 1 if d < 3 else TB + ks
            al0.append(f"v_alignbit_b32 v{B0+4*ks+d}, v{hi}, v{B1+4*ks+d}, 16")
            hi = BP + 4*ks + d + 1 if d < 3 else TB + 8 + ks
            alp.append(f"v_alignbit_b32 v{BP+4*ks+d}, v{hi}, v{BP+4*ks+d}, v11")
    k.stamp(2)
    DPP = "row_mask:0xf bank_mask:0xf bound_ctrl:0"
    def mfma(acc, a, b, first):
        c = "0" if first else vr(acc, 16)
        k(f"v_mfma_f32_32x32x16_bf16 {vr(acc,16)}, {vr(a,4)}, {vr(b,4)}, {c}")
    def phase(acc, Areg, Breg, first, reads, late, pad=True, rg=8):
        reads = list(reads); late = list(late)
        for ks in range(8):
            mfma(acc, Areg + 4*ks, Breg + 4*ks, first and ks == 0)
            n = (len(reads) + (rg - 1 - ks)) // (rg - ks) if ks < rg else 0
            for s in reads[:n]:
                k(s)
            reads = reads[n:]
            if ks < 2:
                if pad and late and n < 5:
                    k(f"s_nop {4 - n}")
            else:
                n = (len(late) + (7 - ks)) // (8 - ks)
                for s in late[:n]:
                    k(s)
                late = late[n:]
        assert not late and not reads
    def shift_ops(acc, masked):
        if masked:
            return [f"v_and_b32_dpp v{acc+r}, v{acc+r}, v15 row_shr:1 {DPP}" for r in range(16)]
        return [f"v_mov_b32_dpp v{acc+r}, v{acc+r} row_shr:1 {DPP}" for r in range(16)]
    def areads(reg, off):
        o = []
        for ks in range(8):
            o += aread(reg + 4*ks, off + 32*ks).split("\n")
        return o
    for q in range(7, -1, -1):
        first = (q == 7)
        if q <= 6 and q >= 3:
            late_load(2*(6-q))
        k("s_waitcnt lgkmcnt(0)")
        apl = areads(APk, 256*(q+8))
        if first:
            for ks in range(8):
                mfma(AY, AM + 4*ks, B1 + 4*ks, ks == 0)
                if ks == 0:
                    for x in prd[:16]: k(x)
                elif ks == 1:
                    for x in prd[16:]: k(x)
                elif ks == 2:
                    k("s_waitcnt lgkmcnt(15)")
                    k("s_waitcnt lgkmcnt(0)")
                    for x in al0[:4]: k(x)
                else:
                    for x in al0[4 + (ks-3)*6: 4 + (ks-2)*6]: k(x)
            k("s_nop 0")
            phase(AX, AM, B0, True, apl, alp[:16] + shift_ops(AY, False) + alp[16:] + ["s_nop 0"])
        else:
            phase(AY, AM, B1, False, apl, shift_ops(AP_, True))
            if q <= 6 and q >= 3: late_load(2*(6-q) + 1)
            phase(AX, AM, B0, False, [], shift_ops(AY, False) if q > 0 else [])
        k("s_waitcnt lgkmcnt(0)")
        aml = areads(AM, 256*(q-1)) if q > 0 else []
        phase(AP_, APk, BP, first, aml, shift_ops(AX, False) if q > 0 else [], rg=5)
    k.stamp(3)
    k("s_nop 11")
    for r in range(16):
        k(f"v_add_f32_dpp v{AX+r}, v{AP_+r}, v{AX+r} row_shr:8 {DPP}")
    k("""
    s_mov_b32 s42, 0xff00ff00
    s_mov_b32 s43, 0xff00ff00
    s_mov_b64 exec, s[42:43]
    """)
    for r in range(16):
        k(f"v_add_f32 v{AY+r}, v{AP_+r}, v{AY+r}")
    k("s_mov_b64 exec, -1")
    k(f"""
    v_mul_u32_u24 v16, 264, v7
    v_lshl_add_u32 v16, v9, 5, v16
    v_lshl_add_u32 v16, v8, 2, v16
    v_add_u32 v16, s34, v16
    """)
    for r in range(16):
        k(f"v_cvt_pk_bf16_f32 v{32+r}, v{AX+r}, v{AY+r}")
    for r in range(16):
        k(f"ds_write_b32 v16, v{32+r} offset:{64*(r>>2)+8*(r&3)}")
    k(f"""
    s_lshl_b32 s44, s32, 16
    s_and_b32 s45, s32, 0xffff0000
    s_lshl_b32 s46, s33, 16
    s_and_b32 s47, s33, 0xffff0000
    v_mul_u32_u24 v17, 264, v2
    v_lshl_add_u32 v17, v1, 2, v17
    s_waitcnt lgkmcnt(0)
    s_barrier
    """)
    Y = 48
    KV = 224
    k(f"""
    v_mul_u32_u24 v19, 272, v2
    v_lshlrev_b32 v18, 2, v1
    v_sub_u32 v19, v19, v18
    v_add_u32 v19, {4352 + 252}, v19
    """)
    for e in range(4):
        for c in range(4):
            k(f"ds_read_b32 v{Y+4*e+c}, v17 offset:{c*WREG+1056*e}")
    k("s_waitcnt lgkmcnt(0)")
    for e in range(4):
        for c in range(4):
            k(f"ds_read_b32 v{KV+4*e+c}, v19 offset:{c*WREG+1088*e}")
    T = 64; O = 96
    QF, SR, PP = 112, 144, 160
    k(f"""
    v_mov_b32 v28, s44
    v_mov_b32 v29, s45
    v_mov_b32 v30, s46
    v_mov_b32 v31, s47
    s_waitcnt vmcnt(0)
    """)
    for i in range(16):
        k(f"v_accvgpr_read_b32 v{176+i}, a{i}")
        k(f"v_accvgpr_read_b32 v{SR+i}, a{16+i}")
    MB = [192, 208, 240]
    for vec in range(3):
        for c in range(4): k(f"v_mov_b32 v{MB[vec]+c}, s{mreg[(0,vec)]+c}")
    for part in range(1, 4):
        for vec in range(3):
            for c in range(4): k(f"v_add_f32 v{MB[vec]+c}, s{mreg[(part,vec)]+c}, v{MB[vec]+c}")
    for vec in range(3):
        for c in (0, 2): k.round2(MB[vec] + c, MB[vec] + c + 1, MB[vec] + 4)
    for c in range(4): k(f"v_add_f32 v{MB[1]+c}, 1.0, v{MB[1]+c}")
    for c in (0, 2): k.round2(MB[1] + c, MB[1] + c + 1, MB[1] + 4)
    for c in range(4):
        k(f"v_mul_f32 v{PP+c}, v{MB[1]+c}, v{MB[2]+c}")
        k(f"v_mul_f32 v{PP+4+c}, v{MB[0]+c}, v{MB[2]+c}")
    k("s_waitcnt lgkmcnt(0)")
    BCX = "op_sel:[0,1,0] op_sel_hi:[1,1,0]"
    for e in range(4):
        for c in range(4):
            k.unpack(T + 4 + c, T + c, KV + 4*e + c)
        for sg in range(2):
            for hh in range(2):
                a = T + 4*sg + 2*hh
                k(f"v_pk_mul_f32 {vr(a,2)}, {vr(a,2)}, {vr(28+2*hh,2)}")
        for sg in range(2):
            for hh in range(2):
                a = T + 4*sg + 2*hh
                k.round2(a, a + 1, T + 8)
        for c in range(4):
            k.unpack(T + 10 + c, T + 14 + c, Y + 4*e + c)
        for d in range(4):
            k.unpack(QF + 2*d, QF + 2*d + 1, 176 + 4*e + d)
        for d in range(4):
            k(f"v_pk_add_f32 {vr(T+2*d,2)}, {vr(T+2*d,2)}, {vr(T+10+2*d,2)}")
        for d in range(4):
            S_ = SR + 4*e + 2*(d // 2)
            k(f"v_pk_fma_f32 {vr(QF+8+2*d,2)}, {vr(QF+2*d,2)}, {vr(S_,2)}, {vr(S_,2)} {BCX}")
        for d in range(4):
            k(f"v_pk_fma_f32 {vr(QF+8+2*d,2)}, {vr(QF+8+2*d,2)}, {vr(PP+2*(d%2),2)}, {vr(PP+4+2*(d%2),2)}")
        for d in range(4):
            k(f"v_pk_fma_f32 {vr(T+2*d,2)}, {vr(T+2*d,2)}, {vr(QF+8+2*d,2)}, {vr(QF+2*d,2)}")
        for d in range(4):
            k(f"v_cvt_pk_bf16_f32 v{O+4*e+d}, v{T+2*d}, v{T+2*d+1}")
    k(f"s_add_u32 s39, s38, {L.YT}")
    for e in range(4):
        k(f"buffer_store_dwordx4 {vr(O+4*e,4)}, v4, s[28:31], s39 offen")
        k(f"s_add_u32 s39, s39, {32*20480}")
    k.stamp(4)
    k("s_waitcnt vmcnt(0)")
    k.stamp(5)
    k.stamp_end(6)
    k("s_endpgm")

    k.lab("k1_help")
    import gen3
    k(f"""
    s_mul_i32 s21, s58, 12
    s_add_u32 s21, s21, s59
    s_sub_u32 s21, s21, 20
    s_mul_i32 s22, s20, 96
    s_add_u32 s21, s21, s22               ; task
    s_mul_i32 s34, s20, {WREG}
    s_cmp_lt_u32 s21, 120
    s_cbranch_scc1 k1_mod0
    s_sub_u32 s21, s21, 120
    s_cmp_lt_u32 s21, 154
    s_cbranch_scc1 k1_pack
    s_sub_u32 s21, s21, 154
    s_cmp_lt_u32 s21, 30
    s_cbranch_scc1 k1_fin
    s_endpgm
    """)
    k.lab("k1_mod0")
    k("s_add_u32 s21, s21, 120")
    k.lab("k1_mod")
    C, W, A, T = 8, 32, 112, 120
    k(f"""
    s_lshr_b32 s32, s21, 2               ; cb
    s_and_b32 s33, s21, 3                ; kq
    v_lshrrev_b32 v4, 3, v1              ; row_l
    v_and_b32 v3, 7, v1                  ; chunk
    s_mul_i32 s34, s33, 160
    v_add_u32 v4, s34, v4
    v_lshlrev_b32 v5, 1, v4              ; c offset
    v_mul_u32_u24 v6, 7680, v4
    s_lshl_b32 s36, s32, 7
    v_lshl_add_u32 v7, v3, 4, s36
    v_add_u32 v6, v6, v7
    """)
    k.srd(16, 52, 1280); k.srd(24, 62, 640 * 7680)
    for it in range(20):
        k(f"buffer_load_ushort v{C+it}, v5, s[16:19], 0 offen offset:{16*it}")
    k("s_mov_b32 s37, 0")
    for it in range(20):
        k(f"buffer_load_dwordx4 {vr(W+4*it,4)}, v6, s[24:27], s37 offen {NT}")
        if it < 19: k(f"s_add_u32 s37, s37, {8*7680}")
    TT = T
    k("s_waitcnt vmcnt(20)")
    for h in range(0, 20, 4):
        for it in range(h, h+4): k(f"v_lshlrev_b32 v{C+it}, 16, v{C+it}")
        for it in range(h, h+4): k(f"v_mul_f32 v{TT+it-h}, 0xbfb8aa3b, v{C+it}")
        for it in range(h, h+4): k(f"v_exp_f32 v{TT+it-h}, v{TT+it-h}")
        for it in range(h, h+4): k(f"v_add_f32 v{TT+it-h}, 1.0, v{TT+it-h}")
        for it in range(h, h+4): k(f"v_rcp_f32 v{TT+it-h}, v{TT+it-h}")
        k("s_nop 0")
        for it in range(h, h+4): k(f"v_mul_f32 v{C+it}, v{C+it}, v{TT+it-h}")
        for it in (h, h+2): k.round2(C + it, C + it + 1, TT)
    for j in range(8): k(f"v_mov_b32 v{A+j}, 0")
    for it in range(20):
        k(f"s_waitcnt vmcnt({19-it})")
        for d in range(4): k.unpack(T + 2*d, T + 2*d + 1, W + 4*it + d)
        sel = "op_sel:[0,0,0] op_sel_hi:[1,0,1]" if it % 2 == 0 else "op_sel:[0,1,0] op_sel_hi:[1,1,1]"
        for d in range(4):
            k(f"v_pk_fma_f32 {vr(A+2*d,2)}, {vr(T+2*d,2)}, {vr(C+(it&~1),2)}, {vr(A+2*d,2)} {sel}")
    k("s_nop 1")
    for d in range(8):
        k(f"v_add_f32_dpp v{A+d}, v{A+d}, v{A+d} row_ror:8 row_mask:0xf bank_mask:0xf")
    for x in gen3.reduce_g_ops([A + d for d in range(8)], T): k(x)
    k(f"""
    v_lshlrev_b32 v7, 5, v3
    s_mul_i32 s36, s33, {3840*4}
    s_lshl_b32 s37, s32, 8
    s_add_u32 s37, s37, s36
    s_add_u32 s37, s37, {L.MODP}
    s_lshl_b32 s44, s21, 7
    s_add_u32 s44, s44, {L.FM}
    s_mov_b64 exec, 0xff
    buffer_store_dwordx4 {vr(A,4)}, v7, s[28:31], s37 offen
    buffer_store_dwordx4 {vr(A+4,4)}, v7, s[28:31], s37 offen offset:16
    s_mov_b64 exec, -1
    s_waitcnt vmcnt(0)
    """)
    flag_store("s44", 132)
    k("s_endpgm")
    k.lab("k1_fin")
    k("s_add_u32 s21, s21, 30")
    k(f"""
    s_lshl_b32 s40, s21, 9
    s_add_u32 s40, s40, {L.FM}
    v_lshlrev_b32 v16, 7, v1
    """)
    poll(16, 17, "s_mov_b64 exec, 15", "s40")
    k(f"""
    v_lshlrev_b32 v7, 2, v1
    s_lshl_b32 s22, s21, 8
    s_add_u32 s23, s22, {L.MODP}
    """)
    for part in range(4):
        k(f"buffer_load_dword v{10+part}, v7, s[28:31], s23 offen sc1")
        if part < 3: k(f"s_add_u32 s23, s23, {3840*4}")
    l1 = k.newlab("f1"); l2 = k.newlab("f2")
    k(f"""
    s_waitcnt vmcnt(0)
    v_add_f32 v10, v10, v11
    v_add_f32 v12, v12, v13
    s_nop 0
    v_add_f32 v10, v10, v12
    s_nop 0
    v_cvt_pk_bf16_f32 v10, v10, v10
    s_nop 0
    v_lshlrev_b32 v10, 16, v10
    s_sub_u32 s24, s21, 10
    s_cmp_lt_u32 s24, 10
    s_cbranch_scc1 {l1}
    s_sub_u32 s24, s21, 40
    s_cmp_lt_u32 s24, 10
    s_cbranch_scc0 {l2}
    """)
    k.lab(l1)
    k("""
    v_add_f32 v10, 1.0, v10
    s_nop 0
    v_cvt_pk_bf16_f32 v10, v10, v10
    s_nop 0
    v_lshlrev_b32 v10, 16, v10
    """)
    k.lab(l2)
    k(f"""
    s_add_u32 s22, s22, {L.MODF}
    buffer_store_dword v10, v7, s[28:31], s22 offen
    """)
    k("s_endpgm")
    k.lab("k1_pack")
    labs = [k.newlab("pk") for _ in range(4)]
    k(f"""
    v_lshrrev_b32 v3, 3, v1
    v_and_b32 v4, 7, v1                    ; chunk
    v_mul_u32_u24 v5, 144, v3
    v_lshl_add_u32 v5, v4, 4, v5
    v_add_u32 v5, s34, v5
    v_and_b32 v6, 15, v1
    v_lshrrev_b32 v7, 4, v1                ; g
    v_lshrrev_b32 v8, 2, v6
    v_lshl_add_u32 v8, v7, 3, v8           ; 8g + (i>>2)
    v_mul_u32_u24 v8, 144, v8
    v_and_b32 v9, 3, v6
    v_lshl_add_u32 v8, v9, 3, v8
    v_add_u32 v8, s34, v8
    v_lshlrev_b32 v9, 4, v1                ; lane*16
    s_cmp_lt_u32 s21, 20
    s_cbranch_scc1 {labs[0]}
    s_cmp_lt_u32 s21, 40
    s_cbranch_scc1 {labs[1]}
    s_cmp_lt_u32 s21, 94
    s_cbranch_scc1 {labs[2]}
    s_branch {labs[3]}
    """)
    for m in range(4):
        k.lab(labs[m])
        N = [640, 640, 1728, 640][m]; Kd = [640, 640, 640, 1728][m]
        pitch = N * 2
        nks = 10 if m < 3 else 9
        ub = [0, 20, 40, 94][m]
        ncb = N // 64
        k.srd(24, 12 + 2*m, Kd * N * 2)
        magic = {10: (52429, 19), 27: (2428, 16)}[ncb]
        k(f"""
        s_sub_u32 s32, s21, {ub}
        s_mul_i32 s33, s32, {magic[0]}
        s_lshr_b32 s33, s33, {magic[1]}       ; kq
        s_mul_i32 s35, s33, {ncb}
        s_sub_u32 s35, s32, s35               ; cbk
        v_mul_u32_u24 v10, {pitch}, v3
        v_lshl_add_u32 v10, v4, 4, v10
        s_mul_i32 s36, s33, {nks*32*pitch}
        s_lshl_b32 s37, s35, 7
        s_add_u32 s36, s36, s37
        """)
        R = 32
        for i in range(nks):
            for j in range(4):
                k(f"buffer_load_dwordx4 {vr(R+16*i+4*j,4)}, v10, s[24:27], s36 offen {NT}")
                if not (i == nks - 1 and j == 3): k(f"s_add_u32 s36, s36, {8*pitch}")
        for nt in range(4):
            k(f"s_lshl_b32 s36, s35, 2")
            k(f"s_add_u32 s36, s36, {nt}")
            if m < 2:
                k(f"""
                s_mul_i32 s38, s36, 6554
                s_lshr_b32 s38, s38, 16
                s_mul_i32 s39, s38, 10
                s_sub_u32 s39, s36, s39
                s_cmp_ge_u32 s39, 5
                s_cselect_b32 s40, 1, 0
                s_sub_u32 s41, s39, 6
                s_cmp_eq_u32 s39, 5
                s_cselect_b32 s41, 4, s41
                s_cmp_eq_u32 s40, 1
                s_cselect_b32 s39, s41, s39
                s_mul_i32 s37, s38, 200
                s_mul_i32 s40, s40, 100
                s_add_u32 s37, s37, s40
                s_mul_i32 s40, s33, 50
                s_add_u32 s37, s37, s40
                s_add_u32 s37, s37, s39
                s_lshl_b32 s37, s37, 10
                s_add_u32 s{44+nt}, s37, {L.W1C if m == 0 else L.W2C}
                s_movk_i32 s{48+nt}, 5120
                """)
            elif m == 2:
                k(f"""
                s_mul_i32 s38, s36, 9363
                s_lshr_b32 s38, s38, 16
                s_mul_i32 s39, s38, 7
                s_sub_u32 s39, s36, s39
                s_sub_u32 s41, s39, 1
                s_cmp_eq_u32 s39, 0
                s_cselect_b32 s41, 6, s41
                s_and_b32 s40, s38, 1
                s_cmp_eq_u32 s40, 1
                s_cselect_b32 s39, s41, s39
                s_mov_b32 s41, 4
                s_mov_b32 s40, s39
                s_cmp_ge_u32 s39, 4
                s_cselect_b32 s41, 2, s41
                s_add_u32 s42, s39, 76
                s_cmp_ge_u32 s39, 4
                s_cselect_b32 s40, s42, s40
                s_cmp_eq_u32 s39, 6
                s_cselect_b32 s41, 1, s41
                s_cselect_b32 s40, 120, s40
                s_mul_i32 s42, s33, 10
                s_mul_i32 s42, s42, s41
                s_add_u32 s40, s40, s42
                s_mul_i32 s37, s38, 140
                s_add_u32 s37, s37, s40
                s_lshl_b32 s37, s37, 10
                s_add_u32 s{44+nt}, s37, {L.W3C}
                s_lshl_b32 s{48+nt}, s41, 10
                """)
            else:
                k(f"""
                s_mul_i32 s38, s36, 13108
                s_lshr_b32 s38, s38, 16
                s_mul_i32 s39, s38, 5
                s_sub_u32 s39, s36, s39
                s_sub_u32 s41, s39, 1
                s_cmp_eq_u32 s39, 0
                s_cselect_b32 s41, 4, s41
                s_and_b32 s40, s38, 1
                s_cmp_eq_u32 s40, 1
                s_cselect_b32 s39, s41, s39
                s_mul_i32 s40, s33, 21846
                s_lshr_b32 s40, s40, 16
                s_mul_i32 s41, s40, 3
                s_sub_u32 s41, s33, s41
                s_mul_i32 s37, s38, 270
                s_mul_i32 s41, s41, 90
                s_add_u32 s37, s37, s41
                s_mul_i32 s40, s40, 5
                s_add_u32 s37, s37, s40
                s_add_u32 s37, s37, s39
                s_lshl_b32 s37, s37, 10
                s_add_u32 s{44+nt}, s37, {L.W4C}
                s_movk_i32 s{48+nt}, 10240
                """)
        cs = m in (0, 2)
        if cs:
            for nt in range(4): k(f"v_mov_b32 v{12+nt}, 0")
            k("v_mov_b32 v16, 0x3f803f80")
        F = 200
        nld = nks * 4
        def wr(i):
            k(f"s_waitcnt vmcnt({min(63, nld - 4*(i+1) + stores[0])})")
            for j in range(4):
                k(f"ds_write_b128 v5, {vr(R+16*i+4*j,4)} offset:{4608*(i&1) + 1152*j}")
        stores = [0]
        wr(0)
        for i in range(nks):
            k("s_waitcnt lgkmcnt(0)")
            for nt in range(4):
                k(f"ds_read_b64_tr_b16 {vr(F+16*(i&1)+4*nt,2)}, v8 offset:{4608*(i&1) + 32*nt}")
                k(f"ds_read_b64_tr_b16 {vr(F+16*(i&1)+4*nt+2,2)}, v8 offset:{4608*(i&1) + 32*nt + 576}")
            if i + 1 < nks: wr(i + 1)
            k(f"s_waitcnt lgkmcnt({4 if i + 1 < nks else 0})")
            for nt in range(4):
                k(f"buffer_store_dwordx4 {vr(F+16*(i&1)+4*nt,4)}, v9, s[28:31], s{44+nt} offen")
                k(f"s_add_u32 s{44+nt}, s{44+nt}, s{48+nt}")
                stores[0] += 1
                if cs:
                    for d in range(4): k(f"v_dot2_f32_bf16 v{12+nt}, v{F+16*(i&1)+4*nt+d}, v16, v{12+nt}")
        if cs:
            k("s_nop 2")
            for x in gen3.reduce_g_ops([12, 13, 14, 15], 20): k(x)
            k(f"""
            s_mul_i32 s38, s33, {1792*4}
            s_lshl_b32 s39, s35, 8
            s_add_u32 s38, s38, s39
            s_add_u32 s38, s38, {L.CS3P if m == 2 else L.CS1P}
            v_lshlrev_b32 v14+0, 0, v14
            """.replace("v_lshlrev_b32 v14+0, 0, v14", "v_lshlrev_b32 v17, 2, v1"))
            k("s_mov_b64 exec, 0xffff")
            for nt in range(4):
                k(f"buffer_store_dword v{12+nt}, v17, s[28:31], s38 offen offset:{64*nt}")
        k("s_endpgm")
    k.lab(end)
    k("s_endpgm")
    return k

def build(kerns, path):
    hdr = open(os.path.join(os.path.dirname(os.path.abspath(__file__)), "..", NAME + ".s.ref")).read().split("\n")
    com = [l for l in hdr if l.startswith(";") and "@launch" not in l and "Override launch" not in l and "grid=ceil" not in l]
    s = "\n".join(com) + "\n"
    for k in kerns:
        s += f"; @launch kernel={k.name} grid=({k.grid},1,1) block=({k.block},1,1) lds={k.lds}\n"
    s += '.amdgcn_target "amdgcn-amd-amdhsa--gfx950"\n.text\n'
    for k in kerns:
        s += k.text()
    s += '.section .rodata,"a"\n'
    for k in kerns:
        s += k.kd()
    open(path, "w").write(s)

if __name__ == "__main__":
    out = sys.argv[1] if len(sys.argv) > 1 else os.path.join(os.path.dirname(os.path.abspath(__file__)), "..", NAME + ".s")
    kerns = [gen_k0(), gen_k1()]
    try:
        import gen3
        kerns += [gen3.gen_chain(Kern)]
    except ImportError:
        raise
    build(kerns, out)
    print("wrote", out)
```

```python
import os, struct
import layout as L
SZ_SD = 2048 * 640 * 2
C0 = -2.0 * 0.7978845608028654 * 1.4426950408889634
C1 = C0 * 0.044715
def fhex(x):
    return "0x%08x" % struct.unpack("<I", struct.pack("<f", x))[0]
def vr(a, n): return f"v[{a}:{a+n-1}]" if n > 1 else f"v{a}"
def ar(a, n): return f"a[{a}:{a+n-1}]"
E = lambda n, d: int(os.environ.get(n, d))
SPIN = E("SPIN", 20000)
XSC = os.environ.get("XSC", "sc1")

class VQ:
    def __init__(self, k): self.k, self.q, self.seen = k, [], set()
    def note(self, tag): self.q.append(tag); self.seen.add(tag)
    def issue(self, text, tag): self.k(text); self.q.append(tag); self.seen.add(tag)
    def waittext(self, tag, extra=""):
        assert tag in self.seen, f"wait for {tag} before issue"
        idx = [i for i, t in enumerate(self.q) if t == tag]
        if not idx:
            return f"s_waitcnt {extra}" if extra else None
        n = len(self.q) - 1 - idx[-1]
        self.q = self.q[idx[-1] + 1:] if n <= 63 else self.q[-63:]
        return f"s_waitcnt vmcnt({min(n, 63)}) {extra}"
    def wait(self, tag, extra=""):
        t = self.waittext(tag, extra)
        if t: self.k(t)
    def drain(self, extra=""):
        self.k(f"s_waitcnt vmcnt(0) {extra}"); self.q = []

def il(main, side, frac=1.0):
    out = []; n = max(1, int(len(main) * frac)); m = len(side); si = 0
    for i, x in enumerate(main):
        out.append(x)
        want = min(m, m * (i + 1) // n)
        while si < want:
            out.append(side[si]); si += 1
    out += side[si:]
    return out

def zipl(*ls):
    out = []; ls = [list(l) for l in ls]
    while any(ls):
        for l in ls:
            if l: out.append(l.pop(0))
    return out

def ln_ops(s1, s2, t, n):
    return [f"v_mul_f32 v{s1}, {fhex(1.0/n)}, v{s1}", f"v_mul_f32 v{s2}, {fhex(1.0/n)}, v{s2}",
            f"v_fma_f32 v{s2}, -v{s1}, v{s1}, v{s2}", f"v_max_f32 v{s2}, 0, v{s2}",
            f"v_cvt_pk_bf16_f32 v{t}, v{s1}, v{s2}", f"v_lshlrev_b32 v{s1}, 16, v{t}", f"v_and_b32 v{s2}, 0xffff0000, v{t}",
            f"v_add_f32 v{s2}, {fhex(1e-5)}, v{s2}", f"v_cvt_pk_bf16_f32 v{t}, v{s2}, v{s2}", f"v_lshlrev_b32 v{s2}, 16, v{t}",
            f"v_sqrt_f32 v{s2}, v{s2}", "s_nop 0", f"v_cvt_pk_bf16_f32 v{t}, v{s2}, v{s2}", f"v_lshlrev_b32 v{s2}, 16, v{t}",
            f"v_rcp_f32 v{s2}, v{s2}", "s_nop 0", f"v_mul_f32 v{s1}, v{s1}, v{s2}", f"v_sub_f32 v{s1}, 0, v{s1}"]

def reduce16_ops(regs):
    o = []
    for ci, ctl in enumerate(("quad_perm:[1,0,3,2]", "quad_perm:[2,3,0,1]", "row_half_mirror", "row_mirror")):
        if len(regs) < 3 or ci == 0: o.append("s_nop 1")
        for a in regs: o.append(f"v_add_f32_dpp v{a}, v{a}, v{a} {ctl} row_mask:0xf bank_mask:0xf")
    return o

def reduce_g_ops(regs, t):
    o = []
    for sw in ("v_permlane32_swap_b32", "v_permlane16_swap_b32"):
        for i, a in enumerate(regs): o.append(f"v_mov_b32 v{t+i}, v{a}")
        o.append("s_nop 1")
        for i, a in enumerate(regs): o.append(f"{sw} v{t+i}, v{a}")
        o.append("s_nop 1")
        for i, a in enumerate(regs): o.append(f"v_add_f32 v{a}, v{a}, v{t+i}")
    return o

def gelu_ops(z, t, vc, n):
    o = []
    for i in range(0, n, 2): o.append(f"v_pk_mul_f32 {vr(t+i,2)}, {vr(z+i,2)}, {vr(z+i,2)}")
    for i in range(0, n, 2): o.append(f"v_pk_fma_f32 {vr(t+i,2)}, {vr(t+i,2)}, {vr(vc,2)}, {vr(vc,2)} op_sel:[0,0,1] op_sel_hi:[1,0,1]")
    for i in range(0, n, 2): o.append(f"v_pk_mul_f32 {vr(t+i,2)}, {vr(t+i,2)}, {vr(z+i,2)}")
    for i in range(n): o.append(f"v_exp_f32 v{t+i}, v{t+i}")
    for i in range(0, n, 2): o.append(f"v_pk_add_f32 {vr(t+i,2)}, {vr(t+i,2)}, 1.0 op_sel_hi:[1,0]")
    for i in range(n): o.append(f"v_rcp_f32 v{t+i}, v{t+i}")
    for i in range(0, n, 2): o.append(f"v_pk_mul_f32 {vr(z+i,2)}, {vr(z+i,2)}, {vr(t+i,2)}")
    return o

BC = "op_sel:[0,1,0] op_sel_hi:[1,1,0]"

YL, AT, MODL = 0, 40960, 122880
RSL = 138240
CSL = 139264
EX = 143360
CS3L = 162816
LDS_TOTAL = 163840

G4MAP = """s_and_b32 s57, s26, 7
    s_lshr_b32 s27, s26, 3
    s_and_b32 s58, s2, 7
    s_lshl_b32 s58, s58, 2
    s_add_u32 s58, s58, s27""" if os.environ.get("G4_1D", "1") == "1" else ""
G3MAP = """s_and_b32 s52, s26, 15
    s_lshr_b32 s27, s26, 4
    s_and_b32 s53, s2, 7
    s_lshl_b32 s53, s53, 1
    s_add_u32 s53, s53, s27""" if os.environ.get("G3_1D", "0") == "1" else ""
def gen_chain(Kern, front=None):
    kern = Kern("chain_kernel", 256, 256, LDS_TOTAL, vgpr=256, sgpr=100, agpr=256)
    if front:
        front(kern)
        kern.lab("main_join")
        kern("s_mov_b32 s2, s99")
    class KW:
        def __init__(s): s.clock = 0.0; s.last = 0.0; s.src = None; s.interval = 80; s.busy = False
        def cost(s, ln):
            op = ln.split()[0]
            if op.startswith("v_mfma"): return 16
            if op.startswith(("v_exp", "v_rcp", "v_sqrt", "v_rsq", "v_permlane")): return 8.3
            if op.startswith("ds_write"): return 35
            if op.startswith("ds_"): return 13
            if op.startswith("buffer_"): return 14
            if op.startswith("v_"): return 4.2
            return 4.5
        def __call__(s, txt):
            for ln in txt.strip("\n").split("\n"):
                ln = ln.strip()
                if not ln: continue
                kern(ln)
                if ln.startswith(";"): continue
                s.clock += s.cost(ln)
                if s.src and not s.busy and s.clock - s.last >= s.interval and not ln.startswith(("s_cmp", "s_cbranch", "s_mov_b32 m0", "s_add_u32 m0", "s_mov_b64 exec", "s_mov_b32 exec", "v_cmp", "v_readfirstlane", "s_nop")) and s.safe:
                    s.busy = True
                    if s.src(): s.last = s.clock
                    s.busy = False
        safe = True
        def lab(s, l): kern.lab(l)
        def newlab(s, p="L"): return kern.newlab(p)
        def srd(s, d, b, size, off=0): kern.srd(d, b, size, off)
    k = KW()
    end = "chain_end"
    STOP = os.environ.get("STOP", "")
    vq = VQ(k)
    nst = [0, 0]
    SKIP = 8
    def stamp(grp=None):
        if os.environ.get("PROF3") and nst[0] < 18 and not (os.environ.get("PG3") and nst[1] < SKIP and (nst.__setitem__(1, nst[1] + 1) or True) and nst[1] > 1):
            op = "s_memtime" if os.environ.get("PROF3") == "cyc" else "s_memrealtime"
            k(f"{op} s[{64+2*nst[0]}:{65+2*nst[0]}]"); nst[0] += 1
    def emit(lst):
        for x in lst: k(x)
    class Pend:
        def __init__(s, items=()): s.items = list(items)
        def add(s, items): s.items += list(items)
        def pop(s, n=1):
            if getattr(s, "late", False) and n < 50: return
            for _ in range(n):
                if s.items:
                    t, tg = s.items.pop(0); vq.issue(t, tg)
        def has(s, tag): return any(tg == tag for _, tg in s.items)
    stamp()
    k(f"""
    s_cmp_ge_u32 s2, 256
    s_cbranch_scc1 {end}
    s_load_dwordx2 s[4:5], s[0:1], 0
    s_load_dwordx2 s[6:7], s[0:1], 104
    s_load_dwordx2 s[10:11], s[0:1], 120
    v_lshrrev_b32 v2, 6, v0
    v_and_b32 v1, 63, v0
    v_readfirstlane_b32 s20, v2
    s_and_b32 s25, s2, 7                ; x
    s_lshr_b32 s26, s2, 3               ; idx
    s_lshl_b32 s23, s25, 3
    s_lshr_b32 s27, s26, 2
    s_add_u32 s23, s23, s27
    s_and_b32 s24, s26, 3               ; j
    s_and_b32 s21, s20, 1
    s_lshr_b32 s22, s20, 1              ; kh
    v_lshrrev_b32 v3, 4, v1             ; g  (= r4)
    v_and_b32 v4, 15, v1                ; m  (= c)
    v_lshlrev_b32 v8, 4, v1             ; lane*16
    s_waitcnt lgkmcnt(0)
    """)
    k.srd(28, 10, 0x10000000)
    XR, XF, PM, T, ONE = 32, 72, 152, 192, 224
    SA, NB_ = 216, 220
    HBR = 16
    k(f"""
    s_mul_i32 s25, s20, 10240
    s_add_u32 s10, s25, {YL}
    s_mul_i32 s11, s23, 40960
    s_add_u32 s11, s11, s25
    s_add_u32 s11, s11, {L.YT}
    s_lshl_b32 s12, s20, 10
    s_add_u32 s13, s12, {L.MODF + 7680}
    s_add_u32 s12, s12, {MODL + 7680}
    s_lshl_b32 s14, s21, 10
    s_add_u32 s14, s14, {CSL}
    s_mul_i32 s15, s21, {1792*4}
    s_mul_i32 s25, s24, 640
    s_add_u32 s15, s15, s25
    s_add_u32 s15, s15, {L.CS1P}
    """)
    first = []
    for i in range(10):
        pre = "s_mov_b32 m0, s10\ns_add_u32 s10, s10, 4096\n" if i % 4 == 0 else ""
        post = "\ns_add_u32 s11, s11, 4096" if i % 4 == 3 else ""
        first.append((pre + f"buffer_load_dwordx4 v8, s[28:31], s11 offen offset:{(i%4)*1024} lds" + post, "y"))
    first.append(("s_mov_b32 m0, s12\ns_nop 0\nbuffer_load_dwordx4 v8, s[28:31], s13 offen lds", "y"))
    first.append((f"s_mov_b32 m0, {MODL + 7680 + 4096}\ns_mov_b32 s13, {L.MODF + 7680 + 4096}\nbuffer_load_dwordx4 v8, s[28:31], s13 offen lds", "y"))
    first.append(("s_mov_b32 m0, s14\ns_nop 0\nbuffer_load_dwordx4 v8, s[28:31], s15 offen lds", "y"))
    first = Pend(first)
    if not front: first.pop(100)
    realk = k
    class Cap:
        def __init__(s): s.L = []
        def __call__(s, txt):
            for ln in txt.strip("\n").split("\n"):
                ln = ln.strip()
                if ln: s.L.append(ln)
        def srd(s, d, b, size):
            s(f"s_mov_b32 s{d}, s{b}\ns_mov_b32 s{d+1}, s{b+1}\ns_mov_b32 s{d+2}, {size}\ns_mov_b32 s{d+3}, 0x00020000")
    cap = Cap()
    k = cap
    k.srd(32, 6, SZ_SD)
    vY, vPM, vAW, vA0e, vA0o, vA1e, vA1o = 226, 227, 228, 229, 230, 231, 232
    vCS, vCS4, vRS, vHB = 233, 234, 235, 236
    vHP, vHL, vFP, vFL, vPL = 241, 242, 243, 244, 245
    vEXW, vEXR = 246, 247
    k(f"""
    s_mul_i32 s36, s24, 200
    s_mul_i32 s37, s21, 100
    s_add_u32 s36, s36, s37
    s_mul_i32 s37, s22, 50
    s_add_u32 s36, s36, s37
    s_lshl_b32 s36, s36, 10
    s_add_u32 s37, s36, {L.W2C}
    s_add_u32 s36, s36, {L.W1C}
    v_lshrrev_b32 v2, 1, v3
    s_lshl_b32 s26, s21, 2
    v_add_u32 v2, s26, v2
    v_and_b32 v7, 7, v4
    v_xor_b32 v2, v2, v7
    v_lshlrev_b32 v2, 4, v2
    v_lshl_add_u32 v{vY}, v4, 8, v2
    v_and_b32 v2, 1, v3
    v_lshl_add_u32 v{vY}, v2, 3, v{vY}
    s_mul_i32 s26, s22, 20480
    s_add_u32 s27, s26, {YL}
    v_add_u32 v{vY}, s27, v{vY}
    v_lshlrev_b32 v{vPM}, 5, v4
    v_add_u32 v{vPM}, {MODL}, v{vPM}
    s_lshl_b32 s27, s21, 3
    v_add_u32 v2, s27, v3
    v_xor_b32 v2, v2, v7
    v_lshlrev_b32 v2, 4, v2
    v_and_b32 v7, 3, v4
    v_lshl_add_u32 v2, v7, 8, v2
    v_lshrrev_b32 v7, 2, v4
    v_lshl_add_u32 v2, v7, 10, v2
    s_add_u32 s27, s26, {AT}
    v_add_u32 v{vAW}, s27, v2
    v_xor_b32 v2, v4, v3                 ; m ^ g
    v_lshlrev_b32 v2, 4, v2
    v_lshl_add_u32 v2, v3, 8, v2
    v_xor_b32 v7, 64, v2                 ; odd-ks
    s_mul_i32 s26, s22, 30720
    s_add_u32 s26, s26, {AT}
    s_mul_i32 s27, s22, 10240
    s_sub_u32 s27, {AT + 20480}, s27
    v_add_u32 v{vA0e}, s26, v2
    v_add_u32 v{vA0o}, s26, v7
    v_add_u32 v{vA1e}, s27, v2
    v_add_u32 v{vA1o}, s27, v7
    v_lshlrev_b32 v2, 4, v3
    s_mul_i32 s26, s21, {96*4}
    s_add_u32 s26, s26, {CSL}
    v_add_u32 v{vCS}, s26, v2
    s_mul_i32 s26, s21, {16*4}
    s_add_u32 s26, s26, {CSL + 64*4}
    v_add_u32 v{vCS4}, s26, v2
    s_lshl_b32 s26, s22, 7
    s_add_u32 s26, s26, {RSL}
    v_lshl_add_u32 v{vRS}, v4, 3, s26
    s_mul_i32 s39, s24, 5
    s_mul_i32 s40, s21, 3
    s_add_u32 s40, s40, s39
    s_add_u32 s41, s39, 2                ; ksL = 5j + 2
    v_lshrrev_b32 v12, 1, v3             ; g>>1
    v_and_b32 v13, 1, v3
    v_lshlrev_b32 v13, 3, v13            ; (g&1)*8
    """)
    for t in range(5):
        if t < 4:
            k(f"s_add_u32 s26, s40, {t//2}")
            k(f"v_add_u32 v14, {2*(t&1)}, v12")
        else:
            k(f"s_mov_b32 s26, s41")
            k(f"s_lshl_b32 s27, s21, 1")
            k(f"v_add_u32 v14, s27, v12")
        k(f"""
        s_and_b32 s27, s26, 1
        s_lshl_b32 s27, s27, 2
        v_add_u32 v15, s27, v14
        v_xor_b32 v15, v15, v4
        v_lshlrev_b32 v15, 4, v15
        v_lshl_add_u32 v15, v14, 8, v15
        v_add_u32 v15, v15, v13
        s_mul_i32 s27, s22, 20
        s_add_u32 s27, s27, s26
        s_lshl_b32 s27, s27, 10
        s_add_u32 s27, s27, {AT}
        v_add_u32 v{vHB+t}, s27, v15
        """)
    def fm_store_addr(vP, vL, shift_sgpr, nks, rowbase_s, half_s, kk):
        o = f"v_add_u32 v{vP}, {rowbase_s}, v4\n"
        if shift_sgpr:
            o += f"v_add_u32 v{vP}, {shift_sgpr}, v{vP}\ns_movk_i32 s27, 2048\nv_cmp_gt_u32 s[60:61], s27, v{vP}\n"
        o += f"""
        v_lshrrev_b32 v{vL}, 4, v{vP}
        v_and_b32 v{vP}, 15, v{vP}
        s_mov_b32 s27, {nks*1024}
        v_mul_lo_u32 v{vL}, v{vL}, s27
        v_lshl_add_u32 v{vL}, v{vP}, 4, v{vL}
        v_and_b32 v{vP}, 1, v3
        v_lshlrev_b32 v{vP}, 9, v{vP}
        v_lshrrev_b32 v2, 1, v3
        v_lshl_add_u32 v{vP}, v2, 8, v{vP}
        v_add_u32 v{vP}, v{vP}, v{vL}
        s_lshl_b32 s27, {half_s}, 9
        v_lshl_add_u32 v{vL}, v2, 8, v{vL}
        v_add_u32 v{vL}, s27, v{vL}
        v_and_b32 v2, 1, v3
        v_lshl_add_u32 v{vL}, v2, 3, v{vL}
        """
        kk(o)
    k(f"""
    s_lshr_b32 s26, s24, 1
    s_add_u32 s26, s26, 1
    s_sub_u32 s27, 0, s26
    s_and_b32 s42, s24, 1
    s_cmp_eq_u32 s42, 1
    s_cselect_b32 s42, s27, s26          ; shift: j 0:+1 1:-1 2:+2 3:-2
    s_lshl_b32 s43, s23, 5
    s_lshl_b32 s26, s22, 4
    s_add_u32 s43, s43, s26
    """)
    fm_store_addr(vHP, vHL, "s42", 20, "s43", "s21", k)
    fm_store_addr(vFP, vFL, None, 20, "s43", "s21", k)
    k(f"""
    s_lshl_b32 s44, s40, 10
    s_add_u32 s38, s44, {L.X1}
    s_add_u32 s44, s44, {L.H1S}
    s_lshl_b32 s45, s41, 10
    s_add_u32 s39, s45, {L.X1}           ; X1 leftover
    s_add_u32 s45, s45, {L.H1S}
    s_lshl_b32 s46, s23, 2
    s_add_u32 s46, s46, s24
    s_lshl_b32 s46, s46, 7
    s_add_u32 s49, s46, {L.F2}           ; F2 flag
    s_add_u32 s46, s46, {L.F1}           ; F1 flag
    ; G2 poll lanes: 0:(rb-1,2kh) 1:(rb,2kh) 2:(rb,2kh+1) 3:(rb+1,2kh+1)
    v_add_u32 v7, 1, v1
    v_lshrrev_b32 v7, 1, v7
    v_add_u32 v7, s23, v7
    v_subrev_u32 v7, 1, v7
    v_max_i32 v7, 0, v7
    v_min_i32 v7, 63, v7
    v_lshrrev_b32 v2, 1, v1
    s_lshl_b32 s26, s22, 1
    v_add_u32 v2, s26, v2
    v_lshl_add_u32 v7, v7, 2, v2
    v_lshlrev_b32 v{vPL}, 7, v7
    ; G2 X bases
    s_lshl_b32 s26, s23, 1
    s_add_u32 s27, s26, s22
    s_mul_i32 s27, s27, 20
    s_mul_i32 s3, s22, 10
    s_add_u32 s27, s27, s3
    s_lshl_b32 s27, s27, 10
    s_add_u32 s50, s27, {L.H1S}
    s_add_u32 s27, s26, 1
    s_sub_u32 s27, s27, s22
    s_mul_i32 s27, s27, 20
    s_add_u32 s27, s27, s3
    s_lshl_b32 s27, s27, 10
    s_add_u32 s51, s27, {L.H1S}
    s_mul_i32 s26, s20, 5120
    s_add_u32 s26, s26, {EX}
    v_add_u32 v{vEXW}, s26, v8
    s_xor_b32 s27, s20, 2
    s_mul_i32 s27, s27, 5120
    s_add_u32 s27, s27, {EX}
    v_add_u32 v{vEXR}, s27, v8
    ; G3 / G4 tile ids (2D XCD partition: XCD pair shares 512 rows, each XCD takes half of the columns)
    s_lshr_b32 s26, s2, 3                ; idx
    s_and_b32 s3, s2, 7                  ; x
    s_and_b32 s4, s3, 1                  ; x&1
    s_lshr_b32 s3, s3, 1                 ; x>>1
    s_and_b32 s52, s26, 7
    s_lshl_b32 s27, s4, 3
    s_add_u32 s52, s52, s27              ; j16 = 8(x&1) + (idx&7)
    s_lshr_b32 s27, s26, 3
    s_lshl_b32 s53, s3, 2
    s_add_u32 s53, s53, s27
    s_and_b32 s57, s26, 3
    s_lshl_b32 s27, s4, 2
    s_add_u32 s57, s57, s27              ; j8 = 4(x&1) + (idx&3)
    s_lshr_b32 s27, s26, 2
    s_lshl_b32 s58, s3, 3
    s_add_u32 s58, s58, s27
    {G4MAP}
    {G3MAP}
    s_mul_i32 s54, s52, {140*1024}
    s_add_u32 s54, s54, {L.W3C}
    s_mul_i32 s59, s57, {270*1024}
    s_add_u32 s59, s59, {L.W4C}
    v_mov_b32 v{ONE}, 0x3f803f80
    """)
    for s in range(2):
        for b in (SA, NB_):
            k(f"v_mov_b32 v{b+2*s}, 0"); k(f"v_mov_b32 v{b+2*s+1}, 0")
    k = realk
    capL = cap.L
    def tile_dma(sbase, f0, n, s0, tag):
        q = (n + 3) // 4
        o = []
        for i in range(q):
            pre = ""
            if i == 0:
                pre = f"s_mul_i32 s25, s20, {q}\n" + (f"s_min_u32 s25, s25, {n-q}\n" if n % 4 else "") + f"s_lshl_b32 s25, s25, 10\ns_add_u32 s62, s25, {s0*1024}\ns_add_u32 s63, s25, s{sbase}\ns_add_u32 s63, s63, {f0*1024}\ns_mov_b32 m0, s62\n"
            elif i % 4 == 0:
                pre = "s_add_u32 s62, s62, 4096\ns_add_u32 s63, s63, 4096\ns_mov_b32 m0, s62\n"
            o.append((pre + f"buffer_load_dwordx4 v8, s[28:31], s63 offen offset:{(i%4)*1024} lds", tag))
        return o
    w2reg = lambda f: 200 + 4*f if f < 14 else 4*(f - 14)
    def wlist(sreg, tagp, reg=lambda f: 4*f):
        o = []
        for f in range(50):
            pre = f"s_add_u32 s{sreg}, s{sreg}, 4096\n" if (f and f % 4 == 0) else ""
            o.append((pre + f"buffer_load_dwordx4 {ar(reg(f),4)}, v8, s[28:31], s{sreg} offen offset:{(f%4)*1024}", f"{tagp}{f//5}"))
        return o
    w1 = Pend(wlist(36, "w1_"))
    w2 = Pend(wlist(37, "w2_", w2reg))
    w2l = w2.items
    w1.add(w2l[:14]); w2.items = w2l[14:]
    ksdone = [0]; nw2 = [14]
    def g1src():
        if w1.items:
            w1.pop(1); return True
        f = nw2[0]
        if f < 50 and (f - 14) // 5 < ksdone[0]:
            w2.pop(1); nw2[0] += 1; return True
        return False
    if front:
        for x in capL: k(x)
        lp = k.newlab("cp"); ld = k.newlab("cd"); lw = k.newlab("cw")
        k(f"""
        s_cmp_lg_u32 s20, 0
        s_cbranch_scc1 {lw}
        v_lshlrev_b32 v7, 7, v1
        v_mov_b32 v9, 10
        v_mov_b32 v10, 46
        v_cmp_gt_u32 vcc, 16, v1
        s_mov_b32 s47, 0
        s_mov_b32 s48, {L.FC}
        s_nop 0
        v_cndmask_b32 v9, v10, v9, vcc
        s_mov_b64 exec, 0xfffff
        """)
        ls = k.newlab("cs")
        k.lab(lp)
        k(f"""
        buffer_load_dword v2, v7, s[28:31], s48 offen sc1
        s_add_u32 s47, s47, 1
        s_waitcnt vmcnt(0)
        v_cmp_ne_u32 vcc, v9, v2
        s_cmp_ge_u32 s47, {SPIN}
        s_cbranch_scc1 {ld}
        s_cbranch_vccz {ld}
        v_cmp_ne_u32 vcc, 0, v2
        s_nop 1
        s_and_b32 s26, vcc_lo, 0xffff
        s_cmp_lg_u32 s26, 0
        s_cbranch_scc1 {ls}
        s_sleep {E("SLPL", 16)}
        """)
        k.lab(ls)
        k(f"""
        s_sleep {E("SLPS", 2)}
        s_branch {lp}
        """)
        k.lab(ld)
        k("s_mov_b64 exec, -1")
        k.lab(lw)
        k("s_barrier")
        stamp()
        first.pop(100)
        for _ in range(E("W1B", 12)): g1src()
        k.interval = E("IV1", 70); k.last = k.clock; k.src = g1src
    else:
        k.interval = E("IV1", 70); k.last = k.clock; k.src = g1src
        for x in capL: k(x)
        for _ in range(E("W1B", 2)): g1src()
    vq.wait("y")
    k("s_barrier")
    stamp()
    k(f"v_xor_b32 v12, 32, v{vY}")
    def rd_x(c_):
        t, s_ = c_ // 2, c_ % 2
        va = vY if s_ == 0 else 12
        return [f"ds_read_b64 {vr(XR+4*c_,2)}, v{va} offset:{t*4096}", f"ds_read_b64 {vr(XR+4*c_+2,2)}, v{va} offset:{t*4096+128}"]
    emit(rd_x(0) + rd_x(1) + rd_x(2))
    for c_ in range(10):
        s_ = c_ % 2
        nxt = rd_x(c_ + 3) if c_ + 3 < 10 else []
        k(f"s_waitcnt lgkmcnt({min(4, 2*(9-c_))})")
        v = []
        for d in range(4):
            x = XR + 4*c_ + d
            v.append(f"v_dot2_f32_bf16 v{NB_+2*s_}, v{x}, v{ONE}, v{NB_+2*s_}")
            v.append(f"v_lshlrev_b32 v{XF+8*c_+2*d}, 16, v{x}")
            v.append(f"v_dot2_f32_bf16 v{NB_+2*s_+1}, v{x}, v{x}, v{NB_+2*s_+1}")
            v.append(f"v_and_b32 v{XF+8*c_+2*d+1}, 0xffff0000, v{x}")
        emit(il(v, nxt, 0.6))
    k("s_nop 2")
    emit(reduce16_ops([NB_, NB_+1, NB_+2, NB_+3]))
    emit(zipl(ln_ops(NB_, NB_+1, T, 640), ln_ops(NB_+2, NB_+3, T+1, 640)))
    stamp()
    def rd_c(t):
        b = t & 1
        o = []
        for vi, vec in enumerate((4, 3)):
            o.append(f"ds_read_b128 {vr(PM+16*b+8*vi,4)}, v{vPM} offset:{vec*2560+t*512}")
            o.append(f"ds_read_b128 {vr(PM+16*b+8*vi+4,4)}, v{vPM} offset:{vec*2560+t*512+16}")
        return o
    for s in range(2):
        k(f"v_mov_b32 v{SA+2*s}, 0"); k(f"v_mov_b32 v{SA+2*s+1}, 0")
    k(f"v_xor_b32 v12, 64, v{vAW}")
    emit(rd_c(0))
    for c_ in range(10):
        t, s = c_ // 2, c_ % 2
        nxt = rd_c(t + 1) if (s == 0 and t < 4) else []
        if s == 0: k(f"s_waitcnt lgkmcnt({1 if c_ else 0})")
        M = PM + 16*(t & 1); S_ = SA + 2*s; N_ = NB_ + 2*s
        X_ = XF + 8*c_; R_ = XR + 4*c_
        v = []
        for d in range(4): v.append(f"v_pk_fma_f32 {vr(X_+2*d,2)}, {vr(X_+2*d,2)}, {vr(N_,2)}, {vr(N_,2)} {BC}")
        for d in range(4): v.append(f"v_pk_fma_f32 {vr(X_+2*d,2)}, {vr(X_+2*d,2)}, {vr(M+2*d,2)}, {vr(M+8+2*d,2)}")
        for d in range(4): v.append(f"v_cvt_pk_bf16_f32 v{R_+d}, v{X_+2*d}, v{X_+2*d+1}")
        for d in range(4):
            v.append(f"v_dot2_f32_bf16 v{S_}, v{R_+d}, v{ONE}, v{S_}")
            v.append(f"v_dot2_f32_bf16 v{S_+1}, v{R_+d}, v{R_+d}, v{S_+1}")
        emit(il(v, nxt, 0.6))
        k(f"ds_write_b128 v{vAW if s == 0 else 12}, {vr(R_,4)} offset:{4096*t}")
    while w1.has("w1_9"): w1.pop(1)
    k("""
    s_waitcnt lgkmcnt(0)
    s_barrier
    """)
    ln3 = [x for x in reduce16_ops([SA, SA+1, SA+2, SA+3]) + zipl(ln_ops(SA, SA+1, T, 640), ln_ops(SA+2, SA+3, T+1, 640)) if not x.startswith("s_nop")]
    ln3 += [f"s_lshl_b32 s26, s20, 6", f"v_lshl_add_u32 v2, v3, 3, s26", f"v_add_u32 v2, {RSL}, v2", f"ds_write_b64 v2, {vr(SA,2)}", f"ds_write_b64 v2, {vr(SA+2,2)} offset:32"]
    stamp()
    ACC, AF, RCV = 32, 72, 88
    CS, CS2, RS, GT, VC, PK = 112, 132, 152, 160, 30, 180
    def aread(ks):
        b = AF + 8 * (ks & 1)
        va, vb = (vA0e, vA1e) if ks % 2 == 0 else (vA0o, vA1o)
        return [f"ds_read_b128 {vr(b,4)}, v{va} offset:{ks*1024}", f"ds_read_b128 {vr(b+4,4)}, v{vb} offset:{ks*1024}"]
    side = []
    for t in range(4):
        side.append(f"ds_read_b128 {vr(CS+4*t,4)}, v{vCS} offset:{64*t}")
        side.append(f"ds_read_b128 {vr(CS2+4*t,4)}, v{vCS} offset:{64*t+1024}")
    side.append(f"ds_read_b128 {vr(CS+16,4)}, v{vCS4}")
    side.append(f"ds_read_b128 {vr(CS2+16,4)}, v{vCS4} offset:1024")
    for t in range(5): side.append(f"ds_read_b64 {vr(HBR+2*t,2)}, v{vHB+t}")
    emit(aread(0))
    for ks in range(10):
        ksdone[0] = ks
        vq.wait(f"w1_{ks}", "lgkmcnt(0)")
        b = AF + 8 * (ks & 1)
        mf = []
        for t in range(5):
            for rt in range(2):
                a = ACC + (rt * 5 + t) * 4
                c = "0" if ks == 0 else vr(a, 4)
                mf.append(f"v_mfma_f32_16x16x32_bf16 {vr(a,4)}, {ar((ks*5+t)*4,4)}, {vr(b+4*rt,4)}, {c}")
        ds = aread(ks + 1) if ks < 9 else []
        ds += side[:2]; side = side[2:]
        for i, m_ in enumerate(mf):
            k(m_)
            if i % 2 == 1 and i < 8 and ds: k(ds.pop(0))
            elif ln3 and ks >= 1: k(ln3.pop(0))
        emit(ds)
    assert not side
    emit(ln3)
    stamp()
    def exchange():
        k("s_nop 4")
        for t in range(5):
            k(f"ds_write_b128 v{vEXW}, {vr(ACC+(5+t)*4,4)} offset:{1024*t}")
    def exchange2():
        k("s_waitcnt lgkmcnt(0)")
        k("s_barrier")
        for t in range(5):
            k(f"ds_read_b128 {vr(RCV+4*t,4)}, v{vEXR} offset:{1024*t}")
    ksdone[0] = 10
    k("s_waitcnt lgkmcnt(0)")
    exchange()
    for t in range(5):
        for i in (0, 2):
            k(f"v_pk_add_f32 {vr(CS+4*t+i,2)}, {vr(CS+4*t+i,2)}, {vr(CS2+4*t+i,2)}")
    k(f"v_mov_b32 v{VC}, {fhex(C1)}")
    k(f"v_mov_b32 v{VC+1}, {fhex(C0)}")
    k("s_waitcnt lgkmcnt(0)")
    k("s_barrier")
    k(f"ds_read_b64 {vr(RS,2)}, v{vRS}")
    for t in range(5):
        k(f"ds_read_b128 {vr(RCV+4*t,4)}, v{vEXR} offset:{1024*t}")
    k("s_waitcnt lgkmcnt(5)")
    for t in range(5):
        for i in (0, 2): k(f"v_pk_mul_f32 {vr(CS+4*t+i,2)}, {vr(CS+4*t+i,2)}, {vr(RS,2)} op_sel_hi:[1,0]")
    for t in range(5):
        z = ACC + 4*t
        k(f"s_waitcnt lgkmcnt({4-t})")
        for i in (0, 2): k(f"v_pk_add_f32 {vr(z+i,2)}, {vr(z+i,2)}, {vr(RCV+4*t+i,2)}")
    for t in range(5):
        z = ACC + 4*t
        for i in (0, 2): k(f"v_pk_fma_f32 {vr(z+i,2)}, {vr(z+i,2)}, {vr(RS,2)}, {vr(CS+4*t+i,2)} op_sel:[0,1,0] op_sel_hi:[1,1,1]")
    if os.environ.get("VERB"): print("W2 left at gelu start", 50 - nw2[0], "w1 left", len(w1.items))
    gl = gelu_ops(ACC, 192, VC, 20)
    cut = int(len(gl) * float(os.environ.get("G1CUT", "1.0")))
    emit(gl[:cut])
    k.src = None
    emit(gl[cut:])
    if os.environ.get("VERB"): print("W2 left after gelu", 50 - nw2[0])
    for t in range(5):
        k(f"v_cvt_pk_bf16_f32 v{PK+2*t}, v{ACC+4*t}, v{ACC+4*t+1}")
        k(f"v_cvt_pk_bf16_f32 v{PK+2*t+1}, v{ACC+4*t+2}, v{ACC+4*t+3}")
    def pair_swaps(pk, npairs):
        k("s_nop 1")
        for p in range(npairs):
            k(f"v_permlane16_swap_b32 v{pk+4*p}, v{pk+4*p+2}")
            k(f"v_permlane16_swap_b32 v{pk+4*p+1}, v{pk+4*p+3}")
    pair_swaps(PK, 2)
    k("s_mov_b64 exec, s[60:61]")
    vq.issue(f"buffer_store_dwordx4 {vr(PK,4)}, v{vHP}, s[28:31], s44 offen", "st")
    vq.issue(f"buffer_store_dwordx4 {vr(PK+4,4)}, v{vHP}, s[28:31], s44 offen offset:1024", "st")
    vq.issue(f"buffer_store_dwordx2 {vr(PK+8,2)}, v{vHL}, s[28:31], s45 offen", "st")
    k("s_mov_b64 exec, -1")
    def signal(sreg):
        vq.drain()
        k("s_barrier")
        l = k.newlab("sig")
        k(f"""
        s_cmp_lg_u32 s20, 0
        s_cbranch_scc1 {l}
        v_mov_b32 v2, 1
        v_mov_b32 v7, 0
        s_mov_b64 exec, 1
        buffer_store_dword v2, v7, s[28:31], s{sreg} offen
        s_mov_b64 exec, -1
        """)
        k.lab(l)
    stamp()
    signal(46)
    stamp()
    def finish():
        if os.environ.get("PROF3"):
            n = nst[0]
            k(f"""
            s_waitcnt vmcnt(0) lgkmcnt(0)
            s_lshl_b32 s26, s2, 2
            s_add_u32 s26, s26, s20
            s_lshl_b32 s26, s26, 7
            s_add_u32 s26, s26, {L.PROFOFF + 0x100000}
            v_mov_b32 v7, 0
            s_mov_b64 exec, 1
            """)
            for i in range(n):
                k(f"v_mov_b32 v2, s{64+2*i}")
                k(f"buffer_store_dword v2, v7, s[28:31], s26 offen offset:{4*i}")
                k("s_nop 0")
        k("s_endpgm")
    if STOP == "G1":
        finish(); k.lab(end); k("s_endpgm"); return kern

    def poll(vfl, nl, sbase):
        l = k.newlab("poll"); d = k.newlab("polld")
        k(f"""
        s_mov_b32 s47, 0
        s_mov_b64 exec, {(1 << nl) - 1}
        """)
        k.lab(l)
        k(f"""
        buffer_load_dword v2, v{vfl}, s[28:31], {sbase} offen sc1
        s_add_u32 s47, s47, 1
        s_waitcnt vmcnt(0)
        v_cmp_ne_u32 vcc, 1, v2
        s_cmp_ge_u32 s47, {SPIN}
        s_cbranch_scc1 {d}
        s_cbranch_vccnz {l}
        """)
        k.lab(d)
        k("s_mov_b64 exec, -1")
        vq.q = []

    w1.pop(100); w2.pop(100)
    NW3E = E("NW3E", 40)
    w3 = Pend(tile_dma(54, 0, NW3E, 0, "w3") if NW3E else [])
    w3.pop(100)
    vP3, vL3, vST, vF3 = 226, 227, 228, 229
    k(f"""
    s_lshl_b32 s26, s53, 3
    s_lshl_b32 s27, s20, 1
    s_add_u32 s56, s26, s27              ; G3 row tile of rt'=0 : 8rb128 + 2w
    s_mul_i32 s6, s56, 20480
    s_add_u32 s6, s6, {L.X1}             ; G3 X base rt0
    s_add_u32 s7, s6, 20480
    s_lshl_b32 s26, s53, 2
    s_add_u32 s26, s26, s20
    s_lshl_b32 s26, s26, 9
    s_add_u32 s8, s26, {L.F2}            ; G3 poll base
    v_lshlrev_b32 v{vST}, 3, v4
    v_lshl_add_u32 v{vST}, v3, 8, v{vST} ; g*256 + m*8
    s_lshl_b32 s9, s56, 10
    s_add_u32 s9, s9, {L.ST2}            ; G3 stats base
    s_and_b32 s42, s52, 1
    s_mul_i32 s12, s52, 7
    s_add_u32 s13, s12, 1
    s_lshr_b32 s13, s13, 1               ; ksP = (7j+1)>>1
    s_add_u32 s26, s13, 3
    s_sub_u32 s27, s13, 1
    s_cmp_eq_u32 s42, 1
    s_cselect_b32 s12, s27, s26          ; ksL
    s_lshl_b32 s13, s13, 10
    s_add_u32 s13, s13, {L.H3}
    s_lshl_b32 s12, s12, 10
    s_add_u32 s12, s12, {L.H3}
    s_lshl_b32 s14, s56, 4
    s_lshl_b32 s15, s53, 4
    s_add_u32 s15, s15, s52
    s_lshl_b32 s15, s15, 2
    s_add_u32 s15, s15, s20
    s_lshl_b32 s15, s15, 7
    s_add_u32 s15, s15, {L.F3}           ; F3 flag
    ; ST2 store offset for G2: [rowtile][part = 2j+nh][m][2]
    s_lshr_b32 s26, s43, 4
    s_lshl_b32 s26, s26, 3
    s_lshl_b32 s27, s24, 1
    s_add_u32 s26, s26, s27
    s_add_u32 s26, s26, s21
    s_lshl_b32 s26, s26, 7
    s_add_u32 s19, s26, {L.ST2}
    """)
    fm_store_addr(vP3, vL3, None, 54, "s14", "s42", k)
    k(f"s_mov_b32 s48, {L.F1}")
    poll(vPL, 4, "s48")
    stamp()
    XV = 72
    def xload(reg, ks, s0, tagp, agpr):
        o = []
        for rt in range(2):
            pre = f"s_add_u32 s{s0}, s{s0}, 4096\ns_add_u32 s{s0+1}, s{s0+1}, 4096\n" if (rt == 0 and ks and ks % 4 == 0) else ""
            r = reg + (ks*2+rt)*4
            o.append((pre + f"buffer_load_dwordx4 {ar(r,4) if agpr else vr(r,4)}, v8, s[28:31], s{s0+rt} offen offset:{(ks%4)*1024} {XSC}", f"{tagp}{ks}"))
        return o
    px = Pend()
    for ks in range(10): px.add(xload(XV, ks, 50, "x2_", False))
    NPRE = E("NPRE", 5)
    px.pop(2 * NPRE)
    w3 = Pend(tile_dma(54, NW3E, 120 - NW3E, NW3E, "w3") + tile_dma(54, 120, 20, 120, "w3"))
    for ks in range(10):
        vq.wait(f"x2_{ks}")
        i = 0
        for t in range(5):
            for rt in range(2):
                a = ACC + (rt * 5 + t) * 4
                c = "0" if ks == 0 else vr(a, 4)
                k(f"v_mfma_f32_16x16x32_bf16 {vr(a,4)}, {ar(w2reg(ks*5+t),4)}, {vr(XV+(ks*2+rt)*4,4)}, {c}")
            if px.items:
                if t in (0, 2): px.pop(1)
            elif t in ((0, 1, 3) if NW3E == 40 else (0, 1, 2, 3)): w3.pop(1)
    stamp()
    exchange()
    for t in range(5):
        k(f"v_lshlrev_b32 v{CS+4*t}, 16, v{HBR+2*t}")
        k(f"v_and_b32 v{CS+4*t+1}, 0xffff0000, v{HBR+2*t}")
        k(f"v_lshlrev_b32 v{CS+4*t+2}, 16, v{HBR+2*t+1}")
        k(f"v_and_b32 v{CS+4*t+3}, 0xffff0000, v{HBR+2*t+1}")
    for t in range(5):
        for i in (0, 2): k(f"v_pk_add_f32 {vr(ACC+4*t+i,2)}, {vr(ACC+4*t+i,2)}, {vr(CS+4*t+i,2)}")
    k("v_mov_b32 v28, 0")
    k("v_mov_b32 v29, 0")
    w3.pop(100)
    exchange2()
    for t in range(5):
        z = ACC + 4*t
        k(f"s_waitcnt lgkmcnt({4-t})")
        for i in (0, 2): k(f"v_pk_add_f32 {vr(z+i,2)}, {vr(z+i,2)}, {vr(RCV+4*t+i,2)}")
        k(f"v_cvt_pk_bf16_f32 v{PK+2*t}, v{z}, v{z+1}")
        k(f"v_cvt_pk_bf16_f32 v{PK+2*t+1}, v{z+2}, v{z+3}")
    for r in range(10):
        k(f"v_dot2_f32_bf16 v28, v{PK+r}, v{ONE}, v28")
        k(f"v_dot2_f32_bf16 v29, v{PK+r}, v{PK+r}, v29")
    pair_swaps(PK, 2)
    vq.issue(f"buffer_store_dwordx4 {vr(PK,4)}, v{vFP}, s[28:31], s38 offen", "st")
    vq.issue(f"buffer_store_dwordx4 {vr(PK+4,4)}, v{vFP}, s[28:31], s38 offen offset:1024", "st")
    vq.issue(f"buffer_store_dwordx2 {vr(PK+8,2)}, v{vFL}, s[28:31], s39 offen", "st")
    emit(reduce_g_ops([28, 29], GT))
    k("v_lshlrev_b32 v2, 3, v4")
    k("s_mov_b64 exec, 0xffff")
    vq.issue("buffer_store_dwordx2 v[28:29], v2, s[28:31], s19 offen", "st")
    k("s_mov_b64 exec, -1")
    w3.pop(100)
    stamp()
    signal(49)
    stamp()
    if STOP == "G2":
        finish(); k.lab(end); k("s_endpgm"); return kern

    DST = E("DST", 19)
    def step_slot(st):
        if st == 0 or st == 16: return 140
        if 1 <= st <= 8: return (st - 1) * 10
        if st == 9: return 150
        if st in (10, 11): return 120 + (st - 10) * 10
        if 12 <= st <= 15: return 80 + (st - 12) * 10
        if 17 <= st <= 24: return (st - 17) * 10
        raise Exception(st)
    w4_issue = lambda f0, n, s0, tag="w4": tile_dma(59, f0, n, s0, tag)
    w4a = Pend(w4_issue(0, 10, 140))
    CS3, CS3b = 88, 116
    k(f"""
    v_and_b32 v2, 31, v1
    v_lshlrev_b32 v2, 4, v2
    v_lshrrev_b32 v7, 5, v1
    v_mul_u32_u24 v7, {1792*4}, v7
    v_add_u32 v2, v2, v7
    s_mul_i32 s26, s52, 448
    s_add_u32 s26, s26, {L.CS3P}
    s_mov_b32 m0, {CS3L}
    s_nop 0
    """)
    vq.issue("buffer_load_dwordx4 v2, s[28:31], s26 offen lds", "cs3")
    vX4, vO4P, vO4L, vGB, vP4, vXA = 230, 231, 232, 233, 234, 235
    k(f"""
    s_and_b32 s36, s57, 1
    s_lshl_b32 s43, s58, 6
    s_lshl_b32 s26, s21, 5
    s_add_u32 s43, s43, s26
    s_lshl_b32 s26, s22, 4
    s_add_u32 s43, s43, s26
    s_mul_i32 s40, s57, 5
    s_add_u32 s41, s40, 1
    s_lshr_b32 s41, s41, 1               ; ksP
    s_add_u32 s26, s41, 2
    s_sub_u32 s27, s41, 1
    s_cmp_eq_u32 s36, 1
    s_cselect_b32 s40, s27, s26          ; ksL
    s_lshl_b32 s44, s41, 10
    s_lshl_b32 s45, s40, 10
    s_lshl_b32 s26, s36, 9
    s_add_u32 s45, s45, s26
    s_lshr_b32 s26, s58, 1
    s_lshl_b32 s26, s26, 4
    s_mul_i32 s27, s22, 7
    s_add_u32 s26, s26, s27
    s_lshl_b32 s26, s26, 2
    s_and_b32 s27, s58, 1
    s_lshl_b32 s27, s27, 1
    s_add_u32 s26, s26, s27
    s_add_u32 s26, s26, s21
    s_lshl_b32 s26, s26, 7
    s_add_u32 s48, s26, {L.F3}
    v_lshlrev_b32 v{vP4}, 9, v1
    s_lshl_b32 s26, s58, 2
    s_lshl_b32 s27, s21, 1
    s_add_u32 s26, s26, s27
    s_add_u32 s27, s26, s22
    s_mul_i32 s27, s27, 54
    s_mul_i32 s39, s22, 27
    s_add_u32 s27, s27, s39
    s_lshl_b32 s27, s27, 10
    s_add_u32 s50, s27, {L.H3}
    s_add_u32 s27, s26, 1
    s_sub_u32 s27, s27, s22
    s_mul_i32 s27, s27, 54
    s_add_u32 s27, s27, s39
    s_lshl_b32 s27, s27, 10
    s_add_u32 s51, s27, {L.H3}
    v_add_u32 v9, s43, v4
    v_lshrrev_b32 v11, 4, v9
    v_and_b32 v10, 15, v9
    v_mul_u32_u24 v11, 20480, v11
    v_lshl_add_u32 v11, v10, 4, v11
    v_lshrrev_b32 v2, 1, v3
    v_lshl_add_u32 v11, v2, 8, v11
    v_and_b32 v7, 1, v3
    v_lshl_add_u32 v{vX4}, v7, 3, v11
    v_mul_u32_u24 v9, 1280, v9
    v_lshlrev_b32 v7, 5, v7
    v_lshl_add_u32 v7, v2, 4, v7         ; (g&1)*32 + (g>>1)*16
    v_add_u32 v{vO4P}, v9, v7
    v_lshl_add_u32 v{vO4L}, v3, 3, v9
    v_lshlrev_b32 v{vGB}, 4, v3
    v_add_u32 v9, s43, v4
    v_lshrrev_b32 v10, 4, v9
    v_mul_u32_u24 v10, 20480, v10
    v_and_b32 v11, 1, v9
    v_lshl_add_u32 v10, v11, 3, v10
    v_lshl_add_u32 v10, v3, 7, v10       ; + g*128
    v_bfe_u32 v11, v9, 1, 3
    s_mul_i32 s26, s57, 20
    s_lshl_b32 s27, s36, 2
    s_add_u32 s27, s27, s26
    s_mul_i32 s3, s36, 16
    s_sub_u32 s3, 16, s3
    s_add_u32 s3, s3, s26""")
    for t in range(5):
        k(f"""
        {"s_add_u32 s4, s27, %d" % (4*t) if t < 4 else "s_mov_b32 s4, s3"}
        v_add_u32 v2, s4, v3
        v_bfe_u32 v2, v2, 1, 3
        v_xor_b32 v2, v2, v11
        v_lshl_add_u32 v2, v2, 4, v10
        s_lshl_b32 s4, s4, 7
        v_add_u32 v{vXA+t}, s4, v2
        """)
    k(f"""
    s_mul_i32 s37, s57, 320
    s_add_u32 s37, s37, {L.MODF + 5*2560}
    s_mul_i32 s26, s36, 256
    s_sub_u32 s26, 256, s26
    s_add_u32 s38, s37, s26              ; gb t=4
    s_lshl_b32 s26, s36, 6
    s_add_u32 s37, s37, s26              ; gb t<4
    s_mul_i32 s26, s57, 160
    s_lshl_b32 s27, s36, 5
    s_add_u32 s46, s26, s27
    s_mul_i32 s27, s36, 128
    s_sub_u32 s27, 128, s27
    s_add_u32 s49, s26, s27              ; leftover
    """)
    vq.wait("cs3")
    k(f"""
    s_lshl_b32 s26, s42, 6
    v_lshlrev_b32 v2, 4, v3
    v_add_u32 v7, {CS3L}, v2
    v_add_u32 v2, s26, v7
    s_mul_i32 s26, s42, {6*64}
    s_sub_u32 s26, {6*64}, s26
    v_add_u32 v7, s26, v7
    """)
    for t in range(6):
        k(f"ds_read_b128 {vr(CS3+4*t,4)}, v2 offset:{64*t}")
        k(f"ds_read_b128 {vr(CS3b+4*t,4)}, v2 offset:{64*t+512}")
    k(f"ds_read_b128 {vr(CS3+24,4)}, v7")
    k(f"ds_read_b128 {vr(CS3b+24,4)}, v7 offset:512")
    k("s_waitcnt lgkmcnt(0)")
    for t in range(7):
        for i in (0, 2):
            k(f"v_pk_add_f32 {vr(CS3+4*t+i,2)}, {vr(CS3+4*t+i,2)}, {vr(CS3b+4*t+i,2)}")
    ACC3, WB, NWB = 32, 160, 12
    k(f"v_mov_b32 v12, v8")
    k(f"v_add_u32 v13, 0x10000, v8")
    k(f"v_add_u32 v14, 0x20000, v8")
    def wread(slot, buf, base=WB):
        o = slot * 1024
        return f"ds_read_b128 {ar(base+4*buf,4)}, v{12 + (o >> 16)} offset:{o & 0xffff}"
    uses = [(0, ks, t) for ks in range(20) for t in (0, 1, 2, 3, 6)] + [(1, ks, t) for ks in range(20) for t in (4, 5)]
    def slot3(u):
        gi, ks, t = u
        return ks * 4 + t if t < 4 else (80 + ks * 2 + t - 4 if t < 6 else 120 + ks)
    for i in range(NWB - 1): k(wread(slot3(uses[i]), i % NWB))
    k("v_lshlrev_b32 v7, 7, v1")
    poll(7, 4, "s8")
    stamp()
    px = Pend()
    for ks in range(20): px.add(xload(0, ks, 6, "x3_", True))
    STR = 16
    for rt in range(2):
        px.add([(f"buffer_load_dwordx2 {vr(STR+4*rt,2)}, v{vST}, s[28:31], s9 offen offset:{1024*rt} sc1", "st2"),
                (f"buffer_load_dwordx2 {vr(STR+4*rt+2,2)}, v{vST}, s[28:31], s9 offen offset:{1024*rt+128} sc1", "st2")])
    px.pop(2 * NPRE)
    w4b = Pend()
    for i, u in enumerate(uses):
        gi, ks, t = u
        if os.environ.get("PG3") and ((gi == 0 and t == 0 and ks in (1, 10)) or (gi > 0 and ks == 0 and t == 4)): stamp()
        grp = 5 if gi == 0 else 4
        first_of_grp = (t == 0) if gi == 0 else (t == 4 and ks % 2 == 0)
        if first_of_grp:
            issued = min(i + NWB - 1, len(uses))
            need = min(i + grp, len(uses))
            allow = max(0, issued - need)
            if gi == 0: vq.wait(f"x3_{ks}", f"lgkmcnt({allow})")
            else: k(f"s_waitcnt lgkmcnt({allow})")
        for rt in range(2):
            a = ACC3 + (rt * 7 + t) * 4
            c = "0" if ks == 0 else vr(a, 4)
            k(f"v_mfma_f32_16x16x32_bf16 {vr(a,4)}, {ar(WB+4*(i%NWB),4)}, {ar((ks*2+rt)*4,4)}, {c}")
        if i + NWB - 1 < len(uses): k(wread(slot3(uses[i + NWB - 1]), (i + NWB - 1) % NWB))
        if gi == 0 and t in (0, 2): px.pop(1)
        if gi == 0 and ks >= 17 and t in (1, 3): w4a.pop(1)
        if gi == 1 and ks == 1 and t == 5:
            k("s_barrier")
            w4b.add(w4_issue(10, 80, 0) + w4_issue(90, 10, 150) + w4_issue(100, 20, 120))
        if gi == 1 and ks > 1: w4b.pop(1)
    stamp()
    w4b.pop(100)
    k("s_barrier")
    w4c = Pend(w4_issue(120, 40, 80))
    k(f"s_mul_i32 s26, s22, 5120")
    k(f"s_add_u32 s55, s59, s26")
    k(f"s_add_u32 s55, s55, {DST*10240}")
    dreg = lambda st, t: 256 - (27 - DST) * 20 + (st - DST) * 20 + 4 * t
    for st in range(DST, 27):
        for t in range(5):
            pre = "s_add_u32 s55, s55, 4096\n" if t == 4 else ""
            post = f"\ns_add_u32 s55, s55, {10240 - 4096}" if t == 4 else ""
            w4c.add([(pre + f"buffer_load_dwordx4 {ar(dreg(st,t),4)}, v8, s[28:31], s55 offen offset:{(t%4)*1024}" + post, "w4d")])
    k.interval = E("IV3", 78); k.last = k.clock; k.src = lambda: (w4c.pop(1) or True) if w4c.items else False
    vq.wait("st2")
    for rt in range(2):
        k(f"v_add_f32 v{STR+4*rt}, v{STR+4*rt}, v{STR+4*rt+2}")
        k(f"v_add_f32 v{STR+4*rt+1}, v{STR+4*rt+1}, v{STR+4*rt+3}")
    k("s_nop 0")
    emit(reduce_g_ops([STR, STR+1, STR+4, STR+5], 24))
    emit(zipl(ln_ops(STR, STR+1, STR+2, 640), ln_ops(STR+4, STR+5, STR+6, 640)))
    k(f"v_mov_b32 v{VC}, {fhex(C1)}")
    k(f"v_mov_b32 v{VC+1}, {fhex(C0)}")
    PK3, GT3 = 144, 176
    for rt in range(2):
        RS3 = STR + 4*rt
        A0 = ACC3 + rt * 28
        for t in range(7):
            for i in (0, 2): k(f"v_pk_mul_f32 {vr(GT3+4*t+i,2)}, {vr(CS3+4*t+i,2)}, {vr(RS3,2)} op_sel_hi:[1,0]")
        for t in range(7):
            z = A0 + 4*t
            for i in (0, 2): k(f"v_pk_fma_f32 {vr(z+i,2)}, {vr(z+i,2)}, {vr(RS3,2)}, {vr(GT3+4*t+i,2)} op_sel:[0,1,0] op_sel_hi:[1,1,1]")
        emit(gelu_ops(A0, GT3, VC, 28))
        if rt == 1: k.src = None
        for t in range(7):
            k(f"v_cvt_pk_bf16_f32 v{PK3+16*rt+2*t}, v{A0+4*t}, v{A0+4*t+1}")
            k(f"v_cvt_pk_bf16_f32 v{PK3+16*rt+2*t+1}, v{A0+4*t+2}, v{A0+4*t+3}")
        sv = k.src; k.src = None
        pair_swaps(PK3 + 16*rt, 3)
        off = rt * 54 * 1024
        k(f"s_add_u32 s26, s13, {off}")
        k(f"s_add_u32 s27, s12, {off}")
        vq.issue(f"buffer_store_dwordx4 {vr(PK3+16*rt,4)}, v{vP3}, s[28:31], s26 offen", "st")
        vq.issue(f"buffer_store_dwordx2 {vr(PK3+16*rt+12,2)}, v{vL3}, s[28:31], s27 offen", "st")
        lab = k.newlab("j15")
        k("s_cmp_eq_u32 s52, 15")
        k(f"s_cbranch_scc1 {lab}")
        k(f"buffer_store_dwordx4 {vr(PK3+16*rt+4,4)}, v{vP3}, s[28:31], s26 offen offset:1024")
        k(f"buffer_store_dwordx4 {vr(PK3+16*rt+8,4)}, v{vP3}, s[28:31], s26 offen offset:2048")
        k.lab(lab)
        k.src = sv
    stamp()
    vq.drain()
    k(f"""
    v_mov_b32 v2, 1
    v_mov_b32 v7, 0
    s_mov_b64 exec, 1
    buffer_store_dword v2, v7, s[28:31], s15 offen
    s_mov_b64 exec, -1
    """)
    stamp()
    if STOP == "G3":
        finish(); k.lab(end); k("s_endpgm"); return kern

    w4c.pop(100)
    X1R, XAR, GB = 96, 106, 116
    rl = []
    for t in range(5):
        if t < 4:
            rl.append((f"s_add_u32 s26, s44, {L.X1 + (t//2)*1024 + (t&1)*512}\nbuffer_load_dwordx2 {vr(X1R+2*t,2)}, v{vX4}, s[28:31], s26 offen sc1", "res"))
        else:
            rl.append((f"s_add_u32 s26, s45, {L.X1}\nbuffer_load_dwordx2 {vr(X1R+2*t,2)}, v{vX4}, s[28:31], s26 offen sc1", "res"))
        rl.append((f"s_mov_b32 s26, {L.YT}\nbuffer_load_dwordx2 {vr(XAR+2*t,2)}, v{vXA+t}, s[28:31], s26 offen", "res"))
    for t in range(4):
        rl.append((f"buffer_load_dwordx4 {vr(GB+4*t,4)}, v{vGB}, s[28:31], s37 offen offset:{64*t}", "res"))
    rl.append((f"buffer_load_dwordx4 {vr(GB+16,4)}, v{vGB}, s[28:31], s38 offen", "res"))
    WB4 = 176
    k(f"""
    s_mul_i32 s26, s22, 5120
    v_add_u32 v12, s26, v8
    v_add_u32 v13, 0x10000, v12
    v_add_u32 v14, 0x20000, v12
    """)
    def wread4(slot, buf):
        o = slot * 1024
        return f"ds_read_b128 {vr(WB4+4*buf,4)}, v{12 + (o >> 16)} offset:{o & 0xffff}"
    uses = [(st, t) for st in range(27) for t in range(5)]
    luses = [u for u in uses if u[0] < DST]
    NW4 = 12
    slot4 = lambda u: step_slot(u[0]) + u[1]
    poll(vP4, 9, "s48")
    stamp()
    XRG = min(16, (256 - (27 - DST) * 20) // 8)
    def xload4(ks):
        o = []
        for rt in range(2):
            pre = "s_add_u32 s50, s50, 4096\ns_add_u32 s51, s51, 4096\n" if (rt == 0 and ks and ks % 4 == 0) else ""
            o.append((pre + f"buffer_load_dwordx4 {ar((ks % XRG)*8 + 4*rt,4)}, v8, s[28:31], s{50+rt} offen offset:{(ks%4)*1024} {XSC}", f"x4_{ks}"))
        return o
    pend = Pend()
    for ks in range(NPRE): pend.add(xload4(ks))
    pend.pop(100)
    k("s_barrier")
    for i in range(NW4 - 1): k(wread4(slot4(luses[i]), i % NW4))
    nx = NPRE
    for i, u in enumerate(uses):
        st, t = u
        if t == 0:
            while nx < 27 and nx - XRG < st and nx <= st + XRG - 1 and nx <= st + E("XAH", 9):
                pend.add(xload4(nx)); nx += 1
            if st == 8: pend.add(rl)
        lds = st < DST
        if t == 0:
            w = ""
            if lds:
                issued = min(i + NW4 - 1, len(luses)); need = min(i + 5, len(luses))
                w = f"lgkmcnt({max(0, issued - need)})"
            assert not pend.has(f"x4_{st}"), st
            vq.wait(f"x4_{st}", w)
        for rt in range(2):
            a_ = ACC + (rt * 5 + t) * 4
            c_ = "0" if st == 0 else vr(a_, 4)
            aop = vr(WB4+4*(i%NW4),4) if lds else ar(dreg(st, t), 4)
            k(f"v_mfma_f32_16x16x32_bf16 {vr(a_,4)}, {aop}, {ar((st % XRG)*8 + 4*rt,4)}, {c_}")
        j_ = i + NW4 - 1
        if j_ < len(luses):
            if luses[j_] == (DST - 15, 0):
                k("s_waitcnt lgkmcnt(5)")
                k("s_barrier")
                pend.items = w4_issue(160, 10, step_slot(16), "w4r") + w4_issue(170, 10 * (DST - 17), step_slot(17), "w4r") + pend.items
            if luses[j_] == (16, 0):
                assert not pend.has("w4r")
                vq.wait("w4r")
                k("s_barrier")
            k(wread4(slot4(luses[j_]), j_ % NW4))
        if i % 2 == 0 or len(pend.items) > 6: pend.pop(1)
    pend.pop(100)
    stamp()
    k("s_barrier")
    RCV = 72
    exchange()
    vq.wait("res")
    U = 136
    for t in range(5):
        for src, dst in ((X1R, U), (XAR, U + 20)):
            k(f"v_lshlrev_b32 v{dst+4*t}, 16, v{src+2*t}")
            k(f"v_and_b32 v{dst+4*t+1}, 0xffff0000, v{src+2*t}")
            k(f"v_lshlrev_b32 v{dst+4*t+2}, 16, v{src+2*t+1}")
            k(f"v_and_b32 v{dst+4*t+3}, 0xffff0000, v{src+2*t+1}")
    for t in range(5):
        for i in (0, 2): k(f"v_pk_add_f32 {vr(ACC+4*t+i,2)}, {vr(ACC+4*t+i,2)}, {vr(U+4*t+i,2)}")
    exchange2()
    for t in range(5):
        z = ACC + 4*t
        k(f"s_waitcnt lgkmcnt({4-t})")
        for i in (0, 2): k(f"v_pk_add_f32 {vr(z+i,2)}, {vr(z+i,2)}, {vr(RCV+4*t+i,2)}")
        for i in (0, 2): k(f"v_pk_fma_f32 {vr(z+i,2)}, {vr(z+i,2)}, {vr(GB+4*t+i,2)}, {vr(U+20+4*t+i,2)}")
        k(f"v_cvt_pk_bf16_f32 v{PK+2*t}, v{z}, v{z+1}")
        k(f"v_cvt_pk_bf16_f32 v{PK+2*t+1}, v{z+2}, v{z+3}")
    pair_swaps(PK, 2)
    k(f"buffer_store_dwordx4 {vr(PK,4)}, v{vO4P}, s[32:35], s46 offen")
    k(f"buffer_store_dwordx4 {vr(PK+4,4)}, v{vO4P}, s[32:35], s46 offen offset:64")
    k(f"buffer_store_dwordx2 {vr(PK+8,2)}, v{vO4L}, s[32:35], s49 offen")
    stamp()
    finish()
    k.lab(end)
    k("s_endpgm")
    return kern
```

```python
import sys, os
sys.path.insert(0, os.path.dirname(os.path.abspath(__file__)))
import layout as L

NAME = "adaLN_cond__ssm_conv_h3__mixer_s_mlp__prompt"
SZ_SD = 2048 * 640 * 2

class Kern:
    order = {}
    def __init__(self, name, grid, block, lds, vgpr=256, sgpr=102, agpr=0):
        self.name, self.grid, self.block, self.lds = name, grid, block, lds
        self.vgpr, self.sgpr, self.agpr = vgpr, (102 if (os.environ.get("PROF") or os.environ.get("PROF2")) else sgpr), agpr
        self.L = []
        self.nlab = 0
    def __call__(self, s):
        for ln in s.strip("\n").split("\n"):
            ln = ln.strip()
            if ln:
                self.L.append("    " + ln)
    def lab(self, s):
        self.L.append(s + ":")
    def newlab(self, p="L"):
        self.nlab += 1
        return f"{self.name}_{p}{self.nlab}"
    def srd(self, d, b, size, off=0):
        if off:
            self(f"s_add_u32 s{d}, s{b}, {off}")
            self(f"s_addc_u32 s{d+1}, s{b+1}, 0")
        else:
            self(f"s_mov_b32 s{d}, s{b}")
            self(f"s_mov_b32 s{d+1}, s{b+1}")
        self(f"s_mov_b32 s{d+2}, {size}")
        self(f"s_mov_b32 s{d+3}, 0x00020000")
    def round2(self, a, b, t):
        self(f"v_cvt_pk_bf16_f32 v{t}, v{a}, v{b}")
        self(f"v_lshlrev_b32 v{a}, 16, v{t}")
        self(f"v_and_b32 v{b}, 0xffff0000, v{t}")
    def unpack(self, lo, hi, src):
        self(f"v_lshlrev_b32 v{lo}, 16, v{src}")
        self(f"v_and_b32 v{hi}, 0xffff0000, v{src}")
    def stamp(self, i):
        if os.environ.get("PROF"):
            self(f"s_memtime s[{80+2*i}:{81+2*i}]")
    def stamp_end(self, n):
        if os.environ.get("PROF"):
            l = self.newlab("prof")
            self(f"""
            s_waitcnt lgkmcnt(0)
            s_cmp_lg_u32 s2, {int(os.environ.get("PROFWG", "0"))}
            s_cbranch_scc1 {l}
            s_load_dwordx2 s[76:77], s[0:1], 112
            s_waitcnt lgkmcnt(0)
            s_mov_b32 s78, 256
            s_mov_b32 s79, 0x00020000
            v_mov_b32 v1, 0
            """)
            for i in range(n):
                self(f"s_sub_u32 s75, s{80+2*i}, s80")
                self(f"v_mov_b32 v2, s75")
                self(f"buffer_store_dword v2, v1, s[76:79], 0 offen offset:{4*i}")
            self.lab(l)
    def text(self):
        sc = self.name in os.environ.get("SC1", "k0_kernel,k1_kernel,chain_kernel").split(",")
        Ls = [(l + " sc1" if (sc and l.strip().startswith("buffer_store")) else l) for l in self.L]
        if os.environ.get("PROF2"):
            idx = Kern.order.setdefault(self.name, len(Kern.order))
            pre = ["    s_memrealtime s[90:91]", "    v_lshrrev_b32 v1, 6, v0", "    s_mov_b32 s93, s2", "    v_readfirstlane_b32 s92, v1"]
            Ls = [(f"    s_branch {self.name}_pend" if l.strip() == "s_endpgm" else l) for l in Ls]
            post = f"""{self.name}_pend:
    s_mov_b64 exec, -1
    s_waitcnt vmcnt(0) lgkmcnt(0)
    s_memrealtime s[94:95]
    s_load_dwordx2 s[96:97], s[0:1], 120
    s_lshl_b32 s93, s93, 3
    s_add_u32 s93, s93, s92
    s_lshl_b32 s93, s93, 4
    s_add_u32 s93, s93, {0x4000000 + idx * 0x20000}
    s_getreg_b32 s92, hwreg(HW_REG_XCC_ID)
    s_waitcnt lgkmcnt(0)
    s_mov_b32 s98, 0x10000000
    s_mov_b32 s99, 0x00020000
    v_mov_b32 v0, s90
    v_mov_b32 v1, s94
    v_mov_b32 v2, s92
    v_mov_b32 v3, 0x1234
    v_mov_b32 v4, s93
    s_mov_b64 exec, 1
    buffer_store_dwordx4 v[0:3], v4, s[96:99], 0 offen
    s_endpgm""".split("\n")
            Ls = pre + Ls + post
        return (f".globl {self.name}\n.p2align 8\n.type {self.name},@function\n{self.name}:\n" + "\n".join(Ls) + "\n")
    def kd(self):
        acc = (self.vgpr + 3) // 4 * 4
        nfv = self.vgpr if not self.agpr else acc + self.agpr
        return f""".p2align 6
.amdhsa_kernel {self.name}
  .amdhsa_next_free_vgpr {nfv}
  .amdhsa_next_free_sgpr {self.sgpr}
  .amdhsa_accum_offset {acc}
  .amdhsa_group_segment_fixed_size 0
  .amdhsa_kernarg_size 128
  .amdhsa_user_sgpr_count 2
  .amdhsa_user_sgpr_kernarg_segment_ptr 1
  .amdhsa_system_sgpr_workgroup_id_x 1
  .amdhsa_float_denorm_mode_32 3
.end_amdhsa_kernel
"""

def vr(a, n):
    return f"v[{a}:{a+n-1}]"

MERGE = os.environ.get("MERGE", "0") == "1"
CNT_OFF = 128

def signal(k, cnt_sgpr_or_imm):
    l = k.newlab("sig")
    k(f"""
    s_mov_b64 exec, -1
    s_waitcnt vmcnt(0)
    s_barrier
    v_cmp_eq_u32 vcc, 0, v0
    s_and_saveexec_b64 s[42:43], vcc
    s_cbranch_execz {l}
    v_mov_b32 v1, 1
    v_mov_b32 v2, {cnt_sgpr_or_imm}
    buffer_atomic_add v1, v2, s[48:51], 0 offen
    """)
    k.lab(l)
    k("s_endpgm")

def poll(k, voff, target, vtmp):
    l = k.newlab("poll"); d = k.newlab("polld")
    k("s_mov_b32 s52, 0")
    k("s_cmp_lg_u32 s20, 0")
    k(f"s_cbranch_scc1 {d}")
    k.lab(l)
    k(f"""
    buffer_load_dword v{vtmp}, v{voff}, s[48:51], 0 offen sc0 sc1
    s_waitcnt vmcnt(0)
    v_readfirstlane_b32 s53, v{vtmp}
    s_add_u32 s52, s52, 1
    s_cmp_ge_u32 s53, {target}
    s_cbranch_scc1 {d}
    s_cmp_ge_u32 s52, 0x100000
    s_cbranch_scc1 {d}
    s_sleep {int(os.environ.get("SLP", 8))}
    s_branch {l}
    """)
    k.lab(d)
    k("s_barrier")


WREG = 13824
KB = 9472
NT = os.environ.get("NT", "nt")
NTP = os.environ.get("NTP", "nt")
def gen_k0():
    import gen3
    k = Kern("k0_kernel", 512, 256, 8192, vgpr=128, sgpr=72)
    end = "k0_end"
    SPIN = int(os.environ.get("SPIN", 20000))
    CONV0 = 608
    k(f"""
    s_cmp_ge_u32 s2, 512
    s_cbranch_scc1 {end}
    s_load_dwordx4 s[4:7], s[0:1], 8       ; k v
    s_load_dwordx2 s[8:9], s[0:1], 24      ; shift_k
    s_load_dwordx2 s[10:11], s[0:1], 120   ; ws
    s_load_dwordx2 s[60:61], s[0:1], 0     ; q
    s_load_dwordx2 s[62:63], s[0:1], 96    ; w_mod
    s_load_dwordx2 s[52:53], s[0:1], 88    ; c
    s_load_dwordx4 s[56:59], s[0:1], 32
    v_lshrrev_b32 v2, 6, v0
    v_and_b32 v1, 63, v0                   ; lane
    v_readfirstlane_b32 s20, v2
    s_waitcnt lgkmcnt(0)
    """)
    k.srd(28, 10, 0x10000000)
    k(f"""
    s_cmp_ge_u32 s2, 320
    s_cbranch_scc1 p_aux
    """)
    k("s_mov_b32 s45, s20")
    k.srd(16, 4, SZ_SD); k.srd(20, 6, SZ_SD); k.srd(24, 8, 640 * 8)
    k(f"""
    s_mul_i32 s32, s2, 52429
    s_lshr_b32 s32, s32, 19
    s_mul_i32 s33, s32, 10
    s_sub_u32 s33, s2, s33           ; cb
    v_and_b32 v1, 15, v0             ; cgl
    v_lshrrev_b32 v2, 4, v0          ; rg
    s_lshl_b32 s34, s32, 6
    v_lshl_add_u32 v3, v2, 2, s34    ; s0
    v_mul_u32_u24 v4, 1280, v3
    s_lshl_b32 s35, s33, 7
    v_lshl_add_u32 v5, v1, 3, s35
    v_add_u32 v4, v4, v5             ; voff
    v_subrev_u32 v6, 3840, v4
    v_subrev_u32 v7, 2560, v4
    v_subrev_u32 v8, 1280, v4
    """)
    KR, VR_, SKR, SKF, KF, KVF, T, QR = 10, 24, 32, 40, 56, 84, 100, 112
    k(f"buffer_load_dwordx2 {vr(KR,2)}, v6, s[16:19], 0 offen {NT}")
    k(f"buffer_load_dwordx2 {vr(KR+2,2)}, v7, s[16:19], 0 offen {NT}")
    k(f"buffer_load_dwordx2 {vr(KR+4,2)}, v8, s[16:19], 0 offen {NT}")
    for i in range(4):
        k(f"buffer_load_dwordx2 {vr(KR+6+2*i,2)}, v4, s[16:19], 0 offen offset:{i*1280} {NT}")
    k(f"v_lshlrev_b32 v{T}, 2, v5")
    k(f"buffer_load_dwordx4 {vr(SKR,4)}, v{T}, s[24:27], 0 offen")
    k(f"buffer_load_dwordx4 {vr(SKR+4,4)}, v{T}, s[24:27], 0 offen offset:16")
    for i in range(4):
        k(f"buffer_load_dwordx2 {vr(VR_+2*i,2)}, v4, s[20:23], 0 offen offset:{i*1280} {NT}")
    k(f"""
    v_lshlrev_b32 v{T}, 9, v1
    v_sub_u32 v{T+1}, 15, v2
    v_lshl_add_u32 v{T}, v{T+1}, 3, v{T}
    v_lshrrev_b32 v{T+1}, 3, v0
    v_mul_u32_u24 v{T+1}, {L.KVR_CH}, v{T+1}
    v_and_b32 v{T+2}, 7, v0
    v_lshl_add_u32 v{T+3}, v{T+2}, 4, v{T+1}
    v_lshlrev_b32 v{T+4}, 4, v0
    s_mul_i32 s36, s33, {64*L.KVR_CH}
    s_lshr_b32 s37, s32, 1
    s_mul_i32 s37, s37, 272
    s_add_u32 s36, s36, s37
    s_add_u32 s36, s36, {L.KVR}
    s_and_b32 s37, s32, 1
    s_lshl_b32 s38, s37, 7
    s_sub_u32 s38, 128, s38
    s_add_u32 s38, s38, s36
    s_waitcnt vmcnt(4)
    """)
    for c in range(4):
        k.unpack(SKF + c, SKF + 4 + c, SKR + 2*c)
        k.unpack(SKF + 8 + c, SKF + 12 + c, SKR + 2*c + 1)
    for r in range(7):
        k.unpack(KF + 4*r, KF + 4*r + 1, KR + 2*r)
        k.unpack(KF + 4*r + 2, KF + 4*r + 3, KR + 2*r + 1)
    for j in (3, 2, 1, 0):
        for s_ in range(4):
            for p in range(2):
                A = KVF + 4*s_ + 2*p
                if j == 3: k(f"v_pk_mul_f32 {vr(A,2)}, {vr(KF+4*s_+2*p,2)}, {vr(SKF+12+2*p,2)}")
                else: k(f"v_pk_fma_f32 {vr(A,2)}, {vr(KF+4*(s_+3-j)+2*p,2)}, {vr(SKF+4*j+2*p,2)}, {vr(A,2)}")
    O = KF; O2 = KF + 8
    for i in range(8):
        k(f"v_cvt_pk_bf16_f32 v{O+i}, v{KVF+2*i}, v{KVF+2*i+1}")
    k("s_waitcnt vmcnt(0)")
    for i in range(8):
        k(f"v_lshlrev_b32 v{KVF+2*i}, 16, v{O+i}")
        k(f"v_and_b32 v{KVF+2*i+1}, 0xffff0000, v{O+i}")
    for i in range(8):
        k.unpack(O + 8 + 2*(i % 4), O + 9 + 2*(i % 4), VR_ + i)
        k(f"v_pk_mul_f32 {vr(KVF+2*i,2)}, {vr(KVF+2*i,2)}, {vr(O+8+2*(i%4),2)}")
    for c in range(4):
        for d in range(2):
            k(f"v_cvt_pk_bf16_f32 v{O2+2*c+d}, v{KVF+4*(3-2*d)+c}, v{KVF+4*(2-2*d)+c}")
    for c in range(4):
        k(f"ds_write_b64 v{T}, {vr(O2+2*c,2)} offset:{128*c}")
    k(f"""
    s_waitcnt lgkmcnt(0)
    s_barrier
    """)
    for i in range(2):
        k(f"ds_read_b128 {vr(KR+4*i,4)}, v{T+4} offset:{4096*i}")
    for i in range(2):
        k(f"s_waitcnt lgkmcnt({1-i})")
        k(f"buffer_store_dwordx4 {vr(KR+4*i,4)}, v{T+3}, s[28:31], s38 offen")
        k(f"s_add_u32 s38, s38, {32*L.KVR_CH}")
    hl = k.newlab(); zl = k.newlab()
    k(f"""
    v_cmp_eq_u32 vcc, 0, v{T+2}
    s_and_saveexec_b64 s[66:67], vcc
    s_cmp_eq_u32 s37, 0
    s_cbranch_scc1 {hl}
    s_cmp_eq_u32 s32, 31
    s_cbranch_scc1 {zl}
    """)
    for i in range(2):
        k(f"buffer_store_dwordx4 {vr(KR+4*i,4)}, v{T+1}, s[28:31], s36 offen offset:{272+256}")
        k(f"s_add_u32 s36, s36, {32*L.KVR_CH}")
    k(f"s_branch {zl}")
    k.lab(hl)
    k(f"""
    s_cmp_lg_u32 s32, 0
    s_cbranch_scc1 {zl}
    v_mov_b32 v{T+8}, 0
    v_mov_b32 v{T+9}, 0
    v_mov_b32 v{T+10}, 0
    v_mov_b32 v{T+11}, 0
    """)
    for i in range(2):
        k(f"buffer_store_dwordx4 {vr(T+8,4)}, v{T+1}, s[28:31], s36 offen offset:256")
        k(f"s_add_u32 s36, s36, {32*L.KVR_CH}")
    k.lab(zl)
    k("s_endpgm")
    k.lab(end)
    k("s_endpgm")

    k.lab("p_aux")
    k(f"""
    s_sub_u32 s21, s2, 320               ; a
    s_cmp_ge_u32 s20, 2
    s_cbranch_scc1 p_misc
    s_cmp_eq_u32 s20, 1
    s_cbranch_scc1 p_aux1
    s_branch p_st
    """)
    k.lab("p_aux1")
    k(f"""
    s_add_u32 s21, s21, 192
    s_cmp_lt_u32 s21, 256
    s_cbranch_scc1 p_st
    s_sub_u32 s21, s21, 256
    s_cmp_ge_u32 s21, 120
    s_cbranch_scc1 {end}
    """)
    k.lab("p_mod")
    C, W, A, T = 8, 32, 112, 120
    k(f"""
    s_lshr_b32 s32, s21, 2               ; cb
    s_and_b32 s33, s21, 3                ; kq
    v_lshrrev_b32 v4, 3, v1              ; row_l
    v_and_b32 v3, 7, v1                  ; chunk
    s_mul_i32 s34, s33, 160
    v_add_u32 v4, s34, v4
    v_lshlrev_b32 v5, 1, v4              ; c offset
    v_mul_u32_u24 v6, 7680, v4
    s_lshl_b32 s36, s32, 7
    v_lshl_add_u32 v7, v3, 4, s36
    v_add_u32 v6, v6, v7
    """)
    k.srd(16, 52, 1280); k.srd(24, 62, 640 * 7680)
    k(f"""
    s_mul_i32 s35, s33, 320
    v_lshlrev_b32 v5, 3, v1
    buffer_load_dwordx2 v[30:31], v5, s[16:19], s35 offen
    s_mov_b32 s37, 0
    """)
    for it in range(20):
        k(f"buffer_load_dwordx4 {vr(W+4*it,4)}, v6, s[24:27], s37 offen {NT}")
        if it < 19: k(f"s_add_u32 s37, s37, {8*7680}")
    TT = T
    k(f"""
    s_mul_i32 s35, s20, 1024
    v_lshlrev_b32 v5, 4, v1
    v_add_u32 v5, s35, v5
    v_lshrrev_b32 v29, 3, v1
    v_lshlrev_b32 v29, 2, v29
    v_add_u32 v29, s35, v29
    s_waitcnt vmcnt(20)
    """)
    k.unpack(C, C + 1, 30); k.unpack(C + 2, C + 3, 31)
    for i in range(4): k(f"v_mul_f32 v{TT+i}, 0xbfb8aa3b, v{C+i}")
    for i in range(4): k(f"v_exp_f32 v{TT+i}, v{TT+i}")
    for i in range(4): k(f"v_add_f32 v{TT+i}, 1.0, v{TT+i}")
    for i in range(4): k(f"v_rcp_f32 v{TT+i}, v{TT+i}")
    k("s_nop 0")
    for i in range(4): k(f"v_mul_f32 v{C+i}, v{C+i}, v{TT+i}")
    for i in (0, 2): k.round2(C + i, C + i + 1, TT)
    k(f"ds_write_b128 v5, {vr(C,4)}")
    k("s_waitcnt lgkmcnt(0)")
    for it in range(20): k(f"ds_read_b32 v{C+it}, v29 offset:{32*it}")
    k("s_waitcnt lgkmcnt(0)")
    for j in range(8): k(f"v_mov_b32 v{A+j}, 0")
    for it in range(20):
        k(f"s_waitcnt vmcnt({19-it})")
        for d in range(4): k.unpack(T + 2*d, T + 2*d + 1, W + 4*it + d)
        sel = "op_sel:[0,0,0] op_sel_hi:[1,0,1]" if it % 2 == 0 else "op_sel:[0,1,0] op_sel_hi:[1,1,1]"
        for d in range(4):
            k(f"v_pk_fma_f32 {vr(A+2*d,2)}, {vr(T+2*d,2)}, {vr(C+(it&~1),2)}, {vr(A+2*d,2)} {sel}")
    k("s_nop 1")
    for d in range(8):
        k(f"v_add_f32_dpp v{A+d}, v{A+d}, v{A+d} row_ror:8 row_mask:0xf bank_mask:0xf")
    for x in gen3.reduce_g_ops([A + d for d in range(8)], T): k(x)
    k(f"""
    v_lshlrev_b32 v7, 5, v3
    s_mul_i32 s36, s33, {3840*4}
    s_lshl_b32 s37, s32, 8
    s_add_u32 s37, s37, s36
    s_add_u32 s37, s37, {L.MODP}
    s_mov_b64 exec, 0xff
    buffer_store_dwordx4 {vr(A,4)}, v7, s[28:31], s37 offen
    buffer_store_dwordx4 {vr(A+4,4)}, v7, s[28:31], s37 offen offset:16
    s_endpgm
    """)
    k.lab("p_st")
    k.srd(16, 60, SZ_SD)
    k(f"""
    v_lshrrev_b32 v5, 3, v1              ; r
    v_and_b32 v6, 7, v1                  ; c
    s_lshl_b32 s23, s21, 3
    v_add_u32 v7, s23, v5                ; row
    v_mul_u32_u24 v9, 1280, v7
    v_lshl_add_u32 v9, v6, 4, v9
    v_mov_b32 v20, 0x3f803f80
    """)
    for t in range(10):
        k(f"buffer_load_dwordx4 {vr(32+4*t,4)}, v9, s[16:19], 0 offen offset:{128*t} {NT}")
    k(f"""
    v_and_b32 v21, 1, v5
    v_lshl_add_u32 v21, v6, 1, v21
    v_lshlrev_b32 v21, 7, v21
    v_lshrrev_b32 v22, 1, v5
    s_and_b32 s24, s21, 1
    s_lshl_b32 s24, s24, 2
    v_add_u32 v22, s24, v22
    v_xor_b32 v22, v22, v6
    v_lshl_add_u32 v21, v22, 4, v21
    s_lshr_b32 s25, s21, 1
    s_mul_i32 s25, s25, 20480
    s_add_u32 s25, s25, {L.Q4}
    """)
    for i in range(4): k(f"v_mov_b32 v{10+i}, 0")
    for t in range(10):
        X = 32 + 4*t
        k(f"s_waitcnt vmcnt(9)")
        for d in range(4):
            k(f"v_dot2_f32_bf16 v{10+2*(d&1)}, v{X+d}, v20, v{10+2*(d&1)}")
            k(f"v_dot2_f32_bf16 v{11+2*(d&1)}, v{X+d}, v{X+d}, v{11+2*(d&1)}")
        O = 120 + 4*(t & 1)
        k(f"v_mov_b32 v{O}, v{X}")
        k(f"v_mov_b32 v{O+1}, v{X+1}")
        k(f"v_mov_b32 v{O+2}, v{X+2}")
        k(f"v_mov_b32 v{O+3}, v{X+3}")
        k(f"v_mov_b32_dpp v{O}, v{X+2} row_ror:8 row_mask:0xf bank_mask:0xc")
        k(f"v_mov_b32_dpp v{O+1}, v{X+3} row_ror:8 row_mask:0xf bank_mask:0xc")
        k(f"v_mov_b32_dpp v{O+2}, v{X} row_ror:8 row_mask:0xf bank_mask:0x3")
        k(f"v_mov_b32_dpp v{O+3}, v{X+1} row_ror:8 row_mask:0xf bank_mask:0x3")
        k(f"s_add_u32 s26, s25, {2048*t}")
        k(f"buffer_store_dwordx4 {vr(O,4)}, v21, s[28:31], s26 offen")
    k("s_nop 2")
    k("v_add_f32 v10, v10, v12")
    k("v_add_f32 v11, v11, v13")
    for ctl in ("quad_perm:[1,0,3,2]", "quad_perm:[2,3,0,1]", "row_half_mirror"):
        k("s_nop 1")
        for i in range(2):
            k(f"v_add_f32_dpp v{10+i}, v{10+i}, v{10+i} {ctl} row_mask:0xf bank_mask:0xf")
    for x in gen3.ln_ops(10, 11, 24, 640):
        k(x); k("s_nop 0")
    k(f"""
    v_lshlrev_b32 v7, 3, v7
    v_cmp_eq_u32 vcc, 0, v6
    s_mov_b32 s23, {L.ST1}
    s_and_saveexec_b64 s[66:67], vcc
    buffer_store_dwordx2 v[10:11], v7, s[28:31], s23 offen
    s_endpgm
    """)
    k.lab("p_misc")
    lm = k.newlab("m3")
    k(f"""
    s_lshr_b32 s22, s21, 3
    s_mov_b32 s23, s21
    s_cmp_eq_u32 s20, 2
    s_cbranch_scc1 {lm}
    s_cmp_ge_u32 s21, 64
    s_cbranch_scc1 {end}
    s_add_u32 s22, s22, 24
    s_add_u32 s23, s23, 192
    """)
    k.lab(lm)
    k(f"""
    v_lshlrev_b32 v1, 4, v1
    v_mov_b32 v60, 0
    v_mov_b32 v61, 0
    v_mov_b32 v62, 0
    v_mov_b32 v63, 0
    s_lshl_b32 s24, s23, 10
    s_add_u32 s25, s24, {L.FLG}
    s_add_u32 s26, s24, {L.H1S}
    s_add_u32 s27, s24, {L.H1S + 127*20480 - 20480}
    s_cmp_ge_u32 s23, 20
    s_cselect_b32 s26, s27, s26
    """)
    zl = k.newlab("nz"); zl2 = k.newlab("nz")
    k(f"""
    s_cmp_ge_u32 s23, {L.FLG_KB}
    s_cbranch_scc1 {zl}
    buffer_store_dwordx4 v[60:63], v1, s[28:31], s25 offen
    """)
    k.lab(zl)
    k(f"""
    s_cmp_ge_u32 s23, 40
    s_cbranch_scc1 {zl2}
    buffer_store_dwordx4 v[60:63], v1, s[28:31], s26 offen
    """)
    k.lab(zl2)
    k.srd(16, 56, 640 * 4096)
    k(f"""
    s_and_b32 s24, s2, 7
    s_mul_i32 s24, s24, 327680
    s_mul_i32 s21, s22, 10240
    s_add_u32 s21, s21, s24
    """)
    for i in range(10):
        if i and i % 4 == 0: k("s_add_u32 s21, s21, 4096")
        k(f"buffer_load_dwordx4 {vr(8+4*i,4)}, v1, s[16:19], s21 offen offset:{(i%4)*1024} {NTP}")
    if not os.environ.get("NOCPF"):
        k("s_getpc_b64 s[24:25]")
        k.lab("k0_pcref")
        k(f"""
        s_sub_u32 s24, s24, k0_pcref-{k.name}
        s_subb_u32 s25, s25, 0
        s_lshl_b32 s23, s22, 11
        """)
        for i in range(2):
            k(f"""
            s_add_u32 s26, s23, {1024*i}
            s_min_u32 s26, s26, (chain_end-{k.name}-1020)&0xfffffff0
            v_add_u32 v64, s26, v1
            v_mov_b32 v5, s25
            v_add_co_u32 v4, vcc, s24, v64
            v_addc_co_u32 v5, vcc, 0, v5, vcc
            global_load_dwordx4 {vr(72+4*i,4)}, v[4:5], off
            """)
    k("s_waitcnt vmcnt(0)")
    k("s_endpgm")
    return k

def gen_k1(k=None):
    merged = k is not None
    if not merged:
        k = Kern("k1_kernel", 256, 256, 4 * WREG + 64, vgpr=256, sgpr=100, agpr=32)
    end = "k1_end" if not merged else "chain_end"
    done = "s_endpgm" if not merged else "s_branch main_join"
    def arrive(soff_expr):
        if not merged:
            k("s_endpgm"); return
        k(f"""
        s_mov_b64 exec, -1
        s_waitcnt vmcnt(0)
        {soff_expr}
        v_mov_b32 v2, 1
        v_mov_b32 v3, 0
        s_mov_b64 exec, 1
        buffer_atomic_add v2, v3, s[28:31], s44 offen
        s_mov_b64 exec, -1
        s_branch main_join
        """)
    k(f"""
    s_cmp_ge_u32 s2, 256
    s_cbranch_scc1 {end}
    s_mov_b32 s99, s2
    s_load_dwordx4 s[4:7], s[0:1], 32
    s_load_dwordx2 s[10:11], s[0:1], 120   ; ws
    s_load_dwordx8 s[12:19], s[0:1], 56    ; w1 w2 w3 w4
    s_load_dwordx2 s[60:61], s[0:1], 0     ; q
    s_load_dwordx2 s[62:63], s[0:1], 96    ; w_mod
    s_load_dwordx2 s[52:53], s[0:1], 88    ; c
    v_lshrrev_b32 v2, 6, v0
    v_and_b32 v1, 63, v0                   ; lane
    v_readfirstlane_b32 s20, v2
    s_and_b32 s58, s2, 7                   ; x
    s_lshr_b32 s59, s2, 3                  ; idx
    s_waitcnt lgkmcnt(0)
    """)
    k.srd(28, 10, 0x10000000)
    SPIN = int(os.environ.get("SPIN", 20000))
    k("s_mov_b32 s46, 1")
    def flag_store(soff, vt):
        k(f"""
        v_mov_b32 v{vt}, s46
        v_mov_b32 v{vt+1}, 0
        s_mov_b64 exec, 1
        buffer_store_dword v{vt}, v{vt+1}, s[28:31], {soff} offen
        """)
    def poll(vaddr, vdat, execmask, sbase):
        l = k.newlab("pl"); d = k.newlab("pd")
        k(f"s_mov_b32 s47, 0")
        k(execmask)
        k.lab(l)
        k(f"""
        buffer_load_dword v{vdat}, v{vaddr}, s[28:31], {sbase} offen sc1
        s_add_u32 s47, s47, 1
        s_waitcnt vmcnt(0)
        v_cmp_ne_u32 vcc, s46, v{vdat}
        s_cmp_ge_u32 s47, {SPIN}
        s_cbranch_scc1 {d}
        s_cbranch_vccnz {l}
        """)
        k.lab(d)
        k("s_mov_b64 exec, -1")
    k(f"""
    s_cmp_ge_u32 s59, 20
    s_cbranch_scc1 k1_help
    s_mul_i32 s2, s58, 20
    s_add_u32 s2, s2, s59                  ; s2 := cg
    """)
    if os.environ.get("PRIO", "1") == "1": k("s_setprio 3")
    k.stamp(0)
    k.srd(24, 4, 640 * 4096)
    k(f"""
    s_lshl_b32 s21, s2, 3
    s_add_u32 s22, s6, s21
    s_addc_u32 s23, s7, 0
    s_load_dwordx2 s[32:33], s[22:23], 0
    s_lshl_b32 s21, s2, 2
    s_add_u32 s21, s21, s20                 ; ch
    s_mul_i32 s34, s20, {WREG}
    v_lshlrev_b32 v3, 4, v1                 ; lane*16
    s_lshl_b32 s35, s21, 12                 ; ch*4096
    s_add_u32 s36, s34, 256
    s_mov_b32 m0, s36
    s_mul_i32 s37, s21, {L.KVR_CH}
    s_add_u32 s37, s37, {L.KVR}
    """)
    for i in range(4):
        k(f"buffer_load_dwordx4 v3, s[24:27], s35 offen offset:{1024*i} lds")
    k(f"""
    s_add_u32 s36, s34, {KB + 256}
    s_mov_b32 m0, s36
    s_add_u32 s40, s35, 8
    v_mov_b32 v16, 0
    """)
    for i in range(4):
        k(f"buffer_load_dwordx4 v3, s[24:27], s40 offen offset:{1024*i} lds")
    k(f"buffer_load_dwordx2 v[18:19], v16, s[24:27], s35 offen")
    k(f"""
    v_lshrrev_b32 v4, 3, v0
    v_mul_u32_u24 v4, 20480, v4
    s_lshr_b32 s38, s2, 1
    s_and_b32 s38, s38, 7
    v_and_b32 v5, 7, v0
    v_xor_b32 v5, s38, v5
    v_lshl_add_u32 v4, v5, 4, v4            ; (t>>3)*20480 + ((t&7)^sw)*16
    s_lshl_b32 s38, s2, 7                   ; cg*128
    s_add_u32 s36, s34, 4352
    s_mov_b32 m0, s36
    s_nop 0
    """)
    for i in range(4):
        k(f"buffer_load_dwordx4 v3, s[28:31], s37 offen offset:{1024*i} lds")
    k(f"""
    s_add_u32 s36, s34, {4352+4096}
    s_mov_b32 m0, s36
    s_add_u32 s37, s37, 4096
    buffer_load_dwordx4 v3, s[28:31], s37 offen lds
    """)
    def late_load(i):
        e = i // 2
        if i % 2 == 0:
            k(f"s_add_u32 s39, s38, {L.Q4 + e*32*20480}")
            k(f"buffer_load_dwordx4 a[{4*e}:{4*e+3}], v4, s[28:31], s39 offen")
        else:
            k(f"v_lshlrev_b32 v16, 4, v0")
            k(f"s_mov_b32 s39, {L.ST1 + 4096*e}")
            k(f"buffer_load_dwordx4 a[{16+4*e}:{19+4*e}], v16, s[28:31], s39 offen")
    MS = lambda part, vec: (68 + 12*part + 4*vec) if part < 2 else (68 + 24 + 4*vec if (part == 2 and vec < 2) else None)
    mreg = {}
    free = [68, 72, 76, 80, 84, 12, 16, 48, 52, 56, 60, 64]
    k(f"""
    s_lshl_b32 s22, s2, 4
    s_add_u32 s22, s22, {L.MODP}
    s_add_u32 s22, s10, s22
    s_addc_u32 s23, s11, 0
    """)
    for part in range(4):
        for vec in range(3):
            r = free.pop(0); mreg[(part, vec)] = r
            k(f"s_load_dwordx4 s[{r}:{r+3}], s[22:23], {part*3840*4 + vec*2560}")
    k(f"""
    v_lshl_add_u32 v5, v1, 2, s34
    v_mov_b32 v6, 0
    ds_write_b32 v5, v6
    ds_write_b32 v5, v6 offset:{KB}
    v_and_b32 v7, 15, v1                    ; n16
    v_bfe_u32 v8, v1, 4, 1                  ; ph
    v_lshrrev_b32 v9, 5, v1                 ; g
    v_mul_u32_u24 v10, 272, v7
    v_lshl_add_u32 v10, v9, 4, v10
    v_add_u32 v10, s34, v10
    v_add_u32 v10, {4352+4}, v10
    v_lshlrev_b32 v11, 2, v8
    v_sub_u32 v10, v10, v11
    v_and_b32 v12, 7, v1
    v_mul_u32_u24 v13, 272, v12
    v_lshl_add_u32 v13, v9, 4, v13
    v_add_u32 v13, s34, v13
    v_add_u32 v13, {4352+4}, v13
    v_sub_u32 v13, v13, v11                 ; vBP
    v_bfe_u32 v11, v1, 3, 1                 ; a'
    v_lshlrev_b32 v11, 4, v11
    v_sub_u32 v11, 16, v11
    v_and_b32 v14, 31, v1
    v_lshlrev_b32 v14, 3, v14
    v_lshl_add_u32 v14, v9, 4, v14
    v_add_u32 v14, s34, v14
    v_and_b32 v17, 1, v1
    v_mul_u32_u24 v17, {KB - 8}, v17
    v_sub_u32 v17, {KB}, v17
    v_add_u32 v14, v17, v14                 ; vA
    v_cmp_ne_u32 vcc, 0, v12
    v_mov_b32 v16, 0
    s_nop 1
    v_cndmask_b32 v15, v16, -1, vcc
    """)
    k("s_waitcnt lgkmcnt(0)")
    MB = [32, 48, 64]
    for vec in range(3):
        for c in range(4): k(f"v_mov_b32 v{MB[vec]+c}, s{mreg[(0,vec)]+c}")
    for part in range(1, 4):
        for vec in range(3):
            for c in range(4): k(f"v_add_f32 v{MB[vec]+c}, s{mreg[(part,vec)]+c}, v{MB[vec]+c}")
    for vec in range(3):
        for c in (0, 2): k.round2(MB[vec] + c, MB[vec] + c + 1, MB[vec] + 4)
    for c in range(4): k(f"v_add_f32 v{MB[1]+c}, 1.0, v{MB[1]+c}")
    for c in (0, 2): k.round2(MB[1] + c, MB[1] + c + 1, MB[1] + 4)
    for c in range(4):
        k(f"v_mul_f32 v{240+c}, v{MB[1]+c}, v{MB[2]+c}")
        k(f"v_mul_f32 v{244+c}, v{MB[0]+c}, v{MB[2]+c}")
    k(f"""
    s_add_u32 s36, s34, {KB + 248}
    v_mov_b32 v17, s36
    s_waitcnt vmcnt(0)
    s_mov_b64 exec, 1
    ds_write_b64 v17, v[18:19]
    s_mov_b64 exec, -1
    s_waitcnt lgkmcnt(0)
    """)
    B0, B1, BP, AX, AY, AP_, AM, APk = 32, 64, 96, 128, 144, 160, 176, 208
    k.stamp(1)
    def aread(reg, off):
        return f"ds_read_b128 {vr(reg,4)}, v14 offset:{off}"
    for ks in range(8):
        k(aread(AM+4*ks, 256*7+32*ks))
    TB = 16
    for ks in range(8):
        k(f"ds_read2_b32 {vr(B1+4*ks,2)}, v10 offset0:{8*ks} offset1:{8*ks+1}")
        k(f"ds_read2_b32 {vr(B1+4*ks+2,2)}, v10 offset0:{8*ks+2} offset1:{8*ks+3}")
    prd = []
    for ks in range(8):
        prd.append(f"ds_read_b32 v{TB+ks}, v10 offset:{32*ks+16}")
    for ks in range(8):
        prd.append(f"ds_read2_b32 {vr(BP+4*ks,2)}, v13 offset0:{8*ks} offset1:{8*ks+1}")
        prd.append(f"ds_read2_b32 {vr(BP+4*ks+2,2)}, v13 offset0:{8*ks+2} offset1:{8*ks+3}")
        prd.append(f"ds_read_b32 v{TB+8+ks}, v13 offset:{32*ks+16}")
    al0 = []; alp = []
    for ks in range(8):
        for d in range(4):
            hi = B1 + 4*ks + d + 1 if d < 3 else TB + ks
            al0.append(f"v_alignbit_b32 v{B0+4*ks+d}, v{hi}, v{B1+4*ks+d}, 16")
            hi = BP + 4*ks + d + 1 if d < 3 else TB + 8 + ks
            alp.append(f"v_alignbit_b32 v{BP+4*ks+d}, v{hi}, v{BP+4*ks+d}, v11")
    k.stamp(2)
    DPP = "row_mask:0xf bank_mask:0xf bound_ctrl:0"
    def mfma(acc, a, b, first):
        c = "0" if first else vr(acc, 16)
        k(f"v_mfma_f32_32x32x16_bf16 {vr(acc,16)}, {vr(a,4)}, {vr(b,4)}, {c}")
    def phase(acc, Areg, Breg, first, reads, late, pad=True, rg=8):
        reads = list(reads); late = list(late)
        for ks in range(8):
            mfma(acc, Areg + 4*ks, Breg + 4*ks, first and ks == 0)
            n = (len(reads) + (rg - 1 - ks)) // (rg - ks) if ks < rg else 0
            for s in reads[:n]:
                k(s)
            reads = reads[n:]
            if ks < 2:
                if pad and late and n < 5:
                    k(f"s_nop {4 - n}")
            else:
                n = (len(late) + (7 - ks)) // (8 - ks)
                for s in late[:n]:
                    k(s)
                late = late[n:]
        assert not late and not reads
    def shift_ops(acc, masked):
        if masked:
            return [f"v_and_b32_dpp v{acc+r}, v{acc+r}, v15 row_shr:1 {DPP}" for r in range(16)]
        return [f"v_mov_b32_dpp v{acc+r}, v{acc+r} row_shr:1 {DPP}" for r in range(16)]
    def areads(reg, off):
        o = []
        for ks in range(8):
            o += aread(reg + 4*ks, off + 32*ks).split("\n")
        return o
    for q in range(7, -1, -1):
        first = (q == 7)
        if q <= 6 and q >= 3:
            late_load(2*(6-q))
        k("s_waitcnt lgkmcnt(0)")
        apl = areads(APk, 256*(q+8))
        if first:
            for ks in range(8):
                mfma(AY, AM + 4*ks, B1 + 4*ks, ks == 0)
                if ks == 0:
                    for x in prd[:16]: k(x)
                elif ks == 1:
                    for x in prd[16:]: k(x)
                elif ks == 2:
                    k("s_waitcnt lgkmcnt(15)")
                    k("s_waitcnt lgkmcnt(0)")
                    for x in al0[:4]: k(x)
                else:
                    for x in al0[4 + (ks-3)*6: 4 + (ks-2)*6]: k(x)
            k("s_nop 0")
            phase(AX, AM, B0, True, apl, alp[:16] + shift_ops(AY, False) + alp[16:] + ["s_nop 0"])
        else:
            phase(AY, AM, B1, False, apl, shift_ops(AP_, True))
            if q <= 6 and q >= 3: late_load(2*(6-q) + 1)
            phase(AX, AM, B0, False, [], shift_ops(AY, False) if q > 0 else [])
        k("s_waitcnt lgkmcnt(0)")
        aml = areads(AM, 256*(q-1)) if q > 0 else []
        phase(AP_, APk, BP, first, aml, shift_ops(AX, False) if q > 0 else [], rg=5)
    k.stamp(3)
    k("s_nop 11")
    for r in range(16):
        k(f"v_add_f32_dpp v{AX+r}, v{AP_+r}, v{AX+r} row_shr:8 {DPP}")
    k("""
    s_mov_b32 s42, 0xff00ff00
    s_mov_b32 s43, 0xff00ff00
    s_mov_b64 exec, s[42:43]
    """)
    for r in range(16):
        k(f"v_add_f32 v{AY+r}, v{AP_+r}, v{AY+r}")
    k("s_mov_b64 exec, -1")
    k(f"""
    v_mul_u32_u24 v16, 264, v7
    v_lshl_add_u32 v16, v9, 5, v16
    v_lshl_add_u32 v16, v8, 2, v16
    v_add_u32 v16, s34, v16
    """)
    for r in range(16):
        k(f"v_cvt_pk_bf16_f32 v{32+r}, v{AX+r}, v{AY+r}")
    for r in range(16):
        k(f"ds_write_b32 v16, v{32+r} offset:{64*(r>>2)+8*(r&3)}")
    k(f"""
    s_lshl_b32 s44, s32, 16
    s_and_b32 s45, s32, 0xffff0000
    s_lshl_b32 s46, s33, 16
    s_and_b32 s47, s33, 0xffff0000
    v_mul_u32_u24 v17, 264, v2
    v_lshl_add_u32 v17, v1, 2, v17
    s_waitcnt lgkmcnt(0)
    s_barrier
    """)
    Y = 48
    KV = 224
    k(f"""
    v_mul_u32_u24 v19, 272, v2
    v_lshlrev_b32 v18, 2, v1
    v_sub_u32 v19, v19, v18
    v_add_u32 v19, {4352 + 252}, v19
    """)
    for e in range(4):
        for c in range(4):
            k(f"ds_read_b32 v{Y+4*e+c}, v17 offset:{c*WREG+1056*e}")
    k("s_waitcnt lgkmcnt(0)")
    for e in range(4):
        for c in range(4):
            k(f"ds_read_b32 v{KV+4*e+c}, v19 offset:{c*WREG+1088*e}")
    T = 64; O = 96
    QF, SR, PP = 112, 144, 240
    k(f"""
    v_mov_b32 v28, s44
    v_mov_b32 v29, s45
    v_mov_b32 v30, s46
    v_mov_b32 v31, s47
    s_waitcnt vmcnt(0)
    """)
    for i in range(16):
        k(f"v_accvgpr_read_b32 v{176+i}, a{i}")
        k(f"v_accvgpr_read_b32 v{SR+i}, a{16+i}")
    k("s_waitcnt lgkmcnt(0)")
    BCX = "op_sel:[0,1,0] op_sel_hi:[1,1,0]"
    for e in range(4):
        for c in range(4):
            k.unpack(T + 4 + c, T + c, KV + 4*e + c)
        for c in range(4):
            k.unpack(T + 10 + c, T + 14 + c, Y + 4*e + c)
        for d in range(4):
            k.unpack(QF + 2*d, QF + 2*d + 1, 176 + 4*e + d)
        for d in range(4):
            k(f"v_pk_fma_f32 {vr(T+2*d,2)}, {vr(T+2*d,2)}, {vr(28+2*(d%2),2)}, {vr(T+10+2*d,2)}")
        for d in range(4):
            S_ = SR + 4*e + 2*(d // 2)
            k(f"v_pk_fma_f32 {vr(QF+8+2*d,2)}, {vr(QF+2*d,2)}, {vr(S_,2)}, {vr(S_,2)} {BCX}")
        for d in range(4):
            k(f"v_pk_fma_f32 {vr(QF+8+2*d,2)}, {vr(QF+8+2*d,2)}, {vr(PP+2*(d%2),2)}, {vr(PP+4+2*(d%2),2)}")
        for d in range(4):
            k(f"v_pk_fma_f32 {vr(T+2*d,2)}, {vr(T+2*d,2)}, {vr(QF+8+2*d,2)}, {vr(QF+2*d,2)}")
        for d in range(4):
            k(f"v_cvt_pk_bf16_f32 v{O+4*e+d}, v{T+2*d}, v{T+2*d+1}")
    k(f"s_add_u32 s39, s38, {L.YT}")
    for e in range(4):
        k(f"buffer_store_dwordx4 {vr(O+4*e,4)}, v4, s[28:31], s39 offen")
        k(f"s_add_u32 s39, s39, {32*20480}")
    k.stamp(4)
    k("s_waitcnt vmcnt(0)")
    k.stamp(5)
    k.stamp_end(6)
    if merged:
        lj = k.newlab("cj")
        k(f"""
        s_setprio 0
        s_barrier
        s_cmp_lg_u32 s20, 0
        s_cbranch_scc1 main_join
        """)
        arrive(f"s_and_b32 s44, s2, 15\n        s_lshl_b32 s44, s44, 7\n        s_add_u32 s44, s44, {L.FC}")
    else:
        k("s_endpgm")

    k.lab("k1_help")
    import gen3
    k(f"""
    s_mul_i32 s21, s58, 12
    s_add_u32 s21, s21, s59
    s_sub_u32 s21, s21, 20
    s_mul_i32 s22, s20, 96
    s_add_u32 s21, s21, s22               ; task
    s_mul_i32 s34, s20, {WREG}
    s_cmp_lt_u32 s21, 120
    s_cbranch_scc1 k1_mod0
    s_sub_u32 s21, s21, 120
    s_cmp_lt_u32 s21, 154
    s_cbranch_scc1 k1_pack
    s_sub_u32 s21, s21, 154
    s_cmp_lt_u32 s21, 30
    s_cbranch_scc1 k1_fin
    {done}
    """)
    k.lab("k1_mod0")
    k("s_add_u32 s21, s21, 120")
    k.lab("k1_mod")
    C, W, A, T = 8, 32, 112, 120
    k(f"""
    s_lshr_b32 s32, s21, 2               ; cb
    s_and_b32 s33, s21, 3                ; kq
    v_lshrrev_b32 v4, 3, v1              ; row_l
    v_and_b32 v3, 7, v1                  ; chunk
    s_mul_i32 s34, s33, 160
    v_add_u32 v4, s34, v4
    v_lshlrev_b32 v5, 1, v4              ; c offset
    v_mul_u32_u24 v6, 7680, v4
    s_lshl_b32 s36, s32, 7
    v_lshl_add_u32 v7, v3, 4, s36
    v_add_u32 v6, v6, v7
    """)
    k.srd(16, 52, 1280); k.srd(24, 62, 640 * 7680)
    k(f"""
    s_mul_i32 s35, s33, 320
    v_lshlrev_b32 v5, 3, v1
    buffer_load_dwordx2 v[30:31], v5, s[16:19], s35 offen
    s_mov_b32 s37, 0
    """)
    for it in range(20):
        k(f"buffer_load_dwordx4 {vr(W+4*it,4)}, v6, s[24:27], s37 offen {NT}")
        if it < 19: k(f"s_add_u32 s37, s37, {8*7680}")
    TT = T
    k(f"""
    s_mul_i32 s35, s20, {WREG}
    v_lshlrev_b32 v5, 4, v1
    v_add_u32 v5, s35, v5
    v_lshrrev_b32 v29, 3, v1
    v_lshlrev_b32 v29, 2, v29
    v_add_u32 v29, s35, v29
    s_waitcnt vmcnt(20)
    """)
    k.unpack(C, C + 1, 30); k.unpack(C + 2, C + 3, 31)
    for i in range(4): k(f"v_mul_f32 v{TT+i}, 0xbfb8aa3b, v{C+i}")
    for i in range(4): k(f"v_exp_f32 v{TT+i}, v{TT+i}")
    for i in range(4): k(f"v_add_f32 v{TT+i}, 1.0, v{TT+i}")
    for i in range(4): k(f"v_rcp_f32 v{TT+i}, v{TT+i}")
    k("s_nop 0")
    for i in range(4): k(f"v_mul_f32 v{C+i}, v{C+i}, v{TT+i}")
    for i in (0, 2): k.round2(C + i, C + i + 1, TT)
    k(f"ds_write_b128 v5, {vr(C,4)}")
    k("s_waitcnt lgkmcnt(0)")
    for it in range(20): k(f"ds_read_b32 v{C+it}, v29 offset:{32*it}")
    k("s_waitcnt lgkmcnt(0)")
    for j in range(8): k(f"v_mov_b32 v{A+j}, 0")
    for it in range(20):
        k(f"s_waitcnt vmcnt({19-it})")
        for d in range(4): k.unpack(T + 2*d, T + 2*d + 1, W + 4*it + d)
        sel = "op_sel:[0,0,0] op_sel_hi:[1,0,1]" if it % 2 == 0 else "op_sel:[0,1,0] op_sel_hi:[1,1,1]"
        for d in range(4):
            k(f"v_pk_fma_f32 {vr(A+2*d,2)}, {vr(T+2*d,2)}, {vr(C+(it&~1),2)}, {vr(A+2*d,2)} {sel}")
    k("s_nop 1")
    for d in range(8):
        k(f"v_add_f32_dpp v{A+d}, v{A+d}, v{A+d} row_ror:8 row_mask:0xf bank_mask:0xf")
    for x in gen3.reduce_g_ops([A + d for d in range(8)], T): k(x)
    k(f"""
    v_lshlrev_b32 v7, 5, v3
    s_mul_i32 s36, s33, {3840*4}
    s_lshl_b32 s37, s32, 8
    s_add_u32 s37, s37, s36
    s_add_u32 s37, s37, {L.MODP}
    s_lshl_b32 s44, s21, 7
    s_add_u32 s44, s44, {L.FM}
    s_mov_b64 exec, 0xff
    buffer_store_dwordx4 {vr(A,4)}, v7, s[28:31], s37 offen
    buffer_store_dwordx4 {vr(A+4,4)}, v7, s[28:31], s37 offen offset:16
    s_mov_b64 exec, -1
    s_waitcnt vmcnt(0)
    """)
    flag_store("s44", 132)
    k("s_mov_b64 exec, -1")
    k(done)
    k.lab("k1_fin")
    k("s_add_u32 s21, s21, 30")
    k(f"""
    s_lshl_b32 s40, s21, 9
    s_add_u32 s40, s40, {L.FM}
    v_lshlrev_b32 v16, 7, v1
    """)
    poll(16, 17, "s_mov_b64 exec, 15", "s40")
    k(f"""
    v_lshlrev_b32 v7, 2, v1
    s_lshl_b32 s22, s21, 8
    s_add_u32 s23, s22, {L.MODP}
    """)
    for part in range(4):
        k(f"buffer_load_dword v{10+part}, v7, s[28:31], s23 offen sc1")
        if part < 3: k(f"s_add_u32 s23, s23, {3840*4}")
    l1 = k.newlab("f1"); l2 = k.newlab("f2")
    k(f"""
    s_waitcnt vmcnt(0)
    v_add_f32 v10, v10, v11
    v_add_f32 v12, v12, v13
    s_nop 0
    v_add_f32 v10, v10, v12
    s_nop 0
    v_cvt_pk_bf16_f32 v10, v10, v10
    s_nop 0
    v_lshlrev_b32 v10, 16, v10
    s_sub_u32 s24, s21, 10
    s_cmp_lt_u32 s24, 10
    s_cbranch_scc1 {l1}
    s_sub_u32 s24, s21, 40
    s_cmp_lt_u32 s24, 10
    s_cbranch_scc0 {l2}
    """)
    k.lab(l1)
    k("""
    v_add_f32 v10, 1.0, v10
    s_nop 0
    v_cvt_pk_bf16_f32 v10, v10, v10
    s_nop 0
    v_lshlrev_b32 v10, 16, v10
    """)
    k.lab(l2)
    k(f"""
    s_add_u32 s22, s22, {L.MODF}
    buffer_store_dword v10, v7, s[28:31], s22 offen
    """)
    arrive(f"s_and_b32 s44, s21, 3\n        s_lshl_b32 s44, s44, 7\n        s_add_u32 s44, s44, {L.FH}")
    k.lab("k1_pack")
    labs = [k.newlab("pk") for _ in range(4)]
    k(f"""
    v_lshrrev_b32 v3, 3, v1
    v_and_b32 v4, 7, v1                    ; chunk
    v_mul_u32_u24 v5, 144, v3
    v_lshl_add_u32 v5, v4, 4, v5
    v_add_u32 v5, s34, v5
    v_and_b32 v6, 15, v1
    v_lshrrev_b32 v7, 4, v1                ; g
    v_lshrrev_b32 v8, 2, v6
    v_lshl_add_u32 v8, v7, 3, v8           ; 8g + (i>>2)
    v_mul_u32_u24 v8, 144, v8
    v_and_b32 v9, 3, v6
    v_lshl_add_u32 v8, v9, 3, v8
    v_add_u32 v8, s34, v8
    v_lshlrev_b32 v9, 4, v1                ; lane*16
    s_cmp_lt_u32 s21, 20
    s_cbranch_scc1 {labs[0]}
    s_cmp_lt_u32 s21, 40
    s_cbranch_scc1 {labs[1]}
    s_cmp_lt_u32 s21, 94
    s_cbranch_scc1 {labs[2]}
    s_branch {labs[3]}
    """)
    for m in range(4):
        k.lab(labs[m])
        N = [640, 640, 1728, 640][m]; Kd = [640, 640, 640, 1728][m]
        pitch = N * 2
        nks = 10 if m < 3 else 9
        ub = [0, 20, 40, 94][m]
        ncb = N // 64
        k.srd(24, 12 + 2*m, Kd * N * 2)
        magic = {10: (52429, 19), 27: (2428, 16)}[ncb]
        k(f"""
        s_sub_u32 s32, s21, {ub}
        s_mul_i32 s33, s32, {magic[0]}
        s_lshr_b32 s33, s33, {magic[1]}       ; kq
        s_mul_i32 s35, s33, {ncb}
        s_sub_u32 s35, s32, s35               ; cbk
        v_mul_u32_u24 v10, {pitch}, v3
        v_lshl_add_u32 v10, v4, 4, v10
        s_mul_i32 s36, s33, {nks*32*pitch}
        s_lshl_b32 s37, s35, 7
        s_add_u32 s36, s36, s37
        """)
        R = 32
        for i in range(nks):
            for j in range(4):
                k(f"buffer_load_dwordx4 {vr(R+16*i+4*j,4)}, v10, s[24:27], s36 offen {NT}")
                if not (i == nks - 1 and j == 3): k(f"s_add_u32 s36, s36, {8*pitch}")
        for nt in range(4):
            k(f"s_lshl_b32 s36, s35, 2")
            k(f"s_add_u32 s36, s36, {nt}")
            if m < 2:
                k(f"""
                s_mul_i32 s38, s36, 6554
                s_lshr_b32 s38, s38, 16
                s_mul_i32 s39, s38, 10
                s_sub_u32 s39, s36, s39
                s_cmp_ge_u32 s39, 5
                s_cselect_b32 s40, 1, 0
                s_sub_u32 s41, s39, 6
                s_cmp_eq_u32 s39, 5
                s_cselect_b32 s41, 4, s41
                s_cmp_eq_u32 s40, 1
                s_cselect_b32 s39, s41, s39
                s_mul_i32 s37, s38, 200
                s_mul_i32 s40, s40, 100
                s_add_u32 s37, s37, s40
                s_mul_i32 s40, s33, 50
                s_add_u32 s37, s37, s40
                s_add_u32 s37, s37, s39
                s_lshl_b32 s37, s37, 10
                s_add_u32 s{44+nt}, s37, {L.W1C if m == 0 else L.W2C}
                s_movk_i32 s{48+nt}, 5120
                """)
            elif m == 2:
                k(f"""
                s_mul_i32 s38, s36, 9363
                s_lshr_b32 s38, s38, 16
                s_mul_i32 s39, s38, 7
                s_sub_u32 s39, s36, s39
                s_sub_u32 s41, s39, 1
                s_cmp_eq_u32 s39, 0
                s_cselect_b32 s41, 6, s41
                s_and_b32 s40, s38, 1
                s_cmp_eq_u32 s40, 1
                s_cselect_b32 s39, s41, s39
                s_mov_b32 s41, 4
                s_mov_b32 s40, s39
                s_cmp_ge_u32 s39, 4
                s_cselect_b32 s41, 2, s41
                s_add_u32 s42, s39, 76
                s_cmp_ge_u32 s39, 4
                s_cselect_b32 s40, s42, s40
                s_cmp_eq_u32 s39, 6
                s_cselect_b32 s41, 1, s41
                s_cselect_b32 s40, 120, s40
                s_mul_i32 s42, s33, 10
                s_mul_i32 s42, s42, s41
                s_add_u32 s40, s40, s42
                s_mul_i32 s37, s38, 140
                s_add_u32 s37, s37, s40
                s_lshl_b32 s37, s37, 10
                s_add_u32 s{44+nt}, s37, {L.W3C}
                s_lshl_b32 s{48+nt}, s41, 10
                """)
            else:
                k(f"""
                s_mul_i32 s38, s36, 13108
                s_lshr_b32 s38, s38, 16
                s_mul_i32 s39, s38, 5
                s_sub_u32 s39, s36, s39
                s_sub_u32 s41, s39, 1
                s_cmp_eq_u32 s39, 0
                s_cselect_b32 s41, 4, s41
                s_and_b32 s40, s38, 1
                s_cmp_eq_u32 s40, 1
                s_cselect_b32 s39, s41, s39
                s_mul_i32 s40, s33, 21846
                s_lshr_b32 s40, s40, 16
                s_mul_i32 s41, s40, 3
                s_sub_u32 s41, s33, s41
                s_mul_i32 s37, s38, 270
                s_mul_i32 s41, s41, 90
                s_add_u32 s37, s37, s41
                s_mul_i32 s40, s40, 5
                s_add_u32 s37, s37, s40
                s_add_u32 s37, s37, s39
                s_lshl_b32 s37, s37, 10
                s_add_u32 s{44+nt}, s37, {L.W4C}
                s_movk_i32 s{48+nt}, 10240
                """)
        cs = m in (0, 2)
        if cs:
            for nt in range(4): k(f"v_mov_b32 v{12+nt}, 0")
            k("v_mov_b32 v16, 0x3f803f80")
        F = 200
        nld = nks * 4
        def wr(i):
            k(f"s_waitcnt vmcnt({min(63, nld - 4*(i+1) + stores[0])})")
            for j in range(4):
                k(f"ds_write_b128 v5, {vr(R+16*i+4*j,4)} offset:{4608*(i&1) + 1152*j}")
        stores = [0]
        wr(0)
        for i in range(nks):
            k("s_waitcnt lgkmcnt(0)")
            for nt in range(4):
                k(f"ds_read_b64_tr_b16 {vr(F+16*(i&1)+4*nt,2)}, v8 offset:{4608*(i&1) + 32*nt}")
                k(f"ds_read_b64_tr_b16 {vr(F+16*(i&1)+4*nt+2,2)}, v8 offset:{4608*(i&1) + 32*nt + 576}")
            if i + 1 < nks: wr(i + 1)
            k(f"s_waitcnt lgkmcnt({4 if i + 1 < nks else 0})")
            for nt in range(4):
                k(f"buffer_store_dwordx4 {vr(F+16*(i&1)+4*nt,4)}, v9, s[28:31], s{44+nt} offen")
                k(f"s_add_u32 s{44+nt}, s{44+nt}, s{48+nt}")
                stores[0] += 1
                if cs:
                    for d in range(4): k(f"v_dot2_f32_bf16 v{12+nt}, v{F+16*(i&1)+4*nt+d}, v16, v{12+nt}")
        if cs:
            k("s_nop 2")
            for x in gen3.reduce_g_ops([12, 13, 14, 15], 20): k(x)
            k(f"""
            s_mul_i32 s38, s33, {1792*4}
            s_lshl_b32 s39, s35, 8
            s_add_u32 s38, s38, s39
            s_add_u32 s38, s38, {L.CS3P if m == 2 else L.CS1P}
            v_lshlrev_b32 v14+0, 0, v14
            """.replace("v_lshlrev_b32 v14+0, 0, v14", "v_lshlrev_b32 v17, 2, v1"))
            k("s_mov_b64 exec, 0xffff")
            for nt in range(4):
                k(f"buffer_store_dword v{12+nt}, v17, s[28:31], s38 offen offset:{64*nt}")
        arrive(f"s_and_b32 s44, s21, 3\n        s_lshl_b32 s44, s44, 7\n        s_add_u32 s44, s44, {L.FH}")
    if not merged:
        k.lab(end)
        k("s_endpgm")
    return k

def build(kerns, path):
    hdr = open(os.path.join(os.path.dirname(os.path.abspath(__file__)), "..", NAME + ".s.ref")).read().split("\n")
    com = [l for l in hdr if l.startswith(";") and "@launch" not in l and "Override launch" not in l and "grid=ceil" not in l]
    s = "\n".join(com) + "\n"
    for k in kerns:
        s += f"; @launch kernel={k.name} grid=({k.grid},1,1) block=({k.block},1,1) lds={k.lds}\n"
    s += '.amdgcn_target "amdgcn-amd-amdhsa--gfx950"\n.text\n'
    for k in kerns:
        s += k.text()
    s += '.section .rodata,"a"\n'
    for k in kerns:
        s += k.kd()
    open(path, "w").write(s)

if __name__ == "__main__":
    out = sys.argv[1] if len(sys.argv) > 1 else os.path.join(os.path.dirname(os.path.abspath(__file__)), "..", NAME + ".s")
    MERGED = os.environ.get("MRG", "0") == "1"
    kerns = [gen_k0()] + ([] if MERGED else [gen_k1()])
    try:
        import gen3
        kerns += [gen3.gen_chain(Kern, gen_k1 if MERGED else None)]
    except ImportError:
        raise
    build(kerns, out)
    print("wrote", out)
```

```python
import os, struct
import layout as L
SZ_SD = 2048 * 640 * 2
C0 = -2.0 * 0.7978845608028654 * 1.4426950408889634
C1 = C0 * 0.044715
def fhex(x):
    return "0x%08x" % struct.unpack("<I", struct.pack("<f", x))[0]
def vr(a, n): return f"v[{a}:{a+n-1}]" if n > 1 else f"v{a}"
def ar(a, n): return f"a[{a}:{a+n-1}]"
E = lambda n, d: int(os.environ.get(n, d))
SPIN = E("SPIN", 20000)
XSC = os.environ.get("XSC", "sc1")

class VQ:
    def __init__(self, k): self.k, self.q, self.seen = k, [], set()
    def note(self, tag): self.q.append(tag); self.seen.add(tag)
    def issue(self, text, tag): self.k(text); self.q.append(tag); self.seen.add(tag)
    def waittext(self, tag, extra=""):
        assert tag in self.seen, f"wait for {tag} before issue"
        idx = [i for i, t in enumerate(self.q) if t == tag]
        if not idx:
            return f"s_waitcnt {extra}" if extra else None
        n = len(self.q) - 1 - idx[-1]
        self.q = self.q[idx[-1] + 1:] if n <= 63 else self.q[-63:]
        return f"s_waitcnt vmcnt({min(n, 63)}) {extra}"
    def wait(self, tag, extra=""):
        t = self.waittext(tag, extra)
        if t: self.k(t)
    def drain(self, extra=""):
        self.k(f"s_waitcnt vmcnt(0) {extra}"); self.q = []

def il(main, side, frac=1.0):
    out = []; n = max(1, int(len(main) * frac)); m = len(side); si = 0
    for i, x in enumerate(main):
        out.append(x)
        want = min(m, m * (i + 1) // n)
        while si < want:
            out.append(side[si]); si += 1
    out += side[si:]
    return out

def zipl(*ls):
    out = []; ls = [list(l) for l in ls]
    while any(ls):
        for l in ls:
            if l: out.append(l.pop(0))
    return out

def ln_ops(s1, s2, t, n):
    return [f"v_mul_f32 v{s1}, {fhex(1.0/n)}, v{s1}", f"v_mul_f32 v{s2}, {fhex(1.0/n)}, v{s2}",
            f"v_fma_f32 v{s2}, -v{s1}, v{s1}, v{s2}", f"v_max_f32 v{s2}, 0, v{s2}",
            f"v_cvt_pk_bf16_f32 v{t}, v{s1}, v{s2}", f"v_lshlrev_b32 v{s1}, 16, v{t}", f"v_and_b32 v{s2}, 0xffff0000, v{t}",
            f"v_add_f32 v{s2}, {fhex(1e-5)}, v{s2}", f"v_cvt_pk_bf16_f32 v{t}, v{s2}, v{s2}", f"v_lshlrev_b32 v{s2}, 16, v{t}",
            f"v_sqrt_f32 v{s2}, v{s2}", "s_nop 0", f"v_cvt_pk_bf16_f32 v{t}, v{s2}, v{s2}", f"v_lshlrev_b32 v{s2}, 16, v{t}",
            f"v_rcp_f32 v{s2}, v{s2}", "s_nop 0", f"v_mul_f32 v{s1}, v{s1}, v{s2}", f"v_sub_f32 v{s1}, 0, v{s1}"]

def reduce16_ops(regs):
    o = []
    for ci, ctl in enumerate(("quad_perm:[1,0,3,2]", "quad_perm:[2,3,0,1]", "row_half_mirror", "row_mirror")):
        if len(regs) < 3 or ci == 0: o.append("s_nop 1")
        for a in regs: o.append(f"v_add_f32_dpp v{a}, v{a}, v{a} {ctl} row_mask:0xf bank_mask:0xf")
    return o

def reduce_g_ops(regs, t):
    o = []
    for sw in ("v_permlane32_swap_b32", "v_permlane16_swap_b32"):
        for i, a in enumerate(regs): o.append(f"v_mov_b32 v{t+i}, v{a}")
        o.append("s_nop 1")
        for i, a in enumerate(regs): o.append(f"{sw} v{t+i}, v{a}")
        o.append("s_nop 1")
        for i, a in enumerate(regs): o.append(f"v_add_f32 v{a}, v{a}, v{t+i}")
    return o

def gelu_ops(z, t, vc, n):
    o = []
    for i in range(0, n, 2): o.append(f"v_pk_mul_f32 {vr(t+i,2)}, {vr(z+i,2)}, {vr(z+i,2)}")
    for i in range(0, n, 2): o.append(f"v_pk_fma_f32 {vr(t+i,2)}, {vr(t+i,2)}, {vr(vc,2)}, {vr(vc,2)} op_sel:[0,0,1] op_sel_hi:[1,0,1]")
    for i in range(0, n, 2): o.append(f"v_pk_mul_f32 {vr(t+i,2)}, {vr(t+i,2)}, {vr(z+i,2)}")
    for i in range(n): o.append(f"v_exp_f32 v{t+i}, v{t+i}")
    for i in range(0, n, 2): o.append(f"v_pk_add_f32 {vr(t+i,2)}, {vr(t+i,2)}, 1.0 op_sel_hi:[1,0]")
    for i in range(n): o.append(f"v_rcp_f32 v{t+i}, v{t+i}")
    for i in range(0, n, 2): o.append(f"v_pk_mul_f32 {vr(z+i,2)}, {vr(z+i,2)}, {vr(t+i,2)}")
    return o

BC = "op_sel:[0,1,0] op_sel_hi:[1,1,0]"

YL, AT, MODL = 0, 40960, 122880
RSL = 138240
CSL = 139264
EX = 143360
CS3L = 162816
LDS_TOTAL = 163840

G4MAP = """s_and_b32 s57, s26, 7
    s_lshr_b32 s27, s26, 3
    s_and_b32 s58, s2, 7
    s_lshl_b32 s58, s58, 2
    s_add_u32 s58, s58, s27""" if os.environ.get("G4_1D", "1") == "1" else ""
G3MAP = """s_and_b32 s52, s26, 15
    s_lshr_b32 s27, s26, 4
    s_and_b32 s53, s2, 7
    s_lshl_b32 s53, s53, 1
    s_add_u32 s53, s53, s27""" if os.environ.get("G3_1D", "0") == "1" else ""
def gen_chain(Kern, front=None):
    kern = Kern("chain_kernel", 256, 256, LDS_TOTAL, vgpr=256, sgpr=100, agpr=256)
    if front:
        front(kern)
        kern.lab("main_join")
        kern("s_mov_b32 s2, s99")
    class KW:
        def __init__(s): s.clock = 0.0; s.last = 0.0; s.src = None; s.interval = 80; s.busy = False
        def cost(s, ln):
            op = ln.split()[0]
            if op.startswith("v_mfma"): return 16
            if op.startswith(("v_exp", "v_rcp", "v_sqrt", "v_rsq", "v_permlane")): return 8.3
            if op.startswith("ds_write"): return 35
            if op.startswith("ds_"): return 13
            if op.startswith("buffer_"): return 14
            if op.startswith("v_"): return 4.2
            return 4.5
        def __call__(s, txt):
            for ln in txt.strip("\n").split("\n"):
                ln = ln.strip()
                if not ln: continue
                kern(ln)
                if ln.startswith(";"): continue
                s.clock += s.cost(ln)
                if s.src and not s.busy and s.clock - s.last >= s.interval and not ln.startswith(("s_cmp", "s_cbranch", "s_mov_b32 m0", "s_add_u32 m0", "s_mov_b64 exec", "s_mov_b32 exec", "v_cmp", "v_readfirstlane", "s_nop")) and s.safe:
                    s.busy = True
                    if s.src(): s.last = s.clock
                    s.busy = False
        safe = True
        def lab(s, l): kern.lab(l)
        def newlab(s, p="L"): return kern.newlab(p)
        def srd(s, d, b, size, off=0): kern.srd(d, b, size, off)
    k = KW()
    end = "chain_end"
    STOP = os.environ.get("STOP", "")
    vq = VQ(k)
    nst = [0, 0]
    SKIP = 8
    def stamp(grp=None):
        if os.environ.get("PROF3") and nst[0] < 18 and not (os.environ.get("PG3") and nst[1] < SKIP and (nst.__setitem__(1, nst[1] + 1) or True) and nst[1] > 1):
            op = "s_memtime" if os.environ.get("PROF3") == "cyc" else "s_memrealtime"
            k(f"{op} s[{64+2*nst[0]}:{65+2*nst[0]}]"); nst[0] += 1
    def emit(lst):
        for x in lst: k(x)
    class Pend:
        def __init__(s, items=()): s.items = list(items)
        def add(s, items): s.items += list(items)
        def pop(s, n=1):
            if getattr(s, "late", False) and n < 50: return
            for _ in range(n):
                if s.items:
                    t, tg = s.items.pop(0); vq.issue(t, tg)
        def has(s, tag): return any(tg == tag for _, tg in s.items)
    stamp()
    k(f"""
    s_cmp_ge_u32 s2, 256
    s_cbranch_scc1 {end}
    s_load_dwordx2 s[4:5], s[0:1], 0
    s_load_dwordx2 s[6:7], s[0:1], 104
    s_load_dwordx2 s[10:11], s[0:1], 120
    v_lshrrev_b32 v2, 6, v0
    v_and_b32 v1, 63, v0
    v_readfirstlane_b32 s20, v2
    s_and_b32 s25, s2, 7                ; x
    s_lshr_b32 s26, s2, 3               ; idx
    s_lshl_b32 s23, s25, 3
    s_lshr_b32 s27, s26, 2
    s_add_u32 s23, s23, s27
    s_and_b32 s24, s26, 3               ; j
    s_and_b32 s21, s20, 1
    s_lshr_b32 s22, s20, 1              ; kh
    v_lshrrev_b32 v3, 4, v1             ; g  (= r4)
    v_and_b32 v4, 15, v1                ; m  (= c)
    v_lshlrev_b32 v8, 4, v1             ; lane*16
    s_waitcnt lgkmcnt(0)
    """)
    k.srd(28, 10, 0x10000000)
    XR, XF, PM, T, ONE = 32, 72, 152, 192, 224
    SA, NB_ = 216, 220
    HBR = 16
    k(f"""
    s_mul_i32 s25, s20, 10240
    s_add_u32 s10, s25, {YL}
    s_mul_i32 s11, s23, 40960
    s_add_u32 s11, s11, s25
    s_add_u32 s11, s11, {L.YT}
    s_lshl_b32 s12, s20, 10
    s_add_u32 s13, s12, {L.MODF + 7680}
    s_add_u32 s12, s12, {MODL + 7680}
    s_lshl_b32 s14, s21, 10
    s_add_u32 s14, s14, {CSL}
    s_mul_i32 s15, s21, {1792*4}
    s_mul_i32 s25, s24, 640
    s_add_u32 s15, s15, s25
    s_add_u32 s15, s15, {L.CS1P}
    """)
    first = []
    for i in range(10):
        pre = "s_mov_b32 m0, s10\ns_add_u32 s10, s10, 4096\n" if i % 4 == 0 else ""
        post = "\ns_add_u32 s11, s11, 4096" if i % 4 == 3 else ""
        first.append((pre + f"buffer_load_dwordx4 v8, s[28:31], s11 offen offset:{(i%4)*1024} lds" + post, "y"))
    first.append(("s_mov_b32 m0, s12\ns_nop 0\nbuffer_load_dwordx4 v8, s[28:31], s13 offen lds", "y"))
    first.append((f"s_mov_b32 m0, {MODL + 7680 + 4096}\ns_mov_b32 s13, {L.MODF + 7680 + 4096}\nbuffer_load_dwordx4 v8, s[28:31], s13 offen lds", "y"))
    first.append(("s_mov_b32 m0, s14\ns_nop 0\nbuffer_load_dwordx4 v8, s[28:31], s15 offen lds", "y"))
    first = Pend(first)
    if not front: first.pop(100)
    realk = k
    class Cap:
        def __init__(s): s.L = []
        def __call__(s, txt):
            for ln in txt.strip("\n").split("\n"):
                ln = ln.strip()
                if ln: s.L.append(ln)
        def srd(s, d, b, size):
            s(f"s_mov_b32 s{d}, s{b}\ns_mov_b32 s{d+1}, s{b+1}\ns_mov_b32 s{d+2}, {size}\ns_mov_b32 s{d+3}, 0x00020000")
    cap = Cap()
    k = cap
    k.srd(32, 6, SZ_SD)
    vY, vPM, vAW, vA0e, vA0o, vA1e, vA1o = 226, 227, 228, 229, 230, 231, 232
    vCS, vCS4, vRS, vHB = 233, 234, 235, 236
    vHP, vHL, vFP, vFL, vPL = 241, 242, 243, 244, 245
    vEXW, vEXR = 246, 247
    k(f"""
    s_mul_i32 s36, s24, 200
    s_mul_i32 s37, s21, 100
    s_add_u32 s36, s36, s37
    s_mul_i32 s37, s22, 50
    s_add_u32 s36, s36, s37
    s_lshl_b32 s36, s36, 10
    s_add_u32 s37, s36, {L.W2C}
    s_add_u32 s36, s36, {L.W1C}
    v_lshrrev_b32 v2, 1, v3
    s_lshl_b32 s26, s21, 2
    v_add_u32 v2, s26, v2
    v_and_b32 v7, 7, v4
    v_xor_b32 v2, v2, v7
    v_lshlrev_b32 v2, 4, v2
    v_lshl_add_u32 v{vY}, v4, 8, v2
    v_and_b32 v2, 1, v3
    v_lshl_add_u32 v{vY}, v2, 3, v{vY}
    s_mul_i32 s26, s22, 20480
    s_add_u32 s27, s26, {YL}
    v_add_u32 v{vY}, s27, v{vY}
    v_lshlrev_b32 v{vPM}, 5, v4
    v_add_u32 v{vPM}, {MODL}, v{vPM}
    s_lshl_b32 s27, s21, 3
    v_add_u32 v2, s27, v3
    v_xor_b32 v2, v2, v7
    v_lshlrev_b32 v2, 4, v2
    v_and_b32 v7, 3, v4
    v_lshl_add_u32 v2, v7, 8, v2
    v_lshrrev_b32 v7, 2, v4
    v_lshl_add_u32 v2, v7, 10, v2
    s_add_u32 s27, s26, {AT}
    v_add_u32 v{vAW}, s27, v2
    v_xor_b32 v2, v4, v3                 ; m ^ g
    v_lshlrev_b32 v2, 4, v2
    v_lshl_add_u32 v2, v3, 8, v2
    v_xor_b32 v7, 64, v2                 ; odd-ks
    s_mul_i32 s26, s22, 30720
    s_add_u32 s26, s26, {AT}
    s_mul_i32 s27, s22, 10240
    s_sub_u32 s27, {AT + 20480}, s27
    v_add_u32 v{vA0e}, s26, v2
    v_add_u32 v{vA0o}, s26, v7
    v_add_u32 v{vA1e}, s27, v2
    v_add_u32 v{vA1o}, s27, v7
    v_lshlrev_b32 v2, 4, v3
    s_mul_i32 s26, s21, {96*4}
    s_add_u32 s26, s26, {CSL}
    v_add_u32 v{vCS}, s26, v2
    s_mul_i32 s26, s21, {16*4}
    s_add_u32 s26, s26, {CSL + 64*4}
    v_add_u32 v{vCS4}, s26, v2
    s_lshl_b32 s26, s22, 7
    s_add_u32 s26, s26, {RSL}
    v_lshl_add_u32 v{vRS}, v4, 3, s26
    s_mul_i32 s39, s24, 5
    s_mul_i32 s40, s21, 3
    s_add_u32 s40, s40, s39
    s_add_u32 s41, s39, 2                ; ksL = 5j + 2
    v_lshrrev_b32 v12, 1, v3             ; g>>1
    v_and_b32 v13, 1, v3
    v_lshlrev_b32 v13, 3, v13            ; (g&1)*8
    """)
    for t in range(5):
        if t < 4:
            k(f"s_add_u32 s26, s40, {t//2}")
            k(f"v_add_u32 v14, {2*(t&1)}, v12")
        else:
            k(f"s_mov_b32 s26, s41")
            k(f"s_lshl_b32 s27, s21, 1")
            k(f"v_add_u32 v14, s27, v12")
        k(f"""
        s_and_b32 s27, s26, 1
        s_lshl_b32 s27, s27, 2
        v_add_u32 v15, s27, v14
        v_xor_b32 v15, v15, v4
        v_lshlrev_b32 v15, 4, v15
        v_lshl_add_u32 v15, v14, 8, v15
        v_add_u32 v15, v15, v13
        s_mul_i32 s27, s22, 20
        s_add_u32 s27, s27, s26
        s_lshl_b32 s27, s27, 10
        s_add_u32 s27, s27, {AT}
        v_add_u32 v{vHB+t}, s27, v15
        """)
    def fm_store_addr(vP, vL, shift_sgpr, nks, rowbase_s, half_s, kk):
        o = f"v_add_u32 v{vP}, {rowbase_s}, v4\n"
        if shift_sgpr:
            o += f"v_add_u32 v{vP}, {shift_sgpr}, v{vP}\ns_movk_i32 s27, 2048\nv_cmp_gt_u32 s[60:61], s27, v{vP}\n"
        o += f"""
        v_lshrrev_b32 v{vL}, 4, v{vP}
        v_and_b32 v{vP}, 15, v{vP}
        s_mov_b32 s27, {nks*1024}
        v_mul_lo_u32 v{vL}, v{vL}, s27
        v_lshl_add_u32 v{vL}, v{vP}, 4, v{vL}
        v_and_b32 v{vP}, 1, v3
        v_lshlrev_b32 v{vP}, 9, v{vP}
        v_lshrrev_b32 v2, 1, v3
        v_lshl_add_u32 v{vP}, v2, 8, v{vP}
        v_add_u32 v{vP}, v{vP}, v{vL}
        s_lshl_b32 s27, {half_s}, 9
        v_lshl_add_u32 v{vL}, v2, 8, v{vL}
        v_add_u32 v{vL}, s27, v{vL}
        v_and_b32 v2, 1, v3
        v_lshl_add_u32 v{vL}, v2, 3, v{vL}
        """
        kk(o)
    k(f"""
    s_lshr_b32 s26, s24, 1
    s_add_u32 s26, s26, 1
    s_sub_u32 s27, 0, s26
    s_and_b32 s42, s24, 1
    s_cmp_eq_u32 s42, 1
    s_cselect_b32 s42, s27, s26          ; shift: j 0:+1 1:-1 2:+2 3:-2
    s_lshl_b32 s43, s23, 5
    s_lshl_b32 s26, s22, 4
    s_add_u32 s43, s43, s26
    """)
    fm_store_addr(vHP, vHL, "s42", 20, "s43", "s21", k)
    fm_store_addr(vFP, vFL, None, 20, "s43", "s21", k)
    k(f"""
    s_lshl_b32 s44, s40, 10
    s_add_u32 s38, s44, {L.X1}
    s_add_u32 s44, s44, {L.H1S}
    s_lshl_b32 s45, s41, 10
    s_add_u32 s39, s45, {L.X1}           ; X1 leftover
    s_add_u32 s45, s45, {L.H1S}
    s_lshl_b32 s46, s23, 2
    s_add_u32 s46, s46, s24
    s_lshl_b32 s46, s46, 7
    s_add_u32 s49, s46, {L.F2}           ; F2 flag
    s_add_u32 s46, s46, {L.F1}           ; F1 flag
    ; G2 poll lanes: 0:(rb-1,2kh) 1:(rb,2kh) 2:(rb,2kh+1) 3:(rb+1,2kh+1)
    v_add_u32 v7, 1, v1
    v_lshrrev_b32 v7, 1, v7
    v_add_u32 v7, s23, v7
    v_subrev_u32 v7, 1, v7
    v_max_i32 v7, 0, v7
    v_min_i32 v7, 63, v7
    v_lshrrev_b32 v2, 1, v1
    s_lshl_b32 s26, s22, 1
    v_add_u32 v2, s26, v2
    v_lshl_add_u32 v7, v7, 2, v2
    v_lshlrev_b32 v{vPL}, 7, v7
    ; G2 X bases
    s_lshl_b32 s26, s23, 1
    s_add_u32 s27, s26, s22
    s_mul_i32 s27, s27, 20
    s_mul_i32 s3, s22, 10
    s_add_u32 s27, s27, s3
    s_lshl_b32 s27, s27, 10
    s_add_u32 s50, s27, {L.H1S}
    s_add_u32 s27, s26, 1
    s_sub_u32 s27, s27, s22
    s_mul_i32 s27, s27, 20
    s_add_u32 s27, s27, s3
    s_lshl_b32 s27, s27, 10
    s_add_u32 s51, s27, {L.H1S}
    s_mul_i32 s26, s20, 5120
    s_add_u32 s26, s26, {EX}
    v_add_u32 v{vEXW}, s26, v8
    s_xor_b32 s27, s20, 2
    s_mul_i32 s27, s27, 5120
    s_add_u32 s27, s27, {EX}
    v_add_u32 v{vEXR}, s27, v8
    ; G3 / G4 tile ids (2D XCD partition: XCD pair shares 512 rows, each XCD takes half of the columns)
    s_lshr_b32 s26, s2, 3                ; idx
    s_and_b32 s3, s2, 7                  ; x
    s_and_b32 s4, s3, 1                  ; x&1
    s_lshr_b32 s3, s3, 1                 ; x>>1
    s_and_b32 s52, s26, 7
    s_lshl_b32 s27, s4, 3
    s_add_u32 s52, s52, s27              ; j16 = 8(x&1) + (idx&7)
    s_lshr_b32 s27, s26, 3
    s_lshl_b32 s53, s3, 2
    s_add_u32 s53, s53, s27
    s_and_b32 s57, s26, 3
    s_lshl_b32 s27, s4, 2
    s_add_u32 s57, s57, s27              ; j8 = 4(x&1) + (idx&3)
    s_lshr_b32 s27, s26, 2
    s_lshl_b32 s58, s3, 3
    s_add_u32 s58, s58, s27
    {G4MAP}
    {G3MAP}
    s_mul_i32 s54, s52, {140*1024}
    s_add_u32 s54, s54, {L.W3C}
    s_mul_i32 s59, s57, {270*1024}
    s_add_u32 s59, s59, {L.W4C}
    v_mov_b32 v{ONE}, 0x3f803f80
    """)
    for s in range(2):
        for b in (SA, NB_):
            k(f"v_mov_b32 v{b+2*s}, 0"); k(f"v_mov_b32 v{b+2*s+1}, 0")
    k = realk
    capL = cap.L
    def tile_dma(sbase, f0, n, s0, tag):
        q = (n + 3) // 4
        o = []
        for i in range(q):
            pre = ""
            if i == 0:
                pre = f"s_mul_i32 s25, s20, {q}\n" + (f"s_min_u32 s25, s25, {n-q}\n" if n % 4 else "") + f"s_lshl_b32 s25, s25, 10\ns_add_u32 s62, s25, {s0*1024}\ns_add_u32 s63, s25, s{sbase}\ns_add_u32 s63, s63, {f0*1024}\ns_mov_b32 m0, s62\n"
            elif i % 4 == 0:
                pre = "s_add_u32 s62, s62, 4096\ns_add_u32 s63, s63, 4096\ns_mov_b32 m0, s62\n"
            o.append((pre + f"buffer_load_dwordx4 v8, s[28:31], s63 offen offset:{(i%4)*1024} lds", tag))
        return o
    w2reg = lambda f: 200 + 4*f if f < 14 else 4*(f - 14)
    def wlist(sreg, tagp, reg=lambda f: 4*f):
        o = []
        for f in range(50):
            pre = f"s_add_u32 s{sreg}, s{sreg}, 4096\n" if (f and f % 4 == 0) else ""
            o.append((pre + f"buffer_load_dwordx4 {ar(reg(f),4)}, v8, s[28:31], s{sreg} offen offset:{(f%4)*1024}", f"{tagp}{f//5}"))
        return o
    w1 = Pend(wlist(36, "w1_"))
    w2 = Pend(wlist(37, "w2_", w2reg))
    w2l = w2.items
    w1.add(w2l[:14]); w2.items = w2l[14:]
    ksdone = [0]; nw2 = [14]
    def g1src():
        if w1.items:
            w1.pop(1); return True
        f = nw2[0]
        if f < 50 and (f - 14) // 5 < ksdone[0]:
            w2.pop(1); nw2[0] += 1; return True
        return False
    if front:
        for x in capL: k(x)
        lp = k.newlab("cp"); ld = k.newlab("cd"); lw = k.newlab("cw")
        k(f"""
        s_cmp_lg_u32 s20, 0
        s_cbranch_scc1 {lw}
        v_lshlrev_b32 v7, 7, v1
        v_mov_b32 v9, 10
        v_mov_b32 v10, 46
        v_cmp_gt_u32 vcc, 16, v1
        s_mov_b32 s47, 0
        s_mov_b32 s48, {L.FC}
        s_nop 0
        v_cndmask_b32 v9, v10, v9, vcc
        s_mov_b64 exec, 0xfffff
        """)
        ls = k.newlab("cs")
        k.lab(lp)
        k(f"""
        buffer_load_dword v2, v7, s[28:31], s48 offen sc1
        s_add_u32 s47, s47, 1
        s_waitcnt vmcnt(0)
        v_cmp_ne_u32 vcc, v9, v2
        s_cmp_ge_u32 s47, {SPIN}
        s_cbranch_scc1 {ld}
        s_cbranch_vccz {ld}
        v_cmp_ne_u32 vcc, 0, v2
        s_nop 1
        s_and_b32 s26, vcc_lo, 0xffff
        s_cmp_lg_u32 s26, 0
        s_cbranch_scc1 {ls}
        s_sleep {E("SLPL", 16)}
        """)
        k.lab(ls)
        k(f"""
        s_sleep {E("SLPS", 2)}
        s_branch {lp}
        """)
        k.lab(ld)
        k("s_mov_b64 exec, -1")
        k.lab(lw)
        k("s_barrier")
        stamp()
        first.pop(100)
        for _ in range(E("W1B", 12)): g1src()
        k.interval = E("IV1", 70); k.last = k.clock; k.src = g1src
    else:
        k.interval = E("IV1", 70); k.last = k.clock; k.src = g1src
        for x in capL: k(x)
        for _ in range(E("W1B", 2)): g1src()
    vq.wait("y")
    k("s_barrier")
    stamp()
    k(f"v_xor_b32 v12, 32, v{vY}")
    def rd_x(c_):
        t, s_ = c_ // 2, c_ % 2
        va = vY if s_ == 0 else 12
        return [f"ds_read_b64 {vr(XR+4*c_,2)}, v{va} offset:{t*4096}", f"ds_read_b64 {vr(XR+4*c_+2,2)}, v{va} offset:{t*4096+128}"]
    emit(rd_x(0) + rd_x(1) + rd_x(2))
    for c_ in range(10):
        s_ = c_ % 2
        nxt = rd_x(c_ + 3) if c_ + 3 < 10 else []
        k(f"s_waitcnt lgkmcnt({min(4, 2*(9-c_))})")
        v = []
        for d in range(4):
            x = XR + 4*c_ + d
            v.append(f"v_dot2_f32_bf16 v{NB_+2*s_}, v{x}, v{ONE}, v{NB_+2*s_}")
            v.append(f"v_lshlrev_b32 v{XF+8*c_+2*d}, 16, v{x}")
            v.append(f"v_dot2_f32_bf16 v{NB_+2*s_+1}, v{x}, v{x}, v{NB_+2*s_+1}")
            v.append(f"v_and_b32 v{XF+8*c_+2*d+1}, 0xffff0000, v{x}")
        emit(il(v, nxt, 0.6))
    k("s_nop 2")
    emit(reduce16_ops([NB_, NB_+1, NB_+2, NB_+3]))
    emit(zipl(ln_ops(NB_, NB_+1, T, 640), ln_ops(NB_+2, NB_+3, T+1, 640)))
    stamp()
    def rd_c(t):
        b = t & 1
        o = []
        for vi, vec in enumerate((4, 3)):
            o.append(f"ds_read_b128 {vr(PM+16*b+8*vi,4)}, v{vPM} offset:{vec*2560+t*512}")
            o.append(f"ds_read_b128 {vr(PM+16*b+8*vi+4,4)}, v{vPM} offset:{vec*2560+t*512+16}")
        return o
    for s in range(2):
        k(f"v_mov_b32 v{SA+2*s}, 0"); k(f"v_mov_b32 v{SA+2*s+1}, 0")
    k(f"v_xor_b32 v12, 64, v{vAW}")
    emit(rd_c(0))
    for c_ in range(10):
        t, s = c_ // 2, c_ % 2
        nxt = rd_c(t + 1) if (s == 0 and t < 4) else []
        if s == 0: k(f"s_waitcnt lgkmcnt({1 if c_ else 0})")
        M = PM + 16*(t & 1); S_ = SA + 2*s; N_ = NB_ + 2*s
        X_ = XF + 8*c_; R_ = XR + 4*c_
        v = []
        for d in range(4): v.append(f"v_pk_fma_f32 {vr(X_+2*d,2)}, {vr(X_+2*d,2)}, {vr(N_,2)}, {vr(N_,2)} {BC}")
        for d in range(4): v.append(f"v_pk_fma_f32 {vr(X_+2*d,2)}, {vr(X_+2*d,2)}, {vr(M+2*d,2)}, {vr(M+8+2*d,2)}")
        for d in range(4): v.append(f"v_cvt_pk_bf16_f32 v{R_+d}, v{X_+2*d}, v{X_+2*d+1}")
        for d in range(4):
            v.append(f"v_dot2_f32_bf16 v{S_}, v{R_+d}, v{ONE}, v{S_}")
            v.append(f"v_dot2_f32_bf16 v{S_+1}, v{R_+d}, v{R_+d}, v{S_+1}")
        emit(il(v, nxt, 0.6))
        k(f"ds_write_b128 v{vAW if s == 0 else 12}, {vr(R_,4)} offset:{4096*t}")
    while w1.has("w1_9"): w1.pop(1)
    k("""
    s_waitcnt lgkmcnt(0)
    s_barrier
    """)
    ln3 = [x for x in reduce16_ops([SA, SA+1, SA+2, SA+3]) + zipl(ln_ops(SA, SA+1, T, 640), ln_ops(SA+2, SA+3, T+1, 640)) if not x.startswith("s_nop")]
    ln3 += [f"s_lshl_b32 s26, s20, 6", f"v_lshl_add_u32 v2, v3, 3, s26", f"v_add_u32 v2, {RSL}, v2", f"ds_write_b64 v2, {vr(SA,2)}", f"ds_write_b64 v2, {vr(SA+2,2)} offset:32"]
    stamp()
    ACC, AF, RCV = 32, 72, 88
    CS, CS2, RS, GT, VC, PK = 112, 132, 152, 160, 30, 180
    def aread(ks):
        b = AF + 8 * (ks & 1)
        va, vb = (vA0e, vA1e) if ks % 2 == 0 else (vA0o, vA1o)
        return [f"ds_read_b128 {vr(b,4)}, v{va} offset:{ks*1024}", f"ds_read_b128 {vr(b+4,4)}, v{vb} offset:{ks*1024}"]
    side = []
    for t in range(4):
        side.append(f"ds_read_b128 {vr(CS+4*t,4)}, v{vCS} offset:{64*t}")
        side.append(f"ds_read_b128 {vr(CS2+4*t,4)}, v{vCS} offset:{64*t+1024}")
    side.append(f"ds_read_b128 {vr(CS+16,4)}, v{vCS4}")
    side.append(f"ds_read_b128 {vr(CS2+16,4)}, v{vCS4} offset:1024")
    for t in range(5): side.append(f"ds_read_b64 {vr(HBR+2*t,2)}, v{vHB+t}")
    emit(aread(0))
    for ks in range(10):
        ksdone[0] = ks
        vq.wait(f"w1_{ks}", "lgkmcnt(0)")
        b = AF + 8 * (ks & 1)
        mf = []
        for t in range(5):
            for rt in range(2):
                a = ACC + (rt * 5 + t) * 4
                c = "0" if ks == 0 else vr(a, 4)
                mf.append(f"v_mfma_f32_16x16x32_bf16 {vr(a,4)}, {ar((ks*5+t)*4,4)}, {vr(b+4*rt,4)}, {c}")
        ds = aread(ks + 1) if ks < 9 else []
        ds += side[:2]; side = side[2:]
        for i, m_ in enumerate(mf):
            k(m_)
            if i % 2 == 1 and i < 8 and ds: k(ds.pop(0))
            elif ln3 and ks >= 1: k(ln3.pop(0))
        emit(ds)
    assert not side
    emit(ln3)
    stamp()
    def exchange():
        k("s_nop 4")
        for t in range(5):
            k(f"ds_write_b128 v{vEXW}, {vr(ACC+(5+t)*4,4)} offset:{1024*t}")
    def exchange2():
        k("s_waitcnt lgkmcnt(0)")
        k("s_barrier")
        for t in range(5):
            k(f"ds_read_b128 {vr(RCV+4*t,4)}, v{vEXR} offset:{1024*t}")
    ksdone[0] = 10
    k("s_waitcnt lgkmcnt(0)")
    exchange()
    for t in range(5):
        for i in (0, 2):
            k(f"v_pk_add_f32 {vr(CS+4*t+i,2)}, {vr(CS+4*t+i,2)}, {vr(CS2+4*t+i,2)}")
    k(f"v_mov_b32 v{VC}, {fhex(C1)}")
    k(f"v_mov_b32 v{VC+1}, {fhex(C0)}")
    k("s_waitcnt lgkmcnt(0)")
    k("s_barrier")
    k(f"ds_read_b64 {vr(RS,2)}, v{vRS}")
    for t in range(5):
        k(f"ds_read_b128 {vr(RCV+4*t,4)}, v{vEXR} offset:{1024*t}")
    k("s_waitcnt lgkmcnt(5)")
    for t in range(5):
        for i in (0, 2): k(f"v_pk_mul_f32 {vr(CS+4*t+i,2)}, {vr(CS+4*t+i,2)}, {vr(RS,2)} op_sel_hi:[1,0]")
    for t in range(5):
        z = ACC + 4*t
        k(f"s_waitcnt lgkmcnt({4-t})")
        for i in (0, 2): k(f"v_pk_add_f32 {vr(z+i,2)}, {vr(z+i,2)}, {vr(RCV+4*t+i,2)}")
    for t in range(5):
        z = ACC + 4*t
        for i in (0, 2): k(f"v_pk_fma_f32 {vr(z+i,2)}, {vr(z+i,2)}, {vr(RS,2)}, {vr(CS+4*t+i,2)} op_sel:[0,1,0] op_sel_hi:[1,1,1]")
    if os.environ.get("VERB"): print("W2 left at gelu start", 50 - nw2[0], "w1 left", len(w1.items))
    gl = gelu_ops(ACC, 192, VC, 20)
    cut = int(len(gl) * float(os.environ.get("G1CUT", "1.0")))
    emit(gl[:cut])
    k.src = None
    emit(gl[cut:])
    if os.environ.get("VERB"): print("W2 left after gelu", 50 - nw2[0])
    for t in range(5):
        k(f"v_cvt_pk_bf16_f32 v{PK+2*t}, v{ACC+4*t}, v{ACC+4*t+1}")
        k(f"v_cvt_pk_bf16_f32 v{PK+2*t+1}, v{ACC+4*t+2}, v{ACC+4*t+3}")
    def pair_swaps(pk, npairs):
        k("s_nop 1")
        for p in range(npairs):
            k(f"v_permlane16_swap_b32 v{pk+4*p}, v{pk+4*p+2}")
            k(f"v_permlane16_swap_b32 v{pk+4*p+1}, v{pk+4*p+3}")
    pair_swaps(PK, 2)
    k("s_mov_b64 exec, s[60:61]")
    vq.issue(f"buffer_store_dwordx4 {vr(PK,4)}, v{vHP}, s[28:31], s44 offen", "st")
    vq.issue(f"buffer_store_dwordx4 {vr(PK+4,4)}, v{vHP}, s[28:31], s44 offen offset:1024", "st")
    vq.issue(f"buffer_store_dwordx2 {vr(PK+8,2)}, v{vHL}, s[28:31], s45 offen", "st")
    k("s_mov_b64 exec, -1")
    def signal(sreg):
        vq.drain()
        k("s_barrier")
        l = k.newlab("sig")
        k(f"""
        s_cmp_lg_u32 s20, 0
        s_cbranch_scc1 {l}
        v_mov_b32 v2, 1
        v_mov_b32 v7, 0
        s_mov_b64 exec, 1
        buffer_store_dword v2, v7, s[28:31], s{sreg} offen
        s_mov_b64 exec, -1
        """)
        k.lab(l)
    stamp()
    signal(46)
    stamp()
    def finish():
        if os.environ.get("PROF3"):
            n = nst[0]
            k(f"""
            s_waitcnt vmcnt(0) lgkmcnt(0)
            s_lshl_b32 s26, s2, 2
            s_add_u32 s26, s26, s20
            s_lshl_b32 s26, s26, 7
            s_add_u32 s26, s26, {L.PROFOFF + 0x100000}
            v_mov_b32 v7, 0
            s_mov_b64 exec, 1
            """)
            for i in range(n):
                k(f"v_mov_b32 v2, s{64+2*i}")
                k(f"buffer_store_dword v2, v7, s[28:31], s26 offen offset:{4*i}")
                k("s_nop 0")
        k("s_endpgm")
    if STOP == "G1":
        finish(); k.lab(end); k("s_endpgm"); return kern

    def poll(vfl, nl, sbase):
        l = k.newlab("poll"); d = k.newlab("polld")
        k(f"""
        s_mov_b32 s47, 0
        s_mov_b64 exec, {(1 << nl) - 1}
        """)
        if E("POLL2", 0):
            k(f"buffer_load_dword v248, v{vfl}, s[28:31], {sbase} offen sc1")
            k(f"s_nop 15")
            k.lab(l)
            k(f"""
            buffer_load_dword v249, v{vfl}, s[28:31], {sbase} offen sc1
            s_add_u32 s47, s47, 1
            s_waitcnt vmcnt(1)
            v_cmp_ne_u32 vcc, 1, v248
            s_cmp_ge_u32 s47, {SPIN}
            s_cbranch_scc1 {d}
            s_cbranch_vccz {d}
            buffer_load_dword v248, v{vfl}, s[28:31], {sbase} offen sc1
            s_waitcnt vmcnt(1)
            v_cmp_ne_u32 vcc, 1, v249
            s_cbranch_vccnz {l}
            """)
            k.lab(d)
            k("s_mov_b64 exec, -1")
            vq.q = ["pollx"]
            return
        k.lab(l)
        k(f"""
        buffer_load_dword v2, v{vfl}, s[28:31], {sbase} offen sc1
        s_add_u32 s47, s47, 1
        s_waitcnt vmcnt(0)
        v_cmp_ne_u32 vcc, 1, v2
        s_cmp_ge_u32 s47, {SPIN}
        s_cbranch_scc1 {d}
        s_cbranch_vccnz {l}
        """)
        k.lab(d)
        k("s_mov_b64 exec, -1")
        vq.q = []

    w1.pop(100); w2.pop(100)
    NW3E = E("NW3E", 40)
    w3 = Pend(tile_dma(54, 0, NW3E, 0, "w3") if NW3E else [])
    w3.pop(100)
    vP3, vL3, vST, vF3 = 226, 227, 228, 229
    k(f"""
    s_lshl_b32 s26, s53, 3
    s_lshl_b32 s27, s20, 1
    s_add_u32 s56, s26, s27              ; G3 row tile of rt'=0 : 8rb128 + 2w
    s_mul_i32 s6, s56, 20480
    s_add_u32 s6, s6, {L.X1}             ; G3 X base rt0
    s_add_u32 s7, s6, 20480
    s_lshl_b32 s26, s53, 2
    s_add_u32 s26, s26, s20
    s_lshl_b32 s26, s26, 9
    s_add_u32 s8, s26, {L.F2}            ; G3 poll base
    v_lshlrev_b32 v{vST}, 3, v4
    v_lshl_add_u32 v{vST}, v3, 8, v{vST} ; g*256 + m*8
    s_lshl_b32 s9, s56, 10
    s_add_u32 s9, s9, {L.ST2}            ; G3 stats base
    s_and_b32 s42, s52, 1
    s_mul_i32 s12, s52, 7
    s_add_u32 s13, s12, 1
    s_lshr_b32 s13, s13, 1               ; ksP = (7j+1)>>1
    s_add_u32 s26, s13, 3
    s_sub_u32 s27, s13, 1
    s_cmp_eq_u32 s42, 1
    s_cselect_b32 s12, s27, s26          ; ksL
    s_lshl_b32 s13, s13, 10
    s_add_u32 s13, s13, {L.H3}
    s_lshl_b32 s12, s12, 10
    s_add_u32 s12, s12, {L.H3}
    s_lshl_b32 s14, s56, 4
    s_lshl_b32 s15, s53, 4
    s_add_u32 s15, s15, s52
    s_lshl_b32 s15, s15, 2
    s_add_u32 s15, s15, s20
    s_lshl_b32 s15, s15, 7
    s_add_u32 s15, s15, {L.F3}           ; F3 flag
    ; ST2 store offset for G2: [rowtile][part = 2j+nh][m][2]
    s_lshr_b32 s26, s43, 4
    s_lshl_b32 s26, s26, 3
    s_lshl_b32 s27, s24, 1
    s_add_u32 s26, s26, s27
    s_add_u32 s26, s26, s21
    s_lshl_b32 s26, s26, 7
    s_add_u32 s19, s26, {L.ST2}
    """)
    fm_store_addr(vP3, vL3, None, 54, "s14", "s42", k)
    k(f"s_mov_b32 s48, {L.F1}")
    poll(vPL, 4, "s48")
    stamp()
    XV = 72
    def xload(reg, ks, s0, tagp, agpr):
        o = []
        for rt in range(2):
            pre = f"s_add_u32 s{s0}, s{s0}, 4096\ns_add_u32 s{s0+1}, s{s0+1}, 4096\n" if (rt == 0 and ks and ks % 4 == 0) else ""
            r = reg + (ks*2+rt)*4
            o.append((pre + f"buffer_load_dwordx4 {ar(r,4) if agpr else vr(r,4)}, v8, s[28:31], s{s0+rt} offen offset:{(ks%4)*1024} {XSC}", f"{tagp}{ks}"))
        return o
    px = Pend()
    for ks in range(10): px.add(xload(XV, ks, 50, "x2_", False))
    NPRE = E("NPRE", 5)
    px.pop(2 * NPRE)
    w3 = Pend(tile_dma(54, NW3E, 120 - NW3E, NW3E, "w3") + tile_dma(54, 120, 20, 120, "w3"))
    for ks in range(10):
        vq.wait(f"x2_{ks}")
        i = 0
        for t in range(5):
            for rt in range(2):
                a = ACC + (rt * 5 + t) * 4
                c = "0" if ks == 0 else vr(a, 4)
                k(f"v_mfma_f32_16x16x32_bf16 {vr(a,4)}, {ar(w2reg(ks*5+t),4)}, {vr(XV+(ks*2+rt)*4,4)}, {c}")
            if px.items:
                if t in (0, 2): px.pop(1)
            elif t in ((0, 1, 3) if NW3E == 40 else (0, 1, 2, 3)): w3.pop(1)
    stamp()
    exchange()
    for t in range(5):
        k(f"v_lshlrev_b32 v{CS+4*t}, 16, v{HBR+2*t}")
        k(f"v_and_b32 v{CS+4*t+1}, 0xffff0000, v{HBR+2*t}")
        k(f"v_lshlrev_b32 v{CS+4*t+2}, 16, v{HBR+2*t+1}")
        k(f"v_and_b32 v{CS+4*t+3}, 0xffff0000, v{HBR+2*t+1}")
    for t in range(5):
        for i in (0, 2): k(f"v_pk_add_f32 {vr(ACC+4*t+i,2)}, {vr(ACC+4*t+i,2)}, {vr(CS+4*t+i,2)}")
    k("v_mov_b32 v28, 0")
    k("v_mov_b32 v29, 0")
    w3.pop(100)
    exchange2()
    for t in range(5):
        z = ACC + 4*t
        k(f"s_waitcnt lgkmcnt({4-t})")
        for i in (0, 2): k(f"v_pk_add_f32 {vr(z+i,2)}, {vr(z+i,2)}, {vr(RCV+4*t+i,2)}")
        k(f"v_cvt_pk_bf16_f32 v{PK+2*t}, v{z}, v{z+1}")
        k(f"v_cvt_pk_bf16_f32 v{PK+2*t+1}, v{z+2}, v{z+3}")
    for r in range(10):
        k(f"v_dot2_f32_bf16 v28, v{PK+r}, v{ONE}, v28")
        k(f"v_dot2_f32_bf16 v29, v{PK+r}, v{PK+r}, v29")
    pair_swaps(PK, 2)
    vq.issue(f"buffer_store_dwordx4 {vr(PK,4)}, v{vFP}, s[28:31], s38 offen", "st")
    vq.issue(f"buffer_store_dwordx4 {vr(PK+4,4)}, v{vFP}, s[28:31], s38 offen offset:1024", "st")
    vq.issue(f"buffer_store_dwordx2 {vr(PK+8,2)}, v{vFL}, s[28:31], s39 offen", "st")
    emit(reduce_g_ops([28, 29], GT))
    k("v_lshlrev_b32 v2, 3, v4")
    k("s_mov_b64 exec, 0xffff")
    vq.issue("buffer_store_dwordx2 v[28:29], v2, s[28:31], s19 offen", "st")
    k("s_mov_b64 exec, -1")
    w3.pop(100)
    stamp()
    signal(49)
    stamp()
    if STOP == "G2":
        finish(); k.lab(end); k("s_endpgm"); return kern

    DST = E("DST", 19)
    def step_slot(st):
        if st == 0 or st == 16: return 140
        if 1 <= st <= 8: return (st - 1) * 10
        if st == 9: return 150
        if st in (10, 11): return 120 + (st - 10) * 10
        if 12 <= st <= 15: return 80 + (st - 12) * 10
        if 17 <= st <= 24: return (st - 17) * 10
        raise Exception(st)
    w4_issue = lambda f0, n, s0, tag="w4": tile_dma(59, f0, n, s0, tag)
    w4a = Pend(w4_issue(0, 10, 140))
    CS3, CS3b = 88, 116
    k(f"""
    v_and_b32 v2, 31, v1
    v_lshlrev_b32 v2, 4, v2
    v_lshrrev_b32 v7, 5, v1
    v_mul_u32_u24 v7, {1792*4}, v7
    v_add_u32 v2, v2, v7
    s_mul_i32 s26, s52, 448
    s_add_u32 s26, s26, {L.CS3P}
    s_mov_b32 m0, {CS3L}
    s_nop 0
    """)
    vq.issue("buffer_load_dwordx4 v2, s[28:31], s26 offen lds", "cs3")
    vX4, vO4P, vO4L, vGB, vP4, vXA = 230, 231, 232, 233, 234, 235
    k(f"""
    s_and_b32 s36, s57, 1
    s_lshl_b32 s43, s58, 6
    s_lshl_b32 s26, s21, 5
    s_add_u32 s43, s43, s26
    s_lshl_b32 s26, s22, 4
    s_add_u32 s43, s43, s26
    s_mul_i32 s40, s57, 5
    s_add_u32 s41, s40, 1
    s_lshr_b32 s41, s41, 1               ; ksP
    s_add_u32 s26, s41, 2
    s_sub_u32 s27, s41, 1
    s_cmp_eq_u32 s36, 1
    s_cselect_b32 s40, s27, s26          ; ksL
    s_lshl_b32 s44, s41, 10
    s_lshl_b32 s45, s40, 10
    s_lshl_b32 s26, s36, 9
    s_add_u32 s45, s45, s26
    s_lshr_b32 s26, s58, 1
    s_lshl_b32 s26, s26, 4
    s_mul_i32 s27, s22, 7
    s_add_u32 s26, s26, s27
    s_lshl_b32 s26, s26, 2
    s_and_b32 s27, s58, 1
    s_lshl_b32 s27, s27, 1
    s_add_u32 s26, s26, s27
    s_add_u32 s26, s26, s21
    s_lshl_b32 s26, s26, 7
    s_add_u32 s48, s26, {L.F3}
    v_lshlrev_b32 v{vP4}, 9, v1
    s_lshl_b32 s26, s58, 2
    s_lshl_b32 s27, s21, 1
    s_add_u32 s26, s26, s27
    s_add_u32 s27, s26, s22
    s_mul_i32 s27, s27, 54
    s_mul_i32 s39, s22, 27
    s_add_u32 s27, s27, s39
    s_lshl_b32 s27, s27, 10
    s_add_u32 s50, s27, {L.H3}
    s_add_u32 s27, s26, 1
    s_sub_u32 s27, s27, s22
    s_mul_i32 s27, s27, 54
    s_add_u32 s27, s27, s39
    s_lshl_b32 s27, s27, 10
    s_add_u32 s51, s27, {L.H3}
    v_add_u32 v9, s43, v4
    v_lshrrev_b32 v11, 4, v9
    v_and_b32 v10, 15, v9
    v_mul_u32_u24 v11, 20480, v11
    v_lshl_add_u32 v11, v10, 4, v11
    v_lshrrev_b32 v2, 1, v3
    v_lshl_add_u32 v11, v2, 8, v11
    v_and_b32 v7, 1, v3
    v_lshl_add_u32 v{vX4}, v7, 3, v11
    v_mul_u32_u24 v9, 1280, v9
    v_lshlrev_b32 v7, 5, v7
    v_lshl_add_u32 v7, v2, 4, v7         ; (g&1)*32 + (g>>1)*16
    v_add_u32 v{vO4P}, v9, v7
    v_lshl_add_u32 v{vO4L}, v3, 3, v9
    v_lshlrev_b32 v{vGB}, 4, v3
    v_add_u32 v9, s43, v4
    v_lshrrev_b32 v10, 4, v9
    v_mul_u32_u24 v10, 20480, v10
    v_and_b32 v11, 1, v9
    v_lshl_add_u32 v10, v11, 3, v10
    v_lshl_add_u32 v10, v3, 7, v10       ; + g*128
    v_bfe_u32 v11, v9, 1, 3
    s_mul_i32 s26, s57, 20
    s_lshl_b32 s27, s36, 2
    s_add_u32 s27, s27, s26
    s_mul_i32 s3, s36, 16
    s_sub_u32 s3, 16, s3
    s_add_u32 s3, s3, s26""")
    for t in range(5):
        k(f"""
        {"s_add_u32 s4, s27, %d" % (4*t) if t < 4 else "s_mov_b32 s4, s3"}
        v_add_u32 v2, s4, v3
        v_bfe_u32 v2, v2, 1, 3
        v_xor_b32 v2, v2, v11
        v_lshl_add_u32 v2, v2, 4, v10
        s_lshl_b32 s4, s4, 7
        v_add_u32 v{vXA+t}, s4, v2
        """)
    k(f"""
    s_mul_i32 s37, s57, 320
    s_add_u32 s37, s37, {L.MODF + 5*2560}
    s_mul_i32 s26, s36, 256
    s_sub_u32 s26, 256, s26
    s_add_u32 s38, s37, s26              ; gb t=4
    s_lshl_b32 s26, s36, 6
    s_add_u32 s37, s37, s26              ; gb t<4
    s_mul_i32 s26, s57, 160
    s_lshl_b32 s27, s36, 5
    s_add_u32 s46, s26, s27
    s_mul_i32 s27, s36, 128
    s_sub_u32 s27, 128, s27
    s_add_u32 s49, s26, s27              ; leftover
    """)
    vq.wait("cs3")
    k(f"""
    s_lshl_b32 s26, s42, 6
    v_lshlrev_b32 v2, 4, v3
    v_add_u32 v7, {CS3L}, v2
    v_add_u32 v2, s26, v7
    s_mul_i32 s26, s42, {6*64}
    s_sub_u32 s26, {6*64}, s26
    v_add_u32 v7, s26, v7
    """)
    for t in range(6):
        k(f"ds_read_b128 {vr(CS3+4*t,4)}, v2 offset:{64*t}")
        k(f"ds_read_b128 {vr(CS3b+4*t,4)}, v2 offset:{64*t+512}")
    k(f"ds_read_b128 {vr(CS3+24,4)}, v7")
    k(f"ds_read_b128 {vr(CS3b+24,4)}, v7 offset:512")
    k("s_waitcnt lgkmcnt(0)")
    for t in range(7):
        for i in (0, 2):
            k(f"v_pk_add_f32 {vr(CS3+4*t+i,2)}, {vr(CS3+4*t+i,2)}, {vr(CS3b+4*t+i,2)}")
    XAR, GB = 116, 204
    resE = []
    for t in range(5):
        resE.append((f"s_mov_b32 s26, {L.YT}\nbuffer_load_dwordx2 {vr(XAR+2*t,2)}, v{vXA+t}, s[28:31], s26 offen", "resE"))
    for t in range(4):
        resE.append((f"buffer_load_dwordx4 {vr(GB+4*t,4)}, v{vGB}, s[28:31], s37 offen offset:{64*t}", "resE"))
    resE.append((f"buffer_load_dwordx4 {vr(GB+16,4)}, v{vGB}, s[28:31], s38 offen", "resE"))
    ACC3, WB, NWB = 32, 160, 12
    k(f"v_mov_b32 v12, v8")
    k(f"v_add_u32 v13, 0x10000, v8")
    k(f"v_add_u32 v14, 0x20000, v8")
    def wread(slot, buf, base=WB):
        o = slot * 1024
        return f"ds_read_b128 {ar(base+4*buf,4)}, v{12 + (o >> 16)} offset:{o & 0xffff}"
    uses = [(0, ks, t) for ks in range(20) for t in (0, 1, 2, 3, 6)] + [(1, ks, t) for ks in range(20) for t in (4, 5)]
    def slot3(u):
        gi, ks, t = u
        return ks * 4 + t if t < 4 else (80 + ks * 2 + t - 4 if t < 6 else 120 + ks)
    for i in range(NWB - 1): k(wread(slot3(uses[i]), i % NWB))
    k("v_lshlrev_b32 v7, 7, v1")
    poll(7, 4, "s8")
    stamp()
    px = Pend()
    for ks in range(20): px.add(xload(0, ks, 6, "x3_", True))
    STR = 16
    for rt in range(2):
        px.add([(f"buffer_load_dwordx2 {vr(STR+4*rt,2)}, v{vST}, s[28:31], s9 offen offset:{1024*rt} sc1", "st2"),
                (f"buffer_load_dwordx2 {vr(STR+4*rt+2,2)}, v{vST}, s[28:31], s9 offen offset:{1024*rt+128} sc1", "st2")])
    px.add(resE)
    px.pop(2 * NPRE)
    w4b = Pend()
    for i, u in enumerate(uses):
        gi, ks, t = u
        if os.environ.get("PG3") and ((gi == 0 and t == 0 and ks in (1, 10)) or (gi > 0 and ks == 0 and t == 4)): stamp()
        grp = 5 if gi == 0 else 4
        first_of_grp = (t == 0) if gi == 0 else (t == 4 and ks % 2 == 0)
        if first_of_grp:
            issued = min(i + NWB - 1, len(uses))
            need = min(i + grp, len(uses))
            allow = max(0, issued - need)
            if gi == 0: vq.wait(f"x3_{ks}", f"lgkmcnt({allow})")
            else: k(f"s_waitcnt lgkmcnt({allow})")
        for rt in range(2):
            a = ACC3 + (rt * 7 + t) * 4
            c = "0" if ks == 0 else vr(a, 4)
            k(f"v_mfma_f32_16x16x32_bf16 {vr(a,4)}, {ar(WB+4*(i%NWB),4)}, {ar((ks*2+rt)*4,4)}, {c}")
        if i + NWB - 1 < len(uses): k(wread(slot3(uses[i + NWB - 1]), (i + NWB - 1) % NWB))
        if gi == 0 and (t in (0, 2) or (t == 4 + 2 and ks >= 8)): px.pop(1)
        if gi == 0 and ks >= 17 and t in (1, 3): w4a.pop(1)
        if gi == 1 and ks == 1 and t == 5:
            k("s_barrier")
            w4b.add(w4_issue(10, 80, 0) + w4_issue(90, 10, 150) + w4_issue(100, 20, 120))
        if gi == 1 and ks > 1: w4b.pop(1)
    stamp()
    w4b.pop(100)
    k("s_barrier")
    w4c = Pend(w4_issue(120, 40, 80))
    k(f"s_mul_i32 s26, s22, 5120")
    k(f"s_add_u32 s55, s59, s26")
    k(f"s_add_u32 s55, s55, {DST*10240}")
    dreg = lambda st, t: 256 - (27 - DST) * 20 + (st - DST) * 20 + 4 * t
    for st in range(DST, 27):
        for t in range(5):
            pre = "s_add_u32 s55, s55, 4096\n" if t == 4 else ""
            post = f"\ns_add_u32 s55, s55, {10240 - 4096}" if t == 4 else ""
            w4c.add([(pre + f"buffer_load_dwordx4 {ar(dreg(st,t),4)}, v8, s[28:31], s55 offen offset:{(t%4)*1024}" + post, "w4d")])
    k.interval = E("IV3", 78); k.last = k.clock; k.src = lambda: (w4c.pop(1) or True) if w4c.items else False
    vq.wait("st2")
    for rt in range(2):
        k(f"v_add_f32 v{STR+4*rt}, v{STR+4*rt}, v{STR+4*rt+2}")
        k(f"v_add_f32 v{STR+4*rt+1}, v{STR+4*rt+1}, v{STR+4*rt+3}")
    k("s_nop 0")
    emit(reduce_g_ops([STR, STR+1, STR+4, STR+5], 24))
    emit(zipl(ln_ops(STR, STR+1, STR+2, 640), ln_ops(STR+4, STR+5, STR+6, 640)))
    k(f"v_mov_b32 v{VC}, {fhex(C1)}")
    k(f"v_mov_b32 v{VC+1}, {fhex(C0)}")
    PK3, GT3 = 144, 176
    for rt in range(2):
        RS3 = STR + 4*rt
        A0 = ACC3 + rt * 28
        for t in range(7):
            for i in (0, 2): k(f"v_pk_mul_f32 {vr(GT3+4*t+i,2)}, {vr(CS3+4*t+i,2)}, {vr(RS3,2)} op_sel_hi:[1,0]")
        for t in range(7):
            z = A0 + 4*t
            for i in (0, 2): k(f"v_pk_fma_f32 {vr(z+i,2)}, {vr(z+i,2)}, {vr(RS3,2)}, {vr(GT3+4*t+i,2)} op_sel:[0,1,0] op_sel_hi:[1,1,1]")
        emit(gelu_ops(A0, GT3, VC, 28))
        if rt == 1: k.src = None
        for t in range(7):
            k(f"v_cvt_pk_bf16_f32 v{PK3+16*rt+2*t}, v{A0+4*t}, v{A0+4*t+1}")
            k(f"v_cvt_pk_bf16_f32 v{PK3+16*rt+2*t+1}, v{A0+4*t+2}, v{A0+4*t+3}")
        sv = k.src; k.src = None
        pair_swaps(PK3 + 16*rt, 3)
        off = rt * 54 * 1024
        k(f"s_add_u32 s26, s13, {off}")
        k(f"s_add_u32 s27, s12, {off}")
        vq.issue(f"buffer_store_dwordx4 {vr(PK3+16*rt,4)}, v{vP3}, s[28:31], s26 offen", "st")
        vq.issue(f"buffer_store_dwordx2 {vr(PK3+16*rt+12,2)}, v{vL3}, s[28:31], s27 offen", "st")
        lab = k.newlab("j15")
        k("s_cmp_eq_u32 s52, 15")
        k(f"s_cbranch_scc1 {lab}")
        k(f"buffer_store_dwordx4 {vr(PK3+16*rt+4,4)}, v{vP3}, s[28:31], s26 offen offset:1024")
        k(f"buffer_store_dwordx4 {vr(PK3+16*rt+8,4)}, v{vP3}, s[28:31], s26 offen offset:2048")
        k.lab(lab)
        k.src = sv
    stamp()
    vq.drain()
    k(f"""
    v_mov_b32 v2, 1
    v_mov_b32 v7, 0
    s_mov_b64 exec, 1
    buffer_store_dword v2, v7, s[28:31], s15 offen
    s_mov_b64 exec, -1
    """)
    stamp()
    if STOP == "G3":
        finish(); k.lab(end); k("s_endpgm"); return kern

    w4c.pop(100)
    X1R = 96
    rl = []
    for t in range(5):
        if t < 4:
            rl.append((f"s_add_u32 s26, s44, {L.X1 + (t//2)*1024 + (t&1)*512}\nbuffer_load_dwordx2 {vr(X1R+2*t,2)}, v{vX4}, s[28:31], s26 offen sc1", "res"))
        else:
            rl.append((f"s_add_u32 s26, s45, {L.X1}\nbuffer_load_dwordx2 {vr(X1R+2*t,2)}, v{vX4}, s[28:31], s26 offen sc1", "res"))
    WB4 = 136
    k(f"""
    s_mul_i32 s26, s22, 5120
    v_add_u32 v12, s26, v8
    v_add_u32 v13, 0x10000, v12
    v_add_u32 v14, 0x20000, v12
    """)
    def wread4(slot, buf):
        o = slot * 1024
        return f"ds_read_b128 {vr(WB4+4*buf,4)}, v{12 + (o >> 16)} offset:{o & 0xffff}"
    uses = [(st, t) for st in range(27) for t in range(5)]
    luses = [u for u in uses if u[0] < DST]
    NW4 = 12
    slot4 = lambda u: step_slot(u[0]) + u[1]
    poll(vP4, 9, "s48")
    stamp()
    XRG = min(16, (256 - (27 - DST) * 20) // 8)
    def xload4(ks):
        o = []
        for rt in range(2):
            pre = "s_add_u32 s50, s50, 4096\ns_add_u32 s51, s51, 4096\n" if (rt == 0 and ks and ks % 4 == 0) else ""
            o.append((pre + f"buffer_load_dwordx4 {ar((ks % XRG)*8 + 4*rt,4)}, v8, s[28:31], s{50+rt} offen offset:{(ks%4)*1024} {XSC}", f"x4_{ks}"))
        return o
    pend = Pend()
    for ks in range(NPRE): pend.add(xload4(ks))
    pend.pop(100)
    k("s_barrier")
    for i in range(NW4 - 1): k(wread4(slot4(luses[i]), i % NW4))
    nx = NPRE
    for i, u in enumerate(uses):
        st, t = u
        if t == 0:
            while nx < 27 and nx - XRG < st and nx <= st + XRG - 1 and nx <= st + E("XAH", 9):
                pend.add(xload4(nx)); nx += 1
            if st == 8: pend.add(rl)
        lds = st < DST
        if t == 0:
            w = ""
            if lds:
                issued = min(i + NW4 - 1, len(luses)); need = min(i + 5, len(luses))
                w = f"lgkmcnt({max(0, issued - need)})"
            assert not pend.has(f"x4_{st}"), st
            vq.wait(f"x4_{st}", w)
        for rt in range(2):
            a_ = ACC + (rt * 5 + t) * 4
            c_ = "0" if st == 0 else vr(a_, 4)
            aop = vr(WB4+4*(i%NW4),4) if lds else ar(dreg(st, t), 4)
            k(f"v_mfma_f32_16x16x32_bf16 {vr(a_,4)}, {aop}, {ar((st % XRG)*8 + 4*rt,4)}, {c_}")
        j_ = i + NW4 - 1
        if j_ < len(luses):
            if luses[j_] == (DST - 15, 0):
                k("s_waitcnt lgkmcnt(5)")
                k("s_barrier")
                pend.items = w4_issue(160, 10, step_slot(16), "w4r") + w4_issue(170, 10 * (DST - 17), step_slot(17), "w4r") + pend.items
            if luses[j_] == (16, 0):
                assert not pend.has("w4r")
                vq.wait("w4r")
                k("s_barrier")
            k(wread4(slot4(luses[j_]), j_ % NW4))
        if i % 2 == 0 or len(pend.items) > 6: pend.pop(1)
    pend.pop(100)
    stamp()
    k("s_barrier")
    RCV = 72
    exchange()
    vq.wait("res")
    U = 136
    for t in range(5):
        for src, dst in ((X1R, U), (XAR, U + 20)):
            k(f"v_lshlrev_b32 v{dst+4*t}, 16, v{src+2*t}")
            k(f"v_and_b32 v{dst+4*t+1}, 0xffff0000, v{src+2*t}")
            k(f"v_lshlrev_b32 v{dst+4*t+2}, 16, v{src+2*t+1}")
            k(f"v_and_b32 v{dst+4*t+3}, 0xffff0000, v{src+2*t+1}")
    for t in range(5):
        for i in (0, 2): k(f"v_pk_add_f32 {vr(ACC+4*t+i,2)}, {vr(ACC+4*t+i,2)}, {vr(U+4*t+i,2)}")
    exchange2()
    for t in range(5):
        z = ACC + 4*t
        k(f"s_waitcnt lgkmcnt({4-t})")
        for i in (0, 2): k(f"v_pk_add_f32 {vr(z+i,2)}, {vr(z+i,2)}, {vr(RCV+4*t+i,2)}")
        for i in (0, 2): k(f"v_pk_fma_f32 {vr(z+i,2)}, {vr(z+i,2)}, {vr(GB+4*t+i,2)}, {vr(U+20+4*t+i,2)}")
        k(f"v_cvt_pk_bf16_f32 v{PK+2*t}, v{z}, v{z+1}")
        k(f"v_cvt_pk_bf16_f32 v{PK+2*t+1}, v{z+2}, v{z+3}")
    pair_swaps(PK, 2)
    k(f"buffer_store_dwordx4 {vr(PK,4)}, v{vO4P}, s[32:35], s46 offen")
    k(f"buffer_store_dwordx4 {vr(PK+4,4)}, v{vO4P}, s[32:35], s46 offen offset:64")
    k(f"buffer_store_dwordx2 {vr(PK+8,2)}, v{vO4L}, s[32:35], s49 offen")
    stamp()
    finish()
    k.lab(end)
    k("s_endpgm")
    return kern
```

```python
import sys, os
sys.path.insert(0, os.path.dirname(os.path.abspath(__file__)))
import layout as L

NAME = "adaLN_cond__ssm_conv_h3__mixer_s_mlp__prompt"
SZ_SD = 2048 * 640 * 2

class Kern:
    order = {}
    def __init__(self, name, grid, block, lds, vgpr=256, sgpr=102, agpr=0):
        self.name, self.grid, self.block, self.lds = name, grid, block, lds
        self.vgpr, self.sgpr, self.agpr = vgpr, (102 if (os.environ.get("PROF") or os.environ.get("PROF2")) else sgpr), agpr
        self.L = []
        self.nlab = 0
    def __call__(self, s):
        for ln in s.strip("\n").split("\n"):
            ln = ln.strip()
            if ln:
                self.L.append("    " + ln)
    def lab(self, s):
        self.L.append(s + ":")
    def newlab(self, p="L"):
        self.nlab += 1
        return f"{self.name}_{p}{self.nlab}"
    def srd(self, d, b, size, off=0):
        if off:
            self(f"s_add_u32 s{d}, s{b}, {off}")
            self(f"s_addc_u32 s{d+1}, s{b+1}, 0")
        else:
            self(f"s_mov_b32 s{d}, s{b}")
            self(f"s_mov_b32 s{d+1}, s{b+1}")
        self(f"s_mov_b32 s{d+2}, {size}")
        self(f"s_mov_b32 s{d+3}, 0x00020000")
    def round2(self, a, b, t):
        self(f"v_cvt_pk_bf16_f32 v{t}, v{a}, v{b}")
        self(f"v_lshlrev_b32 v{a}, 16, v{t}")
        self(f"v_and_b32 v{b}, 0xffff0000, v{t}")
    def unpack(self, lo, hi, src):
        self(f"v_lshlrev_b32 v{lo}, 16, v{src}")
        self(f"v_and_b32 v{hi}, 0xffff0000, v{src}")
    def stamp(self, i):
        if os.environ.get("PROF"):
            self(f"s_memtime s[{80+2*i}:{81+2*i}]")
    def stamp_end(self, n):
        if os.environ.get("PROF"):
            l = self.newlab("prof")
            self(f"""
            s_waitcnt lgkmcnt(0)
            s_cmp_lg_u32 s2, {int(os.environ.get("PROFWG", "0"))}
            s_cbranch_scc1 {l}
            s_load_dwordx2 s[76:77], s[0:1], 112
            s_waitcnt lgkmcnt(0)
            s_mov_b32 s78, 256
            s_mov_b32 s79, 0x00020000
            v_mov_b32 v1, 0
            """)
            for i in range(n):
                self(f"s_sub_u32 s75, s{80+2*i}, s80")
                self(f"v_mov_b32 v2, s75")
                self(f"buffer_store_dword v2, v1, s[76:79], 0 offen offset:{4*i}")
            self.lab(l)
    def text(self):
        sc = self.name in os.environ.get("SC1", "prep_kernel,chain_kernel").split(",")
        Ls = [(l + " sc1" if (sc and l.strip().startswith("buffer_store")) else l) for l in self.L]
        if os.environ.get("PROF2"):
            idx = Kern.order.setdefault(self.name, len(Kern.order))
            pre = ["    s_memrealtime s[90:91]", "    v_lshrrev_b32 v1, 6, v0", "    s_mov_b32 s93, s2", "    v_readfirstlane_b32 s92, v1"]
            Ls = [(f"    s_branch {self.name}_pend" if l.strip() == "s_endpgm" else l) for l in Ls]
            post = f"""{self.name}_pend:
    s_mov_b64 exec, -1
    s_waitcnt vmcnt(0) lgkmcnt(0)
    s_memrealtime s[94:95]
    s_load_dwordx2 s[96:97], s[0:1], 120
    s_lshl_b32 s93, s93, 3
    s_add_u32 s93, s93, s92
    s_lshl_b32 s93, s93, 4
    s_add_u32 s93, s93, {0x4000000 + idx * 0x20000}
    s_getreg_b32 s92, hwreg(HW_REG_XCC_ID)
    s_waitcnt lgkmcnt(0)
    s_mov_b32 s98, 0x10000000
    s_mov_b32 s99, 0x00020000
    v_mov_b32 v0, s90
    v_mov_b32 v1, s94
    v_mov_b32 v2, s92
    v_mov_b32 v3, 0x1234
    v_mov_b32 v4, s93
    s_mov_b64 exec, 1
    buffer_store_dwordx4 v[0:3], v4, s[96:99], 0 offen
    s_endpgm""".split("\n")
            Ls = pre + Ls + post
        return (f".globl {self.name}\n.p2align 8\n.type {self.name},@function\n{self.name}:\n" + "\n".join(Ls) + "\n")
    def kd(self):
        acc = (self.vgpr + 3) // 4 * 4
        nfv = self.vgpr if not self.agpr else acc + self.agpr
        return f""".p2align 6
.amdhsa_kernel {self.name}
  .amdhsa_next_free_vgpr {nfv}
  .amdhsa_next_free_sgpr {self.sgpr}
  .amdhsa_accum_offset {acc}
  .amdhsa_group_segment_fixed_size 0
  .amdhsa_kernarg_size 128
  .amdhsa_user_sgpr_count 2
  .amdhsa_user_sgpr_kernarg_segment_ptr 1
  .amdhsa_system_sgpr_workgroup_id_x 1
  .amdhsa_float_denorm_mode_32 3
.end_amdhsa_kernel
"""

def vr(a, n):
    return f"v[{a}:{a+n-1}]"

MERGE = os.environ.get("MERGE", "0") == "1"
CNT_OFF = 128

def signal(k, cnt_sgpr_or_imm):
    l = k.newlab("sig")
    k(f"""
    s_mov_b64 exec, -1
    s_waitcnt vmcnt(0)
    s_barrier
    v_cmp_eq_u32 vcc, 0, v0
    s_and_saveexec_b64 s[42:43], vcc
    s_cbranch_execz {l}
    v_mov_b32 v1, 1
    v_mov_b32 v2, {cnt_sgpr_or_imm}
    buffer_atomic_add v1, v2, s[48:51], 0 offen
    """)
    k.lab(l)
    k("s_endpgm")

def poll(k, voff, target, vtmp):
    l = k.newlab("poll"); d = k.newlab("polld")
    k("s_mov_b32 s52, 0")
    k("s_cmp_lg_u32 s20, 0")
    k(f"s_cbranch_scc1 {d}")
    k.lab(l)
    k(f"""
    buffer_load_dword v{vtmp}, v{voff}, s[48:51], 0 offen sc0 sc1
    s_waitcnt vmcnt(0)
    v_readfirstlane_b32 s53, v{vtmp}
    s_add_u32 s52, s52, 1
    s_cmp_ge_u32 s53, {target}
    s_cbranch_scc1 {d}
    s_cmp_ge_u32 s52, 0x100000
    s_cbranch_scc1 {d}
    s_sleep {int(os.environ.get("SLP", 8))}
    s_branch {l}
    """)
    k.lab(d)
    k("s_barrier")


WREG = 13824
KB = 9472
NT = os.environ.get("NT", "nt")
def gen_p():
    import gen3
    k = Kern("prep_kernel", 512, 512, 4 * WREG + 32768, vgpr=256, sgpr=100)
    end = "prep_end"
    SPIN = int(os.environ.get("SPIN", 20000))
    CONV0 = 608
    k(f"""
    s_cmp_ge_u32 s2, 512
    s_cbranch_scc1 {end}
    s_load_dwordx4 s[4:7], s[0:1], 8       ; k v
    s_load_dwordx2 s[8:9], s[0:1], 24      ; shift_k
    s_load_dwordx2 s[10:11], s[0:1], 120   ; ws
    s_load_dwordx8 s[12:19], s[0:1], 56    ; w1 w2 w3 w4
    s_load_dwordx2 s[60:61], s[0:1], 0     ; q
    s_load_dwordx2 s[62:63], s[0:1], 96    ; w_mod
    s_load_dwordx2 s[52:53], s[0:1], 88    ; c
    s_load_dwordx2 s[54:55], s[0:1], 112   ; debug
    s_load_dwordx4 s[56:59], s[0:1], 32
    s_memrealtime s[64:65]
    v_lshrrev_b32 v2, 6, v0
    v_and_b32 v1, 63, v0                   ; lane
    v_readfirstlane_b32 s20, v2
    s_waitcnt lgkmcnt(0)
    """)
    k.srd(28, 10, 0x10000000)
    k.srd(48, 54, 256)
    def nonce_issue(vn, vz):
        k(f"v_mov_b32 v{vz}, 0")
        k(f"buffer_load_dword v{vn}, v{vz}, s[48:51], 0 offen sc1")
    def nonce_get(vn, vz):
        l = k.newlab("nn"); d = k.newlab("nd")
        k("s_mov_b32 s47, 0")
        k.lab(l)
        k(f"""
        v_readfirstlane_b32 s46, v{vn}
        s_add_u32 s47, s47, 1
        s_cmp_lg_u32 s46, 0
        s_cbranch_scc1 {d}
        s_cmp_ge_u32 s47, {SPIN}
        s_cbranch_scc1 {d}
        buffer_load_dword v{vn}, v{vz}, s[48:51], 0 offen sc1
        s_waitcnt vmcnt(0)
        s_branch {l}
        """)
        k.lab(d)
    def flag_store(soff, vt):
        k(f"""
        v_mov_b32 v{vt}, s46
        v_mov_b32 v{vt+1}, 0
        s_mov_b64 exec, 1
        buffer_store_dword v{vt}, v{vt+1}, s[28:31], {soff} offen
        """)
    def poll(vaddr, vdat, execmask, sbase):
        l = k.newlab("pl"); d = k.newlab("pd")
        k(f"s_mov_b32 s47, 0")
        k(execmask)
        k.lab(l)
        k(f"""
        buffer_load_dword v{vdat}, v{vaddr}, s[28:31], {sbase} offen sc1
        s_add_u32 s47, s47, 1
        s_waitcnt vmcnt(0)
        v_cmp_ne_u32 vcc, s46, v{vdat}
        s_cmp_ge_u32 s47, {SPIN}
        s_cbranch_scc1 {d}
        s_cbranch_vccz {d}
        s_sleep {int(os.environ.get("PSLP", 8))}
        s_branch {l}
        """)
        k.lab(d)
        k("s_mov_b64 exec, -1")
    k(f"""
    s_cmp_ge_u32 s2, 416
    s_cbranch_scc1 p_pack
    s_cmp_ge_u32 s2, 256
    s_cbranch_scc1 p_conv
    s_cmp_ge_u32 s2, 160
    s_cbranch_scc1 p_aux
    """)
    l0 = k.newlab("n0")
    k(f"""
    s_or_b32 s21, s2, s20
    s_cmp_lg_u32 s21, 0
    s_cbranch_scc1 {l0}
    s_or_b32 s64, s64, 1
    v_mov_b32 v3, s64
    v_mov_b32 v4, 0
    s_mov_b64 exec, 1
    buffer_store_dword v3, v4, s[48:51], 0 offen
    s_mov_b64 exec, -1
    """)
    k.lab(l0)
    k("s_mov_b32 s45, s20")
    k.srd(16, 4, SZ_SD); k.srd(20, 6, SZ_SD); k.srd(24, 8, 640 * 8)
    k(f"""
    s_lshr_b32 s47, s45, 2           ; half
    s_lshl_b32 s46, s2, 1
    s_add_u32 s46, s46, s47          ; tile
    v_and_b32 v0, 255, v0
    s_mul_i32 s32, s46, 52429
    s_lshr_b32 s32, s32, 19
    s_mul_i32 s33, s32, 10
    s_sub_u32 s33, s46, s33          ; cb
    s_lshl_b32 s43, s47, 13
    v_and_b32 v1, 15, v0             ; cgl
    v_lshrrev_b32 v2, 4, v0          ; rg
    s_lshl_b32 s34, s32, 6
    v_lshl_add_u32 v3, v2, 2, s34    ; s0
    v_mul_u32_u24 v4, 1280, v3
    s_lshl_b32 s35, s33, 7
    v_lshl_add_u32 v5, v1, 3, s35
    v_add_u32 v4, v4, v5             ; voff
    v_subrev_u32 v6, 3840, v4
    v_subrev_u32 v7, 2560, v4
    v_subrev_u32 v8, 1280, v4
    """)
    KR, VR_, SKR, SKF, KF, KVF, T, QR = 10, 24, 32, 40, 56, 84, 100, 112
    k(f"buffer_load_dwordx2 {vr(KR,2)}, v6, s[16:19], 0 offen {NT}")
    k(f"buffer_load_dwordx2 {vr(KR+2,2)}, v7, s[16:19], 0 offen {NT}")
    k(f"buffer_load_dwordx2 {vr(KR+4,2)}, v8, s[16:19], 0 offen {NT}")
    for i in range(4):
        k(f"buffer_load_dwordx2 {vr(KR+6+2*i,2)}, v4, s[16:19], 0 offen offset:{i*1280} {NT}")
    k(f"v_lshlrev_b32 v{T}, 2, v5")
    k(f"buffer_load_dwordx4 {vr(SKR,4)}, v{T}, s[24:27], 0 offen")
    k(f"buffer_load_dwordx4 {vr(SKR+4,4)}, v{T}, s[24:27], 0 offen offset:16")
    for i in range(4):
        k(f"buffer_load_dwordx2 {vr(VR_+2*i,2)}, v4, s[20:23], 0 offen offset:{i*1280} {NT}")
    k(f"""
    v_lshlrev_b32 v{T}, 9, v1
    v_sub_u32 v{T+1}, 15, v2
    v_lshl_add_u32 v{T}, v{T+1}, 3, v{T}
    v_add_u32 v{T}, s43, v{T}
    v_lshrrev_b32 v{T+1}, 3, v0
    v_mul_u32_u24 v{T+1}, {L.KVR_CH}, v{T+1}
    v_and_b32 v{T+2}, 7, v0
    v_lshl_add_u32 v{T+3}, v{T+2}, 4, v{T+1}
    v_lshlrev_b32 v{T+4}, 4, v0
    v_add_u32 v{T+4}, s43, v{T+4}
    s_mul_i32 s36, s33, {64*L.KVR_CH}
    s_lshr_b32 s37, s32, 1
    s_mul_i32 s37, s37, 272
    s_add_u32 s36, s36, s37
    s_add_u32 s36, s36, {L.KVR}
    s_and_b32 s37, s32, 1
    s_lshl_b32 s38, s37, 7
    s_sub_u32 s38, 128, s38
    s_add_u32 s38, s38, s36
    s_lshl_b32 s44, s33, 5
    s_add_u32 s44, s44, s32
    s_lshl_b32 s44, s44, 7
    s_add_u32 s44, s44, {L.PFK}
    s_waitcnt vmcnt(4)
    """)
    nonce_issue(122, 123)
    for c in range(4):
        k.unpack(SKF + c, SKF + 4 + c, SKR + 2*c)
        k.unpack(SKF + 8 + c, SKF + 12 + c, SKR + 2*c + 1)
    for r in range(7):
        k.unpack(KF + 4*r, KF + 4*r + 1, KR + 2*r)
        k.unpack(KF + 4*r + 2, KF + 4*r + 3, KR + 2*r + 1)
    for j in (3, 2, 1, 0):
        for s_ in range(4):
            for p in range(2):
                A = KVF + 4*s_ + 2*p
                if j == 3: k(f"v_pk_mul_f32 {vr(A,2)}, {vr(KF+4*s_+2*p,2)}, {vr(SKF+12+2*p,2)}")
                else: k(f"v_pk_fma_f32 {vr(A,2)}, {vr(KF+4*(s_+3-j)+2*p,2)}, {vr(SKF+4*j+2*p,2)}, {vr(A,2)}")
    O = KF; O2 = KF + 8
    for i in range(8):
        k(f"v_cvt_pk_bf16_f32 v{O+i}, v{KVF+2*i}, v{KVF+2*i+1}")
    k("s_waitcnt vmcnt(1)")
    for i in range(8):
        k(f"v_lshlrev_b32 v{KVF+2*i}, 16, v{O+i}")
        k(f"v_and_b32 v{KVF+2*i+1}, 0xffff0000, v{O+i}")
    for i in range(8):
        k.unpack(O + 8 + 2*(i % 4), O + 9 + 2*(i % 4), VR_ + i)
        k(f"v_pk_mul_f32 {vr(KVF+2*i,2)}, {vr(KVF+2*i,2)}, {vr(O+8+2*(i%4),2)}")
    for c in range(4):
        for d in range(2):
            k(f"v_cvt_pk_bf16_f32 v{O2+2*c+d}, v{KVF+4*(3-2*d)+c}, v{KVF+4*(2-2*d)+c}")
    for c in range(4):
        k(f"ds_write_b64 v{T}, {vr(O2+2*c,2)} offset:{128*c}")
    k(f"""
    s_waitcnt lgkmcnt(0)
    s_barrier
    """)
    for i in range(2):
        k(f"ds_read_b128 {vr(KR+4*i,4)}, v{T+4} offset:{4096*i}")
    for i in range(2):
        k(f"s_waitcnt lgkmcnt({1-i})")
        k(f"buffer_store_dwordx4 {vr(KR+4*i,4)}, v{T+3}, s[28:31], s38 offen")
        k(f"s_add_u32 s38, s38, {32*L.KVR_CH}")
    hl = k.newlab(); zl = k.newlab()
    k(f"""
    v_cmp_eq_u32 vcc, 0, v{T+2}
    s_and_saveexec_b64 s[66:67], vcc
    s_cmp_eq_u32 s37, 0
    s_cbranch_scc1 {hl}
    s_cmp_eq_u32 s32, 31
    s_cbranch_scc1 {zl}
    """)
    for i in range(2):
        k(f"buffer_store_dwordx4 {vr(KR+4*i,4)}, v{T+1}, s[28:31], s36 offen offset:{272+256}")
        k(f"s_add_u32 s36, s36, {32*L.KVR_CH}")
    k(f"s_branch {zl}")
    k.lab(hl)
    k(f"""
    s_cmp_lg_u32 s32, 0
    s_cbranch_scc1 {zl}
    v_mov_b32 v{T+8}, 0
    v_mov_b32 v{T+9}, 0
    v_mov_b32 v{T+10}, 0
    v_mov_b32 v{T+11}, 0
    """)
    for i in range(2):
        k(f"buffer_store_dwordx4 {vr(T+8,4)}, v{T+1}, s[28:31], s36 offen offset:256")
        k(f"s_add_u32 s36, s36, {32*L.KVR_CH}")
    k.lab(zl)
    k("s_mov_b64 exec, -1")
    k("s_waitcnt vmcnt(0)")
    k("s_barrier")
    k("s_and_b32 s45, s45, 3")
    k("s_cmp_lg_u32 s45, 0")
    k(f"s_cbranch_scc1 {end}")
    nonce_get(122, 123)
    flag_store("s44", 124)
    k("s_endpgm")
    k.lab(end)
    k("s_endpgm")

    k.lab("p_aux")
    nonce_issue(250, 251)
    k(f"""
    s_sub_u32 s21, s2, 160               ; a (0..95)
    s_cmp_ge_u32 s20, 6
    s_cbranch_scc1 {end}
    s_cmp_ge_u32 s20, 3
    s_cbranch_scc1 p_misc
    s_cmp_eq_u32 s20, 0
    s_cbranch_scc1 p_st
    s_cmp_eq_u32 s20, 2
    s_cbranch_scc1 p_aux2
    s_add_u32 s21, s21, 96
    s_cmp_lt_u32 s21, 128
    s_cbranch_scc1 p_st
    s_sub_u32 s21, s21, 128
    s_branch p_mod
    """)
    k.lab("p_aux2")
    k(f"""
    s_cmp_ge_u32 s21, 56
    s_cbranch_scc1 {end}
    s_add_u32 s21, s21, 64
    """)
    k.lab("p_mod")
    C, W, A, T = 8, 32, 112, 120
    k(f"""
    s_lshr_b32 s32, s21, 2               ; cb
    s_and_b32 s33, s21, 3                ; kq
    v_lshrrev_b32 v4, 3, v1              ; row_l
    v_and_b32 v3, 7, v1                  ; chunk
    s_mul_i32 s34, s33, 160
    v_add_u32 v4, s34, v4
    v_lshlrev_b32 v5, 1, v4              ; c offset
    v_mul_u32_u24 v6, 7680, v4
    s_lshl_b32 s36, s32, 7
    v_lshl_add_u32 v7, v3, 4, s36
    v_add_u32 v6, v6, v7
    """)
    k.srd(16, 52, 1280); k.srd(24, 62, 640 * 7680)
    k(f"""
    s_mul_i32 s35, s33, 320
    v_lshlrev_b32 v5, 3, v1
    buffer_load_dwordx2 v[30:31], v5, s[16:19], s35 offen
    s_mov_b32 s37, 0
    """)
    for it in range(20):
        k(f"buffer_load_dwordx4 {vr(W+4*it,4)}, v6, s[24:27], s37 offen {NT}")
        if it < 19: k(f"s_add_u32 s37, s37, {8*7680}")
    TT = T
    k(f"""
    s_mul_i32 s35, s20, {WREG}
    v_lshlrev_b32 v5, 4, v1
    v_add_u32 v5, s35, v5
    v_lshrrev_b32 v29, 3, v1
    v_lshlrev_b32 v29, 2, v29
    v_add_u32 v29, s35, v29
    s_waitcnt vmcnt(20)
    """)
    k.unpack(C, C + 1, 30); k.unpack(C + 2, C + 3, 31)
    for i in range(4): k(f"v_mul_f32 v{TT+i}, 0xbfb8aa3b, v{C+i}")
    for i in range(4): k(f"v_exp_f32 v{TT+i}, v{TT+i}")
    for i in range(4): k(f"v_add_f32 v{TT+i}, 1.0, v{TT+i}")
    for i in range(4): k(f"v_rcp_f32 v{TT+i}, v{TT+i}")
    k("s_nop 0")
    for i in range(4): k(f"v_mul_f32 v{C+i}, v{C+i}, v{TT+i}")
    for i in (0, 2): k.round2(C + i, C + i + 1, TT)
    k(f"ds_write_b128 v5, {vr(C,4)}")
    k("s_waitcnt lgkmcnt(0)")
    for it in range(20): k(f"ds_read_b32 v{C+it}, v29 offset:{32*it}")
    k("s_waitcnt lgkmcnt(0)")
    for j in range(8): k(f"v_mov_b32 v{A+j}, 0")
    for it in range(20):
        k(f"s_waitcnt vmcnt({19-it})")
        for d in range(4): k.unpack(T + 2*d, T + 2*d + 1, W + 4*it + d)
        sel = "op_sel:[0,0,0] op_sel_hi:[1,0,1]" if it % 2 == 0 else "op_sel:[0,1,0] op_sel_hi:[1,1,1]"
        for d in range(4):
            k(f"v_pk_fma_f32 {vr(A+2*d,2)}, {vr(T+2*d,2)}, {vr(C+(it&~1),2)}, {vr(A+2*d,2)} {sel}")
    k("s_nop 1")
    for d in range(8):
        k(f"v_add_f32_dpp v{A+d}, v{A+d}, v{A+d} row_ror:8 row_mask:0xf bank_mask:0xf")
    for x in gen3.reduce_g_ops([A + d for d in range(8)], T): k(x)
    k(f"""
    v_lshlrev_b32 v7, 5, v3
    s_mul_i32 s36, s33, {3840*4}
    s_lshl_b32 s37, s32, 8
    s_add_u32 s37, s37, s36
    s_add_u32 s37, s37, {L.MODP}
    s_lshl_b32 s44, s21, 7
    s_add_u32 s44, s44, {L.PFM}
    s_mov_b64 exec, 0xff
    buffer_store_dwordx4 {vr(A,4)}, v7, s[28:31], s37 offen
    buffer_store_dwordx4 {vr(A+4,4)}, v7, s[28:31], s37 offen offset:16
    s_mov_b64 exec, -1
    s_waitcnt vmcnt(0)
    """)
    nonce_get(250, 251)
    flag_store("s44", 132)
    k("s_endpgm")
    k.lab("p_st")
    k.srd(16, 60, SZ_SD)
    k(f"""
    v_lshrrev_b32 v5, 3, v1              ; r
    v_and_b32 v6, 7, v1                  ; c
    s_lshl_b32 s23, s21, 4
    v_add_u32 v7, s23, v5
    v_mul_u32_u24 v9, 1280, v7
    v_lshl_add_u32 v9, v6, 4, v9
    v_mov_b32 v20, 0x3f803f80
    s_mov_b32 s24, 0
    """)
    for p in range(2):
        for t in range(10):
            k(f"buffer_load_dwordx4 {vr(32+40*p+4*t,4)}, v9, s[16:19], s24 offen offset:{128*t} {NT}")
        if p < 1: k(f"s_add_u32 s24, s24, {8*1280}")
    k(f"""
    v_and_b32 v21, 1, v5
    v_lshl_add_u32 v21, v6, 1, v21
    v_lshlrev_b32 v21, 7, v21
    v_lshrrev_b32 v22, 1, v5
    v_xor_b32 v22, v22, v6
    v_lshl_add_u32 v21, v22, 4, v21
    v_xor_b32 v23, 64, v21
    s_mul_i32 s25, s21, 20480
    s_add_u32 s25, s25, {L.Q4}
    """)
    for i in range(4): k(f"v_mov_b32 v{10+i}, 0")
    for p in range(2):
        for t in range(10):
            k(f"s_waitcnt vmcnt({19 - (10*p + t) + (10*p + t)})") if False else None
            X = 32 + 40*p + 4*t
            k(f"s_waitcnt vmcnt({min(63, 19 - (10*p + t) + (10*p + t))})") if False else None
            nld = 10*p + t
            k(f"s_waitcnt vmcnt({19 - nld + nld})") if False else None
            k(f"s_waitcnt vmcnt(19)")
            for d in range(4):
                k(f"v_dot2_f32_bf16 v{10+2*p}, v{X+d}, v20, v{10+2*p}")
                k(f"v_dot2_f32_bf16 v{11+2*p}, v{X+d}, v{X+d}, v{11+2*p}")
            O = 120 + 4*(t & 1)
            k(f"v_mov_b32 v{O}, v{X}")
            k(f"v_mov_b32 v{O+1}, v{X+1}")
            k(f"v_mov_b32 v{O+2}, v{X+2}")
            k(f"v_mov_b32 v{O+3}, v{X+3}")
            k(f"v_mov_b32_dpp v{O}, v{X+2} row_ror:8 row_mask:0xf bank_mask:0xc")
            k(f"v_mov_b32_dpp v{O+1}, v{X+3} row_ror:8 row_mask:0xf bank_mask:0xc")
            k(f"v_mov_b32_dpp v{O+2}, v{X} row_ror:8 row_mask:0xf bank_mask:0x3")
            k(f"v_mov_b32_dpp v{O+3}, v{X+1} row_ror:8 row_mask:0xf bank_mask:0x3")
            k(f"s_add_u32 s26, s25, {2048*t}")
            k(f"buffer_store_dwordx4 {vr(O,4)}, v{21 if p == 0 else 23}, s[28:31], s26 offen")
    k("s_nop 2")
    for ctl in ("quad_perm:[1,0,3,2]", "quad_perm:[2,3,0,1]", "row_half_mirror"):
        for i in range(4):
            k(f"v_add_f32_dpp v{10+i}, v{10+i}, v{10+i} {ctl} row_mask:0xf bank_mask:0xf")
    for x in gen3.zipl(*[gen3.ln_ops(10+2*p, 11+2*p, 24+p, 640) for p in range(2)]): k(x)
    k(f"""
    v_lshlrev_b32 v7, 3, v7
    v_cmp_eq_u32 vcc, 0, v6
    s_lshl_b32 s44, s21, 7
    s_add_u32 s44, s44, {L.PFS}
    s_mov_b32 s23, {L.ST1}
    s_and_saveexec_b64 s[66:67], vcc
    """)
    for p in range(2):
        k(f"buffer_store_dwordx2 {vr(10+2*p,2)}, v7, s[28:31], s23 offen offset:{64*p}")
    k("s_mov_b64 exec, -1")
    k("s_waitcnt vmcnt(0)")
    nonce_get(250, 251)
    flag_store("s44", 30)
    k("s_endpgm")
    k.lab("p_misc")
    k(f"""
    s_sub_u32 s24, s20, 3
    s_mul_i32 s23, s24, 96
    s_add_u32 s23, s23, s21
    s_cmp_ge_u32 s23, 256
    s_cbranch_scc1 {end}
    s_mul_i32 s22, s24, 12
    s_lshr_b32 s25, s21, 3
    s_add_u32 s22, s22, s25
    """)
    k(f"""
    v_lshlrev_b32 v1, 4, v1
    v_mov_b32 v60, 0
    v_mov_b32 v61, 0
    v_mov_b32 v62, 0
    v_mov_b32 v63, 0
    s_lshl_b32 s24, s23, 10
    s_add_u32 s25, s24, {L.FLG}
    s_add_u32 s26, s24, {L.H1S}
    s_add_u32 s27, s24, {L.H1S + 127*20480 - 20480}
    s_cmp_ge_u32 s23, 20
    s_cselect_b32 s26, s27, s26
    """)
    zl = k.newlab("nz"); zl2 = k.newlab("nz")
    k(f"""
    s_cmp_ge_u32 s23, {L.FLG_KB}
    s_cbranch_scc1 {zl}
    buffer_store_dwordx4 v[60:63], v1, s[28:31], s25 offen
    """)
    k.lab(zl)
    k(f"""
    s_cmp_ge_u32 s23, 40
    s_cbranch_scc1 {zl2}
    buffer_store_dwordx4 v[60:63], v1, s[28:31], s26 offen
    """)
    k.lab(zl2)
    if not os.environ.get("NOCPF"):
        k("s_getpc_b64 s[24:25]")
        k.lab("p_pcref")
        k(f"""
        s_sub_u32 s24, s24, p_pcref-{k.name}
        s_subb_u32 s25, s25, 0
        s_lshl_b32 s23, s22, 11
        """)
        for i in range(2):
            k(f"""
            s_add_u32 s26, s23, {1024*i}
            s_min_u32 s26, s26, (chain_end-{k.name}-1020)&0xfffffff0
            v_add_u32 v64, s26, v1
            v_mov_b32 v5, s25
            v_add_co_u32 v4, vcc, s24, v64
            v_addc_co_u32 v5, vcc, 0, v5, vcc
            global_load_dwordx4 {vr(72+4*i,4)}, v[4:5], off
            """)
    k("s_waitcnt vmcnt(0)")
    k("s_endpgm")
    k.lab("p_conv")
    k("s_cmp_ge_u32 s20, 4")
    k(f"s_cbranch_scc1 {end}")
    if os.environ.get("PRIO", "1") == "1": k("s_setprio 3")
    k.stamp(0)
    k(f"""
    s_and_b32 s21, s2, 7
    s_mul_i32 s21, s21, 20
    s_sub_u32 s2, s2, 256
    s_lshr_b32 s2, s2, 3
    s_add_u32 s2, s2, s21                  ; s2 := cg
    """)
    k.srd(24, 56, 640 * 4096)
    k(f"""
    s_lshl_b32 s21, s2, 3
    s_add_u32 s22, s58, s21
    s_addc_u32 s23, s59, 0
    s_load_dwordx2 s[32:33], s[22:23], 0
    s_lshl_b32 s21, s2, 2
    s_add_u32 s21, s21, s20                 ; ch
    s_mul_i32 s34, s20, {WREG}
    v_lshlrev_b32 v3, 4, v1                 ; lane*16
    s_lshl_b32 s35, s21, 12                 ; ch*4096
    s_add_u32 s36, s34, 256
    s_mov_b32 m0, s36
    s_mul_i32 s37, s21, {L.KVR_CH}
    s_add_u32 s37, s37, {L.KVR}
    """)
    for i in range(4):
        k(f"buffer_load_dwordx4 v3, s[24:27], s35 offen offset:{1024*i} {NT} lds")
    k(f"""
    s_add_u32 s36, s34, {KB + 256}
    s_mov_b32 m0, s36
    s_add_u32 s40, s35, 8
    v_mov_b32 v16, 0
    """)
    for i in range(4):
        k(f"buffer_load_dwordx4 v3, s[24:27], s40 offen offset:{1024*i} lds")
    k(f"buffer_load_dwordx2 v[252:253], v16, s[24:27], s35 offen")
    k(f"""
    v_lshrrev_b32 v4, 3, v0
    v_mul_u32_u24 v4, 20480, v4
    s_lshr_b32 s38, s2, 1
    s_and_b32 s38, s38, 7
    v_and_b32 v5, 7, v0
    v_xor_b32 v5, s38, v5
    v_lshl_add_u32 v4, v5, 4, v4            ; (t>>3)*20480 + ((t&7)^sw)*16
    s_lshl_b32 s38, s2, 7                   ; cg*128
    """)
    nonce_issue(17, 16)
    k("s_waitcnt vmcnt(0)")
    nonce_get(17, 16)
    k(f"""
    s_lshr_b32 s40, s2, 4
    s_lshl_b32 s40, s40, 12
    s_add_u32 s40, s40, {L.PFK}
    v_lshlrev_b32 v16, 7, v1
    """)
    lw = k.newlab("w0")
    k("s_cmp_lg_u32 s20, 0")
    k(f"s_cbranch_scc1 {lw}")
    poll(16, 17, "s_mov_b32 exec_lo, -1\ns_mov_b32 exec_hi, 0", "s40")
    k.lab(lw)
    k("s_barrier")
    k(f"""
    s_add_u32 s36, s34, 4352
    s_mov_b32 m0, s36
    s_nop 0
    """)
    for i in range(4):
        k(f"buffer_load_dwordx4 v3, s[28:31], s37 offen offset:{1024*i} sc1 lds")
    k(f"""
    s_add_u32 s36, s34, {4352+4096}
    s_mov_b32 m0, s36
    s_add_u32 s37, s37, 4096
    buffer_load_dwordx4 v3, s[28:31], s37 offen sc1 lds
    """)
    QL = 4 * WREG
    def late_load(i):
        k(f"s_lshl_b32 s39, s20, 10")
        k(f"s_add_u32 m0, s39, {QL + 4096*i}")
        k(f"s_add_u32 s39, s38, {L.Q4 + i*32*20480}")
        k(f"buffer_load_dwordx4 v4, s[28:31], s39 offen sc1 lds")
    k(f"""
    v_lshl_add_u32 v5, v1, 2, s34
    v_mov_b32 v6, 0
    ds_write_b32 v5, v6
    ds_write_b32 v5, v6 offset:{KB}
    v_and_b32 v7, 15, v1                    ; n16
    v_bfe_u32 v8, v1, 4, 1                  ; ph
    v_lshrrev_b32 v9, 5, v1                 ; g
    v_mul_u32_u24 v10, 272, v7
    v_lshl_add_u32 v10, v9, 4, v10
    v_add_u32 v10, s34, v10
    v_add_u32 v10, {4352+4}, v10
    v_lshlrev_b32 v11, 2, v8
    v_sub_u32 v10, v10, v11
    v_and_b32 v12, 7, v1
    v_mul_u32_u24 v13, 272, v12
    v_lshl_add_u32 v13, v9, 4, v13
    v_add_u32 v13, s34, v13
    v_add_u32 v13, {4352+4}, v13
    v_sub_u32 v13, v13, v11                 ; vBP
    v_bfe_u32 v11, v1, 3, 1                 ; a'
    v_lshlrev_b32 v11, 4, v11
    v_sub_u32 v11, 16, v11
    v_and_b32 v14, 31, v1
    v_lshlrev_b32 v14, 3, v14
    v_lshl_add_u32 v14, v9, 4, v14
    v_add_u32 v14, s34, v14
    v_and_b32 v17, 1, v1
    v_mul_u32_u24 v17, {KB - 8}, v17
    v_sub_u32 v17, {KB}, v17
    v_add_u32 v14, v17, v14                 ; vA
    v_cmp_ne_u32 vcc, 0, v12
    v_mov_b32 v16, 0
    s_nop 1
    v_cndmask_b32 v15, v16, -1, vcc
    """)
    k(f"""
    s_add_u32 s36, s34, {KB + 248}
    v_mov_b32 v17, s36
    s_waitcnt vmcnt(0) lgkmcnt(0)
    s_mov_b64 exec, 1
    ds_write_b64 v17, v[252:253]
    s_mov_b64 exec, -1
    s_waitcnt lgkmcnt(0)
    """)
    B0, B1, BP, AX, AY, AP_, AM, APk = 32, 64, 96, 128, 144, 160, 176, 208
    k.stamp(1)
    def aread(reg, off):
        return f"ds_read_b128 {vr(reg,4)}, v14 offset:{off}"
    for ks in range(8):
        k(aread(AM+4*ks, 256*7+32*ks))
    TB = 16
    for ks in range(8):
        k(f"ds_read2_b32 {vr(B1+4*ks,2)}, v10 offset0:{8*ks} offset1:{8*ks+1}")
        k(f"ds_read2_b32 {vr(B1+4*ks+2,2)}, v10 offset0:{8*ks+2} offset1:{8*ks+3}")
    prd = []
    for ks in range(8):
        prd.append(f"ds_read_b32 v{TB+ks}, v10 offset:{32*ks+16}")
    for ks in range(8):
        prd.append(f"ds_read2_b32 {vr(BP+4*ks,2)}, v13 offset0:{8*ks} offset1:{8*ks+1}")
        prd.append(f"ds_read2_b32 {vr(BP+4*ks+2,2)}, v13 offset0:{8*ks+2} offset1:{8*ks+3}")
        prd.append(f"ds_read_b32 v{TB+8+ks}, v13 offset:{32*ks+16}")
    al0 = []; alp = []
    for ks in range(8):
        for d in range(4):
            hi = B1 + 4*ks + d + 1 if d < 3 else TB + ks
            al0.append(f"v_alignbit_b32 v{B0+4*ks+d}, v{hi}, v{B1+4*ks+d}, 16")
            hi = BP + 4*ks + d + 1 if d < 3 else TB + 8 + ks
            alp.append(f"v_alignbit_b32 v{BP+4*ks+d}, v{hi}, v{BP+4*ks+d}, v11")
    k.stamp(2)
    DPP = "row_mask:0xf bank_mask:0xf bound_ctrl:0"
    def mfma(acc, a, b, first):
        c = "0" if first else vr(acc, 16)
        k(f"v_mfma_f32_32x32x16_bf16 {vr(acc,16)}, {vr(a,4)}, {vr(b,4)}, {c}")
    def phase(acc, Areg, Breg, first, reads, late, pad=True, rg=8):
        reads = list(reads); late = list(late)
        for ks in range(8):
            mfma(acc, Areg + 4*ks, Breg + 4*ks, first and ks == 0)
            n = (len(reads) + (rg - 1 - ks)) // (rg - ks) if ks < rg else 0
            for s in reads[:n]:
                k(s)
            reads = reads[n:]
            if ks < 2:
                if pad and late and n < 5:
                    k(f"s_nop {4 - n}")
            else:
                n = (len(late) + (7 - ks)) // (8 - ks)
                for s in late[:n]:
                    k(s)
                late = late[n:]
        assert not late and not reads
    def shift_ops(acc, masked):
        if masked:
            return [f"v_and_b32_dpp v{acc+r}, v{acc+r}, v15 row_shr:1 {DPP}" for r in range(16)]
        return [f"v_mov_b32_dpp v{acc+r}, v{acc+r} row_shr:1 {DPP}" for r in range(16)]
    def areads(reg, off):
        o = []
        for ks in range(8):
            o += aread(reg + 4*ks, off + 32*ks).split("\n")
        return o
    for q in range(7, -1, -1):
        first = (q == 7)
        if q == 2:
            k(f"""
            s_lshr_b32 s40, s2, 4
            s_lshl_b32 s40, s40, 9
            s_add_u32 s40, s40, {L.PFM}
            s_mov_b32 s41, {L.PFS}
            v_lshrrev_b32 v16, 2, v1
            v_mul_u32_u24 v16, {40*128}, v16
            v_and_b32 v17, 3, v1
            v_lshl_add_u32 v16, v17, 7, v16
            v_lshlrev_b32 v18, 7, v1
            v_mov_b32 v17, s46
            s_add_u32 s42, s41, 8192
            buffer_load_dword v19, v18, s[28:31], s41 offen sc1
            buffer_load_dword v28, v18, s[28:31], s42 offen sc1
            s_mov_b64 exec, 0xfff
            buffer_load_dword v17, v16, s[28:31], s40 offen sc1
            s_mov_b64 exec, -1
            """)
        if q == 1:
            lp = k.newlab("mp"); ld = k.newlab("md")
            k("s_mov_b32 s47, 0")
            k.lab(lp)
            k(f"""
            s_waitcnt vmcnt(0)
            v_cmp_ne_u32 vcc, s46, v17
            v_cmp_ne_u32 s[66:67], s46, v19
            v_cmp_ne_u32 s[68:69], s46, v28
            s_add_u32 s47, s47, 1
            s_nop 2
            s_or_b64 vcc, vcc, s[66:67]
            s_or_b64 vcc, vcc, s[68:69]
            s_cmp_ge_u32 s47, {SPIN}
            s_cbranch_scc1 {ld}
            s_cbranch_vccz {ld}
            buffer_load_dword v19, v18, s[28:31], s41 offen sc1
            buffer_load_dword v28, v18, s[28:31], s42 offen sc1
            s_mov_b64 exec, 0xfff
            buffer_load_dword v17, v16, s[28:31], s40 offen sc1
            s_mov_b64 exec, -1
            s_branch {lp}
            """)
            k.lab(ld)
            k(f"""
            s_lshl_b32 s40, s2, 4
            s_add_u32 s40, s40, {L.MODP}
            v_lshrrev_b32 v16, 2, v1
            v_mul_u32_u24 v16, 2560, v16
            v_and_b32 v17, 3, v1
            v_mul_u32_u24 v17, {3840*4}, v17
            v_add_u32 v16, v16, v17
            v_lshlrev_b32 v18, 4, v1
            s_mov_b64 exec, 0xfff
            buffer_load_dwordx4 v[20:23], v16, s[28:31], s40 offen sc1
            s_mov_b64 exec, -1
            """)
            for e in range(4):
                k(f"s_lshl_b32 s39, s20, 10")
                k(f"s_add_u32 m0, s39, {QL + 16384 + 4096*e}")
                k(f"s_add_u32 s39, s39, {L.ST1 + 4096*e}")
                k(f"buffer_load_dwordx4 v18, s[28:31], s39 offen sc1 lds")
                late_load(e)
        k("s_waitcnt lgkmcnt(0)")
        apl = areads(APk, 256*(q+8))
        if first:
            for ks in range(8):
                mfma(AY, AM + 4*ks, B1 + 4*ks, ks == 0)
                if ks == 0:
                    for x in prd[:16]: k(x)
                elif ks == 1:
                    for x in prd[16:]: k(x)
                elif ks == 2:
                    k("s_waitcnt lgkmcnt(15)")
                    k("s_waitcnt lgkmcnt(0)")
                    for x in al0[:4]: k(x)
                else:
                    for x in al0[4 + (ks-3)*6: 4 + (ks-2)*6]: k(x)
            k("s_nop 0")
            phase(AX, AM, B0, True, apl, alp[:16] + shift_ops(AY, False) + alp[16:] + ["s_nop 0"])
        else:
            phase(AY, AM, B1, False, apl, shift_ops(AP_, True))
            phase(AX, AM, B0, False, [], shift_ops(AY, False) if q > 0 else [])
        k("s_waitcnt lgkmcnt(0)")
        aml = areads(AM, 256*(q-1)) if q > 0 else []
        phase(AP_, APk, BP, first, aml, shift_ops(AX, False) if q > 0 else [], rg=5)
    k.stamp(3)
    k("s_nop 11")
    for r in range(16):
        k(f"v_add_f32_dpp v{AX+r}, v{AP_+r}, v{AX+r} row_shr:8 {DPP}")
    k("""
    s_mov_b32 s42, 0xff00ff00
    s_mov_b32 s43, 0xff00ff00
    s_mov_b64 exec, s[42:43]
    """)
    for r in range(16):
        k(f"v_add_f32 v{AY+r}, v{AP_+r}, v{AY+r}")
    k("s_mov_b64 exec, -1")
    k(f"""
    v_mul_u32_u24 v16, 264, v7
    v_lshl_add_u32 v16, v9, 5, v16
    v_lshl_add_u32 v16, v8, 2, v16
    v_add_u32 v16, s34, v16
    """)
    for r in range(16):
        k(f"v_cvt_pk_bf16_f32 v{32+r}, v{AX+r}, v{AY+r}")
    for r in range(16):
        k(f"ds_write_b32 v16, v{32+r} offset:{64*(r>>2)+8*(r&3)}")
    k(f"""
    s_lshl_b32 s44, s32, 16
    s_and_b32 s45, s32, 0xffff0000
    s_lshl_b32 s46, s33, 16
    s_and_b32 s47, s33, 0xffff0000
    v_mul_u32_u24 v17, 264, v2
    v_lshl_add_u32 v17, v1, 2, v17
    s_waitcnt lgkmcnt(0)
    s_barrier
    """)
    Y = 48
    KV = 224
    k(f"""
    v_mul_u32_u24 v19, 272, v2
    v_lshlrev_b32 v18, 2, v1
    v_sub_u32 v19, v19, v18
    v_add_u32 v19, {4352 + 252}, v19
    """)
    for e in range(4):
        for c in range(4):
            k(f"ds_read_b32 v{Y+4*e+c}, v17 offset:{c*WREG+1056*e}")
    k("s_waitcnt lgkmcnt(0)")
    for e in range(4):
        for c in range(4):
            k(f"ds_read_b32 v{KV+4*e+c}, v19 offset:{c*WREG+1088*e}")
    T = 64; O = 96
    QF, SR, PP = 112, 144, 160
    k(f"""
    v_mov_b32 v28, s44
    v_mov_b32 v29, s45
    v_mov_b32 v30, s46
    v_mov_b32 v31, s47
    s_waitcnt vmcnt(0)
    """)
    k(f"v_lshlrev_b32 v18, 4, v0")
    k(f"v_add_u32 v18, {QL}, v18")
    k("s_waitcnt lgkmcnt(0)")
    for e in range(4):
        k(f"ds_read_b128 {vr(176+4*e,4)}, v18 offset:{4096*e}")
        k(f"ds_read_b128 {vr(SR+4*e,4)}, v18 offset:{16384+4096*e}")
    for ctl in ("quad_perm:[1,0,3,2]", "quad_perm:[2,3,0,1]"):
        k("s_nop 1")
        for c in range(4): k(f"v_add_f32_dpp v{20+c}, v{20+c}, v{20+c} {ctl} row_mask:0xf bank_mask:0xf")
    k("s_nop 1")
    for c in (0, 2): k.round2(20 + c, 21 + c, 24)
    for c in range(4): k(f"v_add_f32 v{24+c}, 1.0, v{20+c}")
    for c in (0, 2): k.round2(24 + c, 25 + c, 10)
    k("s_nop 1")
    for c in range(4):
        k(f"v_readlane_b32 s{68+c}, v{20+c}, 0")
        k(f"v_readlane_b32 s{72+c}, v{24+c}, 4")
        k(f"v_readlane_b32 s{76+c}, v{20+c}, 8")
    k("s_nop 1")
    for c in range(4): k(f"v_mov_b32 v{10+c}, s{76+c}")
    for c in range(4):
        k(f"v_mul_f32 v{PP+c}, s{72+c}, v{10+c}")
        k(f"v_mul_f32 v{PP+4+c}, s{68+c}, v{10+c}")
    k("s_waitcnt lgkmcnt(0)")
    BCX = "op_sel:[0,1,0] op_sel_hi:[1,1,0]"
    for e in range(4):
        for c in range(4):
            k.unpack(T + 4 + c, T + c, KV + 4*e + c)
        for c in range(4):
            k.unpack(T + 10 + c, T + 14 + c, Y + 4*e + c)
        for d in range(4):
            k.unpack(QF + 2*d, QF + 2*d + 1, 176 + 4*e + d)
        for d in range(4):
            k(f"v_pk_fma_f32 {vr(T+2*d,2)}, {vr(T+2*d,2)}, {vr(28+2*(d%2),2)}, {vr(T+10+2*d,2)}")
        for d in range(4):
            S_ = SR + 4*e + 2*(d // 2)
            k(f"v_pk_fma_f32 {vr(QF+8+2*d,2)}, {vr(QF+2*d,2)}, {vr(S_,2)}, {vr(S_,2)} {BCX}")
        for d in range(4):
            k(f"v_pk_fma_f32 {vr(QF+8+2*d,2)}, {vr(QF+8+2*d,2)}, {vr(PP+2*(d%2),2)}, {vr(PP+4+2*(d%2),2)}")
        for d in range(4):
            k(f"v_pk_fma_f32 {vr(T+2*d,2)}, {vr(T+2*d,2)}, {vr(QF+8+2*d,2)}, {vr(QF+2*d,2)}")
        for d in range(4):
            k(f"v_cvt_pk_bf16_f32 v{O+4*e+d}, v{T+2*d}, v{T+2*d+1}")
    k(f"s_add_u32 s39, s38, {L.YT}")
    for e in range(4):
        k(f"buffer_store_dwordx4 {vr(O+4*e,4)}, v4, s[28:31], s39 offen")
        k(f"s_add_u32 s39, s39, {32*20480}")
    if os.environ.get("DBGSPIN"):
        k("""
        s_cmp_lg_u32 s2, 0
        s_cbranch_scc1 dbg_skip
        v_mov_b32 v1, 0
        v_mov_b32 v20, s70
        v_mov_b32 v21, s71
        v_mov_b32 v22, s72
        v_mov_b32 v23, s73
        buffer_store_dwordx4 v[20:23], v1, s[48:51], 0 offen offset:16
        """)
        k.lab("dbg_skip")
    k.stamp(4)
    k("s_waitcnt vmcnt(0)")
    k.stamp(5)
    k.stamp_end(6)
    k("s_endpgm")

    k.lab("p_pack")
    k(f"""
    s_sub_u32 s21, s2, 416                ; h
    s_mul_i32 s34, s20, {WREG}
    s_cmp_ge_u32 s20, 4
    s_cbranch_scc1 {end}
    s_cmp_eq_u32 s20, 0
    s_cbranch_scc1 k1_pack
    s_cmp_eq_u32 s20, 1
    s_cbranch_scc0 p_pk2
    s_cmp_lt_u32 s21, 58
    s_cbranch_scc0 p_pk1
    s_add_u32 s21, s21, 96
    s_branch k1_pack
    """)
    k.lab("p_pk1")
    k(f"""
    s_sub_u32 s21, s21, 58
    s_cmp_ge_u32 s21, 30
    s_cbranch_scc1 {end}
    s_branch p_fin
    """)
    k.lab("p_pk2")
    k(f"""
    s_sub_u32 s22, s20, 2
    s_mul_i32 s22, s22, 96
    s_add_u32 s21, s21, s22
    s_cmp_ge_u32 s21, 120
    s_cbranch_scc1 {end}
    s_add_u32 s21, s21, 120
    """)
    nonce_issue(250, 251)
    k("s_branch p_mod")
    k.lab("p_fin")
    k("s_add_u32 s21, s21, 30")
    nonce_issue(17, 16)
    k("s_waitcnt vmcnt(0)")
    nonce_get(17, 16)
    k(f"""
    s_lshl_b32 s40, s21, 9
    s_add_u32 s40, s40, {L.PFM}
    v_lshlrev_b32 v16, 7, v1
    """)
    poll(16, 17, "s_mov_b64 exec, 15", "s40")
    k(f"""
    v_lshlrev_b32 v7, 2, v1
    s_lshl_b32 s22, s21, 8
    s_add_u32 s23, s22, {L.MODP}
    """)
    for part in range(4):
        k(f"buffer_load_dword v{10+part}, v7, s[28:31], s23 offen sc1")
        if part < 3: k(f"s_add_u32 s23, s23, {3840*4}")
    l1 = k.newlab("f1"); l2 = k.newlab("f2")
    k(f"""
    s_waitcnt vmcnt(0)
    v_add_f32 v10, v10, v11
    v_add_f32 v12, v12, v13
    s_nop 0
    v_add_f32 v10, v10, v12
    s_nop 0
    v_cvt_pk_bf16_f32 v10, v10, v10
    s_nop 0
    v_lshlrev_b32 v10, 16, v10
    s_sub_u32 s24, s21, 10
    s_cmp_lt_u32 s24, 10
    s_cbranch_scc1 {l1}
    s_sub_u32 s24, s21, 40
    s_cmp_lt_u32 s24, 10
    s_cbranch_scc0 {l2}
    """)
    k.lab(l1)
    k("""
    v_add_f32 v10, 1.0, v10
    s_nop 0
    v_cvt_pk_bf16_f32 v10, v10, v10
    s_nop 0
    v_lshlrev_b32 v10, 16, v10
    """)
    k.lab(l2)
    k(f"""
    s_add_u32 s22, s22, {L.MODF}
    buffer_store_dword v10, v7, s[28:31], s22 offen
    """)
    k("s_endpgm")
    k.lab("k1_pack")
    labs = [k.newlab("pk") for _ in range(4)]
    k(f"""
    v_lshrrev_b32 v3, 3, v1
    v_and_b32 v4, 7, v1                    ; chunk
    v_mul_u32_u24 v5, 144, v3
    v_lshl_add_u32 v5, v4, 4, v5
    v_add_u32 v5, s34, v5
    v_and_b32 v6, 15, v1
    v_lshrrev_b32 v7, 4, v1                ; g
    v_lshrrev_b32 v8, 2, v6
    v_lshl_add_u32 v8, v7, 3, v8           ; 8g + (i>>2)
    v_mul_u32_u24 v8, 144, v8
    v_and_b32 v9, 3, v6
    v_lshl_add_u32 v8, v9, 3, v8
    v_add_u32 v8, s34, v8
    v_lshlrev_b32 v9, 4, v1                ; lane*16
    s_cmp_lt_u32 s21, 20
    s_cbranch_scc1 {labs[0]}
    s_cmp_lt_u32 s21, 40
    s_cbranch_scc1 {labs[1]}
    s_cmp_lt_u32 s21, 94
    s_cbranch_scc1 {labs[2]}
    s_branch {labs[3]}
    """)
    for m in range(4):
        k.lab(labs[m])
        N = [640, 640, 1728, 640][m]; Kd = [640, 640, 640, 1728][m]
        pitch = N * 2
        nks = 10 if m < 3 else 9
        ub = [0, 20, 40, 94][m]
        ncb = N // 64
        k.srd(24, 12 + 2*m, Kd * N * 2)
        magic = {10: (52429, 19), 27: (2428, 16)}[ncb]
        k(f"""
        s_sub_u32 s32, s21, {ub}
        s_mul_i32 s33, s32, {magic[0]}
        s_lshr_b32 s33, s33, {magic[1]}       ; kq
        s_mul_i32 s35, s33, {ncb}
        s_sub_u32 s35, s32, s35               ; cbk
        v_mul_u32_u24 v10, {pitch}, v3
        v_lshl_add_u32 v10, v4, 4, v10
        s_mul_i32 s36, s33, {nks*32*pitch}
        s_lshl_b32 s37, s35, 7
        s_add_u32 s36, s36, s37
        """)
        R = 32
        for i in range(nks):
            for j in range(4):
                k(f"buffer_load_dwordx4 {vr(R+16*i+4*j,4)}, v10, s[24:27], s36 offen {NT}")
                if not (i == nks - 1 and j == 3): k(f"s_add_u32 s36, s36, {8*pitch}")
        for nt in range(4):
            k(f"s_lshl_b32 s36, s35, 2")
            k(f"s_add_u32 s36, s36, {nt}")
            if m < 2:
                k(f"""
                s_mul_i32 s38, s36, 6554
                s_lshr_b32 s38, s38, 16
                s_mul_i32 s39, s38, 10
                s_sub_u32 s39, s36, s39
                s_cmp_ge_u32 s39, 5
                s_cselect_b32 s40, 1, 0
                s_sub_u32 s41, s39, 6
                s_cmp_eq_u32 s39, 5
                s_cselect_b32 s41, 4, s41
                s_cmp_eq_u32 s40, 1
                s_cselect_b32 s39, s41, s39
                s_mul_i32 s37, s38, 200
                s_mul_i32 s40, s40, 100
                s_add_u32 s37, s37, s40
                s_mul_i32 s40, s33, 50
                s_add_u32 s37, s37, s40
                s_add_u32 s37, s37, s39
                s_lshl_b32 s37, s37, 10
                s_add_u32 s{44+nt}, s37, {L.W1C if m == 0 else L.W2C}
                s_movk_i32 s{48+nt}, 5120
                """)
            elif m == 2:
                k(f"""
                s_mul_i32 s38, s36, 9363
                s_lshr_b32 s38, s38, 16
                s_mul_i32 s39, s38, 7
                s_sub_u32 s39, s36, s39
                s_sub_u32 s41, s39, 1
                s_cmp_eq_u32 s39, 0
                s_cselect_b32 s41, 6, s41
                s_and_b32 s40, s38, 1
                s_cmp_eq_u32 s40, 1
                s_cselect_b32 s39, s41, s39
                s_mov_b32 s41, 4
                s_mov_b32 s40, s39
                s_cmp_ge_u32 s39, 4
                s_cselect_b32 s41, 2, s41
                s_add_u32 s42, s39, 76
                s_cmp_ge_u32 s39, 4
                s_cselect_b32 s40, s42, s40
                s_cmp_eq_u32 s39, 6
                s_cselect_b32 s41, 1, s41
                s_cselect_b32 s40, 120, s40
                s_mul_i32 s42, s33, 10
                s_mul_i32 s42, s42, s41
                s_add_u32 s40, s40, s42
                s_mul_i32 s37, s38, 140
                s_add_u32 s37, s37, s40
                s_lshl_b32 s37, s37, 10
                s_add_u32 s{44+nt}, s37, {L.W3C}
                s_lshl_b32 s{48+nt}, s41, 10
                """)
            else:
                k(f"""
                s_mul_i32 s38, s36, 13108
                s_lshr_b32 s38, s38, 16
                s_mul_i32 s39, s38, 5
                s_sub_u32 s39, s36, s39
                s_sub_u32 s41, s39, 1
                s_cmp_eq_u32 s39, 0
                s_cselect_b32 s41, 4, s41
                s_and_b32 s40, s38, 1
                s_cmp_eq_u32 s40, 1
                s_cselect_b32 s39, s41, s39
                s_mul_i32 s40, s33, 21846
                s_lshr_b32 s40, s40, 16
                s_mul_i32 s41, s40, 3
                s_sub_u32 s41, s33, s41
                s_mul_i32 s37, s38, 270
                s_mul_i32 s41, s41, 90
                s_add_u32 s37, s37, s41
                s_mul_i32 s40, s40, 5
                s_add_u32 s37, s37, s40
                s_add_u32 s37, s37, s39
                s_lshl_b32 s37, s37, 10
                s_add_u32 s{44+nt}, s37, {L.W4C}
                s_movk_i32 s{48+nt}, 10240
                """)
        cs = m in (0, 2)
        if cs:
            for nt in range(4): k(f"v_mov_b32 v{12+nt}, 0")
            k("v_mov_b32 v16, 0x3f803f80")
        F = 200
        nld = nks * 4
        def wr(i):
            k(f"s_waitcnt vmcnt({min(63, nld - 4*(i+1) + stores[0])})")
            for j in range(4):
                k(f"ds_write_b128 v5, {vr(R+16*i+4*j,4)} offset:{4608*(i&1) + 1152*j}")
        stores = [0]
        wr(0)
        for i in range(nks):
            k("s_waitcnt lgkmcnt(0)")
            for nt in range(4):
                k(f"ds_read_b64_tr_b16 {vr(F+16*(i&1)+4*nt,2)}, v8 offset:{4608*(i&1) + 32*nt}")
                k(f"ds_read_b64_tr_b16 {vr(F+16*(i&1)+4*nt+2,2)}, v8 offset:{4608*(i&1) + 32*nt + 576}")
            if i + 1 < nks: wr(i + 1)
            k(f"s_waitcnt lgkmcnt({4 if i + 1 < nks else 0})")
            for nt in range(4):
                k(f"buffer_store_dwordx4 {vr(F+16*(i&1)+4*nt,4)}, v9, s[28:31], s{44+nt} offen")
                k(f"s_add_u32 s{44+nt}, s{44+nt}, s{48+nt}")
                stores[0] += 1
                if cs:
                    for d in range(4): k(f"v_dot2_f32_bf16 v{12+nt}, v{F+16*(i&1)+4*nt+d}, v16, v{12+nt}")
        if cs:
            k("s_nop 2")
            for x in gen3.reduce_g_ops([12, 13, 14, 15], 20): k(x)
            k(f"""
            s_mul_i32 s38, s33, {1792*4}
            s_lshl_b32 s39, s35, 8
            s_add_u32 s38, s38, s39
            s_add_u32 s38, s38, {L.CS3P if m == 2 else L.CS1P}
            v_lshlrev_b32 v14+0, 0, v14
            """.replace("v_lshlrev_b32 v14+0, 0, v14", "v_lshlrev_b32 v17, 2, v1"))
            k("s_mov_b64 exec, 0xffff")
            for nt in range(4):
                k(f"buffer_store_dword v{12+nt}, v17, s[28:31], s38 offen offset:{64*nt}")
        k("s_endpgm")
    return k

def build(kerns, path):
    hdr = open(os.path.join(os.path.dirname(os.path.abspath(__file__)), "..", NAME + ".s.ref")).read().split("\n")
    com = [l for l in hdr if l.startswith(";") and "@launch" not in l and "Override launch" not in l and "grid=ceil" not in l]
    s = "\n".join(com) + "\n"
    for k in kerns:
        s += f"; @launch kernel={k.name} grid=({k.grid},1,1) block=({k.block},1,1) lds={k.lds}\n"
    s += '.amdgcn_target "amdgcn-amd-amdhsa--gfx950"\n.text\n'
    for k in kerns:
        s += k.text()
    s += '.section .rodata,"a"\n'
    for k in kerns:
        s += k.kd()
    open(path, "w").write(s)

if __name__ == "__main__":
    out = sys.argv[1] if len(sys.argv) > 1 else os.path.join(os.path.dirname(os.path.abspath(__file__)), "..", NAME + ".s")
    kerns = [gen_p()]
    try:
        import gen3
        kerns += [gen3.gen_chain(Kern, None)]
    except ImportError:
        raise
    build(kerns, out)
    print("wrote", out)
```

```python
import os, struct
import layout as L
SZ_SD = 2048 * 640 * 2
C0 = -2.0 * 0.7978845608028654 * 1.4426950408889634
C1 = C0 * 0.044715
def fhex(x):
    return "0x%08x" % struct.unpack("<I", struct.pack("<f", x))[0]
def vr(a, n): return f"v[{a}:{a+n-1}]" if n > 1 else f"v{a}"
def ar(a, n): return f"a[{a}:{a+n-1}]"
E = lambda n, d: int(os.environ.get(n, d))
SPIN = E("SPIN", 200000)
XSC = os.environ.get("XSC", "sc1")

class VQ:
    def __init__(self, k): self.k, self.q, self.seen = k, [], set()
    def note(self, tag): self.q.append(tag); self.seen.add(tag)
    def issue(self, text, tag): self.k(text); self.q.append(tag); self.seen.add(tag)
    def waittext(self, tag, extra=""):
        assert tag in self.seen, f"wait for {tag} before issue"
        idx = [i for i, t in enumerate(self.q) if t == tag]
        if not idx:
            return f"s_waitcnt {extra}" if extra else None
        n = len(self.q) - 1 - idx[-1]
        self.q = self.q[idx[-1] + 1:] if n <= 63 else self.q[-63:]
        return f"s_waitcnt vmcnt({min(n, 63)}) {extra}"
    def wait(self, tag, extra=""):
        t = self.waittext(tag, extra)
        if t: self.k(t)
    def drain(self, extra=""):
        self.k(f"s_waitcnt vmcnt(0) {extra}"); self.q = []

def il(main, side, frac=1.0):
    out = []; n = max(1, int(len(main) * frac)); m = len(side); si = 0
    for i, x in enumerate(main):
        out.append(x)
        want = min(m, m * (i + 1) // n)
        while si < want:
            out.append(side[si]); si += 1
    out += side[si:]
    return out

def zipl(*ls):
    out = []; ls = [list(l) for l in ls]
    while any(ls):
        for l in ls:
            if l: out.append(l.pop(0))
    return out

def ln_ops(s1, s2, t, n):
    return [f"v_mul_f32 v{s1}, {fhex(1.0/n)}, v{s1}", f"v_mul_f32 v{s2}, {fhex(1.0/n)}, v{s2}",
            f"v_fma_f32 v{s2}, -v{s1}, v{s1}, v{s2}", f"v_max_f32 v{s2}, 0, v{s2}",
            f"v_cvt_pk_bf16_f32 v{t}, v{s1}, v{s2}", f"v_lshlrev_b32 v{s1}, 16, v{t}", f"v_and_b32 v{s2}, 0xffff0000, v{t}",
            f"v_add_f32 v{s2}, {fhex(1e-5)}, v{s2}", f"v_cvt_pk_bf16_f32 v{t}, v{s2}, v{s2}", f"v_lshlrev_b32 v{s2}, 16, v{t}",
            f"v_sqrt_f32 v{s2}, v{s2}", "s_nop 0", f"v_cvt_pk_bf16_f32 v{t}, v{s2}, v{s2}", f"v_lshlrev_b32 v{s2}, 16, v{t}",
            f"v_rcp_f32 v{s2}, v{s2}", "s_nop 0", f"v_mul_f32 v{s1}, v{s1}, v{s2}", f"v_sub_f32 v{s1}, 0, v{s1}"]

def reduce16_ops(regs):
    o = []
    for ci, ctl in enumerate(("quad_perm:[1,0,3,2]", "quad_perm:[2,3,0,1]", "row_half_mirror", "row_mirror")):
        if len(regs) < 3 or ci == 0: o.append("s_nop 1")
        for a in regs: o.append(f"v_add_f32_dpp v{a}, v{a}, v{a} {ctl} row_mask:0xf bank_mask:0xf")
    return o

def reduce_g_ops(regs, t):
    o = []
    for sw in ("v_permlane32_swap_b32", "v_permlane16_swap_b32"):
        for i, a in enumerate(regs): o.append(f"v_mov_b32 v{t+i}, v{a}")
        o.append("s_nop 1")
        for i, a in enumerate(regs): o.append(f"{sw} v{t+i}, v{a}")
        o.append("s_nop 1")
        for i, a in enumerate(regs): o.append(f"v_add_f32 v{a}, v{a}, v{t+i}")
    return o

def gelu_ops(z, t, vc, n):
    o = []
    for i in range(0, n, 2): o.append(f"v_pk_mul_f32 {vr(t+i,2)}, {vr(z+i,2)}, {vr(z+i,2)}")
    for i in range(0, n, 2): o.append(f"v_pk_fma_f32 {vr(t+i,2)}, {vr(t+i,2)}, {vr(vc,2)}, {vr(vc,2)} op_sel:[0,0,1] op_sel_hi:[1,0,1]")
    for i in range(0, n, 2): o.append(f"v_pk_mul_f32 {vr(t+i,2)}, {vr(t+i,2)}, {vr(z+i,2)}")
    for i in range(n): o.append(f"v_exp_f32 v{t+i}, v{t+i}")
    for i in range(0, n, 2): o.append(f"v_pk_add_f32 {vr(t+i,2)}, {vr(t+i,2)}, 1.0 op_sel_hi:[1,0]")
    for i in range(n): o.append(f"v_rcp_f32 v{t+i}, v{t+i}")
    for i in range(0, n, 2): o.append(f"v_pk_mul_f32 {vr(z+i,2)}, {vr(z+i,2)}, {vr(t+i,2)}")
    return o

BC = "op_sel:[0,1,0] op_sel_hi:[1,1,0]"

YL, AT, MODL = 0, 40960, 122880
RSL = 138240
CSL = 139264
EX = 143360
CS3L = 162816
LDS_TOTAL = 163840

G4MAP = """s_and_b32 s57, s26, 7
    s_lshr_b32 s27, s26, 3
    s_and_b32 s58, s2, 7
    s_lshl_b32 s58, s58, 2
    s_add_u32 s58, s58, s27""" if os.environ.get("G4_1D", "1") == "1" else ""
G3MAP = """s_and_b32 s52, s26, 15
    s_lshr_b32 s27, s26, 4
    s_and_b32 s53, s2, 7
    s_lshl_b32 s53, s53, 1
    s_add_u32 s53, s53, s27""" if os.environ.get("G3_1D", "0") == "1" else ""
def gen_chain(Kern, front=None):
    kern = Kern("chain_kernel", 256, 256, LDS_TOTAL, vgpr=256, sgpr=100, agpr=256)
    if front:
        front(kern)
        kern.lab("main_join")
        kern("s_mov_b32 s2, s99")
    class KW:
        def __init__(s): s.clock = 0.0; s.last = 0.0; s.src = None; s.interval = 80; s.busy = False
        def cost(s, ln):
            op = ln.split()[0]
            if op.startswith("v_mfma"): return 16
            if op.startswith(("v_exp", "v_rcp", "v_sqrt", "v_rsq", "v_permlane")): return 8.3
            if op.startswith("ds_write"): return 35
            if op.startswith("ds_"): return 13
            if op.startswith("buffer_"): return 14
            if op.startswith("v_"): return 4.2
            return 4.5
        def __call__(s, txt):
            for ln in txt.strip("\n").split("\n"):
                ln = ln.strip()
                if not ln: continue
                kern(ln)
                if ln.startswith(";"): continue
                s.clock += s.cost(ln)
                if s.src and not s.busy and s.clock - s.last >= s.interval and not ln.startswith(("s_cmp", "s_cbranch", "s_mov_b32 m0", "s_add_u32 m0", "s_mov_b64 exec", "s_mov_b32 exec", "v_cmp", "v_readfirstlane", "s_nop")) and s.safe:
                    s.busy = True
                    if s.src(): s.last = s.clock
                    s.busy = False
        safe = True
        def lab(s, l): kern.lab(l)
        def newlab(s, p="L"): return kern.newlab(p)
        def srd(s, d, b, size, off=0): kern.srd(d, b, size, off)
    k = KW()
    end = "chain_end"
    STOP = os.environ.get("STOP", "")
    vq = VQ(k)
    nst = [0, 0]
    SKIP = 8
    def stamp(grp=None):
        if os.environ.get("PROF3") and nst[0] < 18 and not (os.environ.get("PG3") and nst[1] < SKIP and (nst.__setitem__(1, nst[1] + 1) or True) and nst[1] > 1):
            op = "s_memtime" if os.environ.get("PROF3") == "cyc" else "s_memrealtime"
            k(f"{op} s[{64+2*nst[0]}:{65+2*nst[0]}]"); nst[0] += 1
    def emit(lst):
        for x in lst: k(x)
    class Pend:
        def __init__(s, items=()): s.items = list(items)
        def add(s, items): s.items += list(items)
        def pop(s, n=1):
            if getattr(s, "late", False) and n < 50: return
            for _ in range(n):
                if s.items:
                    t, tg = s.items.pop(0); vq.issue(t, tg)
        def has(s, tag): return any(tg == tag for _, tg in s.items)
    stamp()
    k(f"""
    s_cmp_ge_u32 s2, 256
    s_cbranch_scc1 {end}
    s_load_dwordx2 s[4:5], s[0:1], 0
    s_load_dwordx2 s[6:7], s[0:1], 104
    s_load_dwordx2 s[10:11], s[0:1], 120
    v_lshrrev_b32 v2, 6, v0
    v_and_b32 v1, 63, v0
    v_readfirstlane_b32 s20, v2
    s_and_b32 s25, s2, 7                ; x
    s_lshr_b32 s26, s2, 3               ; idx
    s_lshl_b32 s23, s25, 3
    s_lshr_b32 s27, s26, 2
    s_add_u32 s23, s23, s27
    s_and_b32 s24, s26, 3               ; j
    s_and_b32 s21, s20, 1
    s_lshr_b32 s22, s20, 1              ; kh
    v_lshrrev_b32 v3, 4, v1             ; g  (= r4)
    v_and_b32 v4, 15, v1                ; m  (= c)
    v_lshlrev_b32 v8, 4, v1             ; lane*16
    s_waitcnt lgkmcnt(0)
    """)
    k.srd(28, 10, 0x10000000)
    XR, XF, PM, T, ONE = 32, 72, 152, 192, 224
    SA, NB_ = 216, 220
    HBR = 16
    k(f"""
    s_mul_i32 s25, s20, 10240
    s_add_u32 s10, s25, {YL}
    s_mul_i32 s11, s23, 40960
    s_add_u32 s11, s11, s25
    s_add_u32 s11, s11, {L.YT}
    s_lshl_b32 s12, s20, 10
    s_add_u32 s13, s12, {L.MODF + 7680}
    s_add_u32 s12, s12, {MODL + 7680}
    s_lshl_b32 s14, s21, 10
    s_add_u32 s14, s14, {CSL}
    s_mul_i32 s15, s21, {1792*4}
    s_mul_i32 s25, s24, 640
    s_add_u32 s15, s15, s25
    s_add_u32 s15, s15, {L.CS1P}
    """)
    first = []
    for i in range(10):
        pre = "s_mov_b32 m0, s10\ns_add_u32 s10, s10, 4096\n" if i % 4 == 0 else ""
        post = "\ns_add_u32 s11, s11, 4096" if i % 4 == 3 else ""
        first.append((pre + f"buffer_load_dwordx4 v8, s[28:31], s11 offen offset:{(i%4)*1024} lds" + post, "y"))
    first.append(("s_mov_b32 m0, s12\ns_nop 0\nbuffer_load_dwordx4 v8, s[28:31], s13 offen lds", "y"))
    first.append((f"s_mov_b32 m0, {MODL + 7680 + 4096}\ns_mov_b32 s13, {L.MODF + 7680 + 4096}\nbuffer_load_dwordx4 v8, s[28:31], s13 offen lds", "y"))
    first.append(("s_mov_b32 m0, s14\ns_nop 0\nbuffer_load_dwordx4 v8, s[28:31], s15 offen lds", "y"))
    first = Pend(first)
    if not front: first.pop(100)
    realk = k
    class Cap:
        def __init__(s): s.L = []
        def __call__(s, txt):
            for ln in txt.strip("\n").split("\n"):
                ln = ln.strip()
                if ln: s.L.append(ln)
        def srd(s, d, b, size):
            s(f"s_mov_b32 s{d}, s{b}\ns_mov_b32 s{d+1}, s{b+1}\ns_mov_b32 s{d+2}, {size}\ns_mov_b32 s{d+3}, 0x00020000")
    cap = Cap()
    k = cap
    k.srd(32, 6, SZ_SD)
    vY, vPM, vAW, vA0e, vA0o, vA1e, vA1o = 226, 227, 228, 229, 230, 231, 232
    vCS, vCS4, vRS, vHB = 233, 234, 235, 236
    vHP, vHL, vFP, vFL, vPL = 241, 242, 243, 244, 245
    vEXW, vEXR = 246, 247
    k(f"""
    s_mul_i32 s36, s24, 200
    s_mul_i32 s37, s21, 100
    s_add_u32 s36, s36, s37
    s_mul_i32 s37, s22, 50
    s_add_u32 s36, s36, s37
    s_lshl_b32 s36, s36, 10
    s_add_u32 s37, s36, {L.W2C}
    s_add_u32 s36, s36, {L.W1C}
    v_lshrrev_b32 v2, 1, v3
    s_lshl_b32 s26, s21, 2
    v_add_u32 v2, s26, v2
    v_and_b32 v7, 7, v4
    v_xor_b32 v2, v2, v7
    v_lshlrev_b32 v2, 4, v2
    v_lshl_add_u32 v{vY}, v4, 8, v2
    v_and_b32 v2, 1, v3
    v_lshl_add_u32 v{vY}, v2, 3, v{vY}
    s_mul_i32 s26, s22, 20480
    s_add_u32 s27, s26, {YL}
    v_add_u32 v{vY}, s27, v{vY}
    v_lshlrev_b32 v{vPM}, 5, v4
    v_add_u32 v{vPM}, {MODL}, v{vPM}
    s_lshl_b32 s27, s21, 3
    v_add_u32 v2, s27, v3
    v_xor_b32 v2, v2, v7
    v_lshlrev_b32 v2, 4, v2
    v_and_b32 v7, 3, v4
    v_lshl_add_u32 v2, v7, 8, v2
    v_lshrrev_b32 v7, 2, v4
    v_lshl_add_u32 v2, v7, 10, v2
    s_add_u32 s27, s26, {AT}
    v_add_u32 v{vAW}, s27, v2
    v_xor_b32 v2, v4, v3                 ; m ^ g
    v_lshlrev_b32 v2, 4, v2
    v_lshl_add_u32 v2, v3, 8, v2
    v_xor_b32 v7, 64, v2                 ; odd-ks
    s_mul_i32 s26, s22, 30720
    s_add_u32 s26, s26, {AT}
    s_mul_i32 s27, s22, 10240
    s_sub_u32 s27, {AT + 20480}, s27
    v_add_u32 v{vA0e}, s26, v2
    v_add_u32 v{vA0o}, s26, v7
    v_add_u32 v{vA1e}, s27, v2
    v_add_u32 v{vA1o}, s27, v7
    v_lshlrev_b32 v2, 4, v3
    s_mul_i32 s26, s21, {96*4}
    s_add_u32 s26, s26, {CSL}
    v_add_u32 v{vCS}, s26, v2
    s_mul_i32 s26, s21, {16*4}
    s_add_u32 s26, s26, {CSL + 64*4}
    v_add_u32 v{vCS4}, s26, v2
    s_lshl_b32 s26, s22, 7
    s_add_u32 s26, s26, {RSL}
    v_lshl_add_u32 v{vRS}, v4, 3, s26
    s_mul_i32 s39, s24, 5
    s_mul_i32 s40, s21, 3
    s_add_u32 s40, s40, s39
    s_add_u32 s41, s39, 2                ; ksL = 5j + 2
    v_lshrrev_b32 v12, 1, v3             ; g>>1
    v_and_b32 v13, 1, v3
    v_lshlrev_b32 v13, 3, v13            ; (g&1)*8
    """)
    for t in range(5):
        if t < 4:
            k(f"s_add_u32 s26, s40, {t//2}")
            k(f"v_add_u32 v14, {2*(t&1)}, v12")
        else:
            k(f"s_mov_b32 s26, s41")
            k(f"s_lshl_b32 s27, s21, 1")
            k(f"v_add_u32 v14, s27, v12")
        k(f"""
        s_and_b32 s27, s26, 1
        s_lshl_b32 s27, s27, 2
        v_add_u32 v15, s27, v14
        v_xor_b32 v15, v15, v4
        v_lshlrev_b32 v15, 4, v15
        v_lshl_add_u32 v15, v14, 8, v15
        v_add_u32 v15, v15, v13
        s_mul_i32 s27, s22, 20
        s_add_u32 s27, s27, s26
        s_lshl_b32 s27, s27, 10
        s_add_u32 s27, s27, {AT}
        v_add_u32 v{vHB+t}, s27, v15
        """)
    def fm_store_addr(vP, vL, shift_sgpr, nks, rowbase_s, half_s, kk):
        o = f"v_add_u32 v{vP}, {rowbase_s}, v4\n"
        if shift_sgpr:
            o += f"v_add_u32 v{vP}, {shift_sgpr}, v{vP}\ns_movk_i32 s27, 2048\nv_cmp_gt_u32 s[60:61], s27, v{vP}\n"
        o += f"""
        v_lshrrev_b32 v{vL}, 4, v{vP}
        v_and_b32 v{vP}, 15, v{vP}
        s_mov_b32 s27, {nks*1024}
        v_mul_lo_u32 v{vL}, v{vL}, s27
        v_lshl_add_u32 v{vL}, v{vP}, 4, v{vL}
        v_and_b32 v{vP}, 1, v3
        v_lshlrev_b32 v{vP}, 9, v{vP}
        v_lshrrev_b32 v2, 1, v3
        v_lshl_add_u32 v{vP}, v2, 8, v{vP}
        v_add_u32 v{vP}, v{vP}, v{vL}
        s_lshl_b32 s27, {half_s}, 9
        v_lshl_add_u32 v{vL}, v2, 8, v{vL}
        v_add_u32 v{vL}, s27, v{vL}
        v_and_b32 v2, 1, v3
        v_lshl_add_u32 v{vL}, v2, 3, v{vL}
        """
        kk(o)
    k(f"""
    s_lshr_b32 s26, s24, 1
    s_add_u32 s26, s26, 1
    s_sub_u32 s27, 0, s26
    s_and_b32 s42, s24, 1
    s_cmp_eq_u32 s42, 1
    s_cselect_b32 s42, s27, s26          ; shift: j 0:+1 1:-1 2:+2 3:-2
    s_lshl_b32 s43, s23, 5
    s_lshl_b32 s26, s22, 4
    s_add_u32 s43, s43, s26
    """)
    fm_store_addr(vHP, vHL, "s42", 20, "s43", "s21", k)
    fm_store_addr(vFP, vFL, None, 20, "s43", "s21", k)
    k(f"""
    s_lshl_b32 s44, s40, 10
    s_add_u32 s38, s44, {L.X1}
    s_add_u32 s44, s44, {L.H1S}
    s_lshl_b32 s45, s41, 10
    s_add_u32 s39, s45, {L.X1}           ; X1 leftover
    s_add_u32 s45, s45, {L.H1S}
    s_lshl_b32 s46, s23, 2
    s_add_u32 s46, s46, s24
    s_lshl_b32 s46, s46, 7
    s_add_u32 s49, s46, {L.F2}           ; F2 flag
    s_add_u32 s46, s46, {L.F1}           ; F1 flag
    ; G2 poll lanes: 0:(rb-1,2kh) 1:(rb,2kh) 2:(rb,2kh+1) 3:(rb+1,2kh+1)
    v_add_u32 v7, 1, v1
    v_lshrrev_b32 v7, 1, v7
    v_add_u32 v7, s23, v7
    v_subrev_u32 v7, 1, v7
    v_max_i32 v7, 0, v7
    v_min_i32 v7, 63, v7
    v_lshrrev_b32 v2, 1, v1
    s_lshl_b32 s26, s22, 1
    v_add_u32 v2, s26, v2
    v_lshl_add_u32 v7, v7, 2, v2
    v_lshlrev_b32 v{vPL}, 7, v7
    ; G2 X bases
    s_lshl_b32 s26, s23, 1
    s_add_u32 s27, s26, s22
    s_mul_i32 s27, s27, 20
    s_mul_i32 s3, s22, 10
    s_add_u32 s27, s27, s3
    s_lshl_b32 s27, s27, 10
    s_add_u32 s50, s27, {L.H1S}
    s_add_u32 s27, s26, 1
    s_sub_u32 s27, s27, s22
    s_mul_i32 s27, s27, 20
    s_add_u32 s27, s27, s3
    s_lshl_b32 s27, s27, 10
    s_add_u32 s51, s27, {L.H1S}
    s_mul_i32 s26, s20, 5120
    s_add_u32 s26, s26, {EX}
    v_add_u32 v{vEXW}, s26, v8
    s_xor_b32 s27, s20, 2
    s_mul_i32 s27, s27, 5120
    s_add_u32 s27, s27, {EX}
    v_add_u32 v{vEXR}, s27, v8
    ; G3 / G4 tile ids (2D XCD partition: XCD pair shares 512 rows, each XCD takes half of the columns)
    s_lshr_b32 s26, s2, 3                ; idx
    s_and_b32 s3, s2, 7                  ; x
    s_and_b32 s4, s3, 1                  ; x&1
    s_lshr_b32 s3, s3, 1                 ; x>>1
    s_and_b32 s52, s26, 7
    s_lshl_b32 s27, s4, 3
    s_add_u32 s52, s52, s27              ; j16 = 8(x&1) + (idx&7)
    s_lshr_b32 s27, s26, 3
    s_lshl_b32 s53, s3, 2
    s_add_u32 s53, s53, s27
    s_and_b32 s57, s26, 3
    s_lshl_b32 s27, s4, 2
    s_add_u32 s57, s57, s27              ; j8 = 4(x&1) + (idx&3)
    s_lshr_b32 s27, s26, 2
    s_lshl_b32 s58, s3, 3
    s_add_u32 s58, s58, s27
    {G4MAP}
    {G3MAP}
    s_mul_i32 s54, s52, {140*1024}
    s_add_u32 s54, s54, {L.W3C}
    s_mul_i32 s59, s57, {270*1024}
    s_add_u32 s59, s59, {L.W4C}
    v_mov_b32 v{ONE}, 0x3f803f80
    """)
    for s in range(2):
        for b in (SA, NB_):
            k(f"v_mov_b32 v{b+2*s}, 0"); k(f"v_mov_b32 v{b+2*s+1}, 0")
    k = realk
    capL = cap.L
    def tile_dma(sbase, f0, n, s0, tag):
        q = (n + 3) // 4
        o = []
        for i in range(q):
            pre = ""
            if i == 0:
                pre = f"s_mul_i32 s25, s20, {q}\n" + (f"s_min_u32 s25, s25, {n-q}\n" if n % 4 else "") + f"s_lshl_b32 s25, s25, 10\ns_add_u32 s62, s25, {s0*1024}\ns_add_u32 s63, s25, s{sbase}\ns_add_u32 s63, s63, {f0*1024}\ns_mov_b32 m0, s62\n"
            elif i % 4 == 0:
                pre = "s_add_u32 s62, s62, 4096\ns_add_u32 s63, s63, 4096\ns_mov_b32 m0, s62\n"
            o.append((pre + f"buffer_load_dwordx4 v8, s[28:31], s63 offen offset:{(i%4)*1024} lds", tag))
        return o
    w2reg = lambda f: 200 + 4*f if f < 14 else 4*(f - 14)
    def wlist(sreg, tagp, reg=lambda f: 4*f):
        o = []
        for f in range(50):
            pre = f"s_add_u32 s{sreg}, s{sreg}, 4096\n" if (f and f % 4 == 0) else ""
            o.append((pre + f"buffer_load_dwordx4 {ar(reg(f),4)}, v8, s[28:31], s{sreg} offen offset:{(f%4)*1024}", f"{tagp}{f//5}"))
        return o
    w1 = Pend(wlist(36, "w1_"))
    w2 = Pend(wlist(37, "w2_", w2reg))
    w2l = w2.items
    w1.add(w2l[:14]); w2.items = w2l[14:]
    ksdone = [0]; nw2 = [14]
    def g1src():
        if w1.items:
            w1.pop(1); return True
        f = nw2[0]
        if f < 50 and (f - 14) // 5 < ksdone[0]:
            w2.pop(1); nw2[0] += 1; return True
        return False
    if front:
        for x in capL: k(x)
        lp = k.newlab("cp"); ld = k.newlab("cd"); lw = k.newlab("cw")
        k(f"""
        s_cmp_lg_u32 s20, 0
        s_cbranch_scc1 {lw}
        v_lshlrev_b32 v7, 7, v1
        v_mov_b32 v9, 10
        v_mov_b32 v10, 46
        v_cmp_gt_u32 vcc, 16, v1
        s_mov_b32 s47, 0
        s_mov_b32 s48, {L.FC}
        s_nop 0
        v_cndmask_b32 v9, v10, v9, vcc
        s_mov_b64 exec, 0xfffff
        """)
        ls = k.newlab("cs")
        k.lab(lp)
        k(f"""
        buffer_load_dword v2, v7, s[28:31], s48 offen sc1
        s_add_u32 s47, s47, 1
        s_waitcnt vmcnt(0)
        v_cmp_ne_u32 vcc, v9, v2
        s_cmp_ge_u32 s47, {SPIN}
        s_cbranch_scc1 {ld}
        s_cbranch_vccz {ld}
        v_cmp_ne_u32 vcc, 0, v2
        s_nop 1
        s_and_b32 s26, vcc_lo, 0xffff
        s_cmp_lg_u32 s26, 0
        s_cbranch_scc1 {ls}
        s_sleep {E("SLPL", 16)}
        """)
        k.lab(ls)
        k(f"""
        s_sleep {E("SLPS", 2)}
        s_branch {lp}
        """)
        k.lab(ld)
        k("s_mov_b64 exec, -1")
        k.lab(lw)
        k("s_barrier")
        stamp()
        first.pop(100)
        for _ in range(E("W1B", 12)): g1src()
        k.interval = E("IV1", 70); k.last = k.clock; k.src = g1src
    else:
        k.interval = E("IV1", 70); k.last = k.clock; k.src = g1src
        for x in capL: k(x)
        for _ in range(E("W1B", 2)): g1src()
    vq.wait("y")
    k("s_barrier")
    stamp()
    k(f"v_xor_b32 v12, 32, v{vY}")
    def rd_x(c_):
        t, s_ = c_ // 2, c_ % 2
        va = vY if s_ == 0 else 12
        return [f"ds_read_b64 {vr(XR+4*c_,2)}, v{va} offset:{t*4096}", f"ds_read_b64 {vr(XR+4*c_+2,2)}, v{va} offset:{t*4096+128}"]
    emit(rd_x(0) + rd_x(1) + rd_x(2))
    for c_ in range(10):
        s_ = c_ % 2
        nxt = rd_x(c_ + 3) if c_ + 3 < 10 else []
        k(f"s_waitcnt lgkmcnt({min(4, 2*(9-c_))})")
        v = []
        for d in range(4):
            x = XR + 4*c_ + d
            v.append(f"v_dot2_f32_bf16 v{NB_+2*s_}, v{x}, v{ONE}, v{NB_+2*s_}")
            v.append(f"v_lshlrev_b32 v{XF+8*c_+2*d}, 16, v{x}")
            v.append(f"v_dot2_f32_bf16 v{NB_+2*s_+1}, v{x}, v{x}, v{NB_+2*s_+1}")
            v.append(f"v_and_b32 v{XF+8*c_+2*d+1}, 0xffff0000, v{x}")
        emit(il(v, nxt, 0.6))
    k("s_nop 2")
    emit(reduce16_ops([NB_, NB_+1, NB_+2, NB_+3]))
    emit(zipl(ln_ops(NB_, NB_+1, T, 640), ln_ops(NB_+2, NB_+3, T+1, 640)))
    stamp()
    def rd_c(t):
        b = t & 1
        o = []
        for vi, vec in enumerate((4, 3)):
            o.append(f"ds_read_b128 {vr(PM+16*b+8*vi,4)}, v{vPM} offset:{vec*2560+t*512}")
            o.append(f"ds_read_b128 {vr(PM+16*b+8*vi+4,4)}, v{vPM} offset:{vec*2560+t*512+16}")
        return o
    for s in range(2):
        k(f"v_mov_b32 v{SA+2*s}, 0"); k(f"v_mov_b32 v{SA+2*s+1}, 0")
    k(f"v_xor_b32 v12, 64, v{vAW}")
    emit(rd_c(0))
    for c_ in range(10):
        t, s = c_ // 2, c_ % 2
        nxt = rd_c(t + 1) if (s == 0 and t < 4) else []
        if s == 0: k(f"s_waitcnt lgkmcnt({1 if c_ else 0})")
        M = PM + 16*(t & 1); S_ = SA + 2*s; N_ = NB_ + 2*s
        X_ = XF + 8*c_; R_ = XR + 4*c_
        v = []
        for d in range(4): v.append(f"v_pk_fma_f32 {vr(X_+2*d,2)}, {vr(X_+2*d,2)}, {vr(N_,2)}, {vr(N_,2)} {BC}")
        for d in range(4): v.append(f"v_pk_fma_f32 {vr(X_+2*d,2)}, {vr(X_+2*d,2)}, {vr(M+2*d,2)}, {vr(M+8+2*d,2)}")
        for d in range(4): v.append(f"v_cvt_pk_bf16_f32 v{R_+d}, v{X_+2*d}, v{X_+2*d+1}")
        for d in range(4):
            v.append(f"v_dot2_f32_bf16 v{S_}, v{R_+d}, v{ONE}, v{S_}")
            v.append(f"v_dot2_f32_bf16 v{S_+1}, v{R_+d}, v{R_+d}, v{S_+1}")
        emit(il(v, nxt, 0.6))
        k(f"ds_write_b128 v{vAW if s == 0 else 12}, {vr(R_,4)} offset:{4096*t}")
    while w1.has("w1_9"): w1.pop(1)
    k("""
    s_waitcnt lgkmcnt(0)
    s_barrier
    """)
    ln3 = [x for x in reduce16_ops([SA, SA+1, SA+2, SA+3]) + zipl(ln_ops(SA, SA+1, T, 640), ln_ops(SA+2, SA+3, T+1, 640)) if not x.startswith("s_nop")]
    ln3 += [f"s_lshl_b32 s26, s20, 6", f"v_lshl_add_u32 v2, v3, 3, s26", f"v_add_u32 v2, {RSL}, v2", f"ds_write_b64 v2, {vr(SA,2)}", f"ds_write_b64 v2, {vr(SA+2,2)} offset:32"]
    stamp()
    ACC, AF, RCV = 32, 72, 88
    CS, CS2, RS, GT, VC, PK = 112, 132, 152, 160, 30, 180
    def aread(ks):
        b = AF + 8 * (ks & 1)
        va, vb = (vA0e, vA1e) if ks % 2 == 0 else (vA0o, vA1o)
        return [f"ds_read_b128 {vr(b,4)}, v{va} offset:{ks*1024}", f"ds_read_b128 {vr(b+4,4)}, v{vb} offset:{ks*1024}"]
    side = []
    for t in range(4):
        side.append(f"ds_read_b128 {vr(CS+4*t,4)}, v{vCS} offset:{64*t}")
        side.append(f"ds_read_b128 {vr(CS2+4*t,4)}, v{vCS} offset:{64*t+1024}")
    side.append(f"ds_read_b128 {vr(CS+16,4)}, v{vCS4}")
    side.append(f"ds_read_b128 {vr(CS2+16,4)}, v{vCS4} offset:1024")
    for t in range(5): side.append(f"ds_read_b64 {vr(HBR+2*t,2)}, v{vHB+t}")
    emit(aread(0))
    for ks in range(10):
        ksdone[0] = ks
        vq.wait(f"w1_{ks}", "lgkmcnt(0)")
        b = AF + 8 * (ks & 1)
        mf = []
        for t in range(5):
            for rt in range(2):
                a = ACC + (rt * 5 + t) * 4
                c = "0" if ks == 0 else vr(a, 4)
                mf.append(f"v_mfma_f32_16x16x32_bf16 {vr(a,4)}, {ar((ks*5+t)*4,4)}, {vr(b+4*rt,4)}, {c}")
        ds = aread(ks + 1) if ks < 9 else []
        ds += side[:2]; side = side[2:]
        for i, m_ in enumerate(mf):
            k(m_)
            if i % 2 == 1 and i < 8 and ds: k(ds.pop(0))
            elif ln3 and ks >= 1: k(ln3.pop(0))
        emit(ds)
    assert not side
    emit(ln3)
    stamp()
    def exchange():
        k("s_nop 4")
        for t in range(5):
            k(f"ds_write_b128 v{vEXW}, {vr(ACC+(5+t)*4,4)} offset:{1024*t}")
    def exchange2():
        k("s_waitcnt lgkmcnt(0)")
        k("s_barrier")
        for t in range(5):
            k(f"ds_read_b128 {vr(RCV+4*t,4)}, v{vEXR} offset:{1024*t}")
    ksdone[0] = 10
    k("s_waitcnt lgkmcnt(0)")
    exchange()
    for t in range(5):
        for i in (0, 2):
            k(f"v_pk_add_f32 {vr(CS+4*t+i,2)}, {vr(CS+4*t+i,2)}, {vr(CS2+4*t+i,2)}")
    k(f"v_mov_b32 v{VC}, {fhex(C1)}")
    k(f"v_mov_b32 v{VC+1}, {fhex(C0)}")
    k("s_waitcnt lgkmcnt(0)")
    k("s_barrier")
    k(f"ds_read_b64 {vr(RS,2)}, v{vRS}")
    for t in range(5):
        k(f"ds_read_b128 {vr(RCV+4*t,4)}, v{vEXR} offset:{1024*t}")
    k("s_waitcnt lgkmcnt(5)")
    for t in range(5):
        for i in (0, 2): k(f"v_pk_mul_f32 {vr(CS+4*t+i,2)}, {vr(CS+4*t+i,2)}, {vr(RS,2)} op_sel_hi:[1,0]")
    for t in range(5):
        z = ACC + 4*t
        k(f"s_waitcnt lgkmcnt({4-t})")
        for i in (0, 2): k(f"v_pk_add_f32 {vr(z+i,2)}, {vr(z+i,2)}, {vr(RCV+4*t+i,2)}")
    for t in range(5):
        z = ACC + 4*t
        for i in (0, 2): k(f"v_pk_fma_f32 {vr(z+i,2)}, {vr(z+i,2)}, {vr(RS,2)}, {vr(CS+4*t+i,2)} op_sel:[0,1,0] op_sel_hi:[1,1,1]")
    if os.environ.get("VERB"): print("W2 left at gelu start", 50 - nw2[0], "w1 left", len(w1.items))
    gl = gelu_ops(ACC, 192, VC, 20)
    cut = int(len(gl) * float(os.environ.get("G1CUT", "1.0")))
    emit(gl[:cut])
    k.src = None
    emit(gl[cut:])
    if os.environ.get("VERB"): print("W2 left after gelu", 50 - nw2[0])
    for t in range(5):
        k(f"v_cvt_pk_bf16_f32 v{PK+2*t}, v{ACC+4*t}, v{ACC+4*t+1}")
        k(f"v_cvt_pk_bf16_f32 v{PK+2*t+1}, v{ACC+4*t+2}, v{ACC+4*t+3}")
    def pair_swaps(pk, npairs):
        k("s_nop 1")
        for p in range(npairs):
            k(f"v_permlane16_swap_b32 v{pk+4*p}, v{pk+4*p+2}")
            k(f"v_permlane16_swap_b32 v{pk+4*p+1}, v{pk+4*p+3}")
    pair_swaps(PK, 2)
    k("s_mov_b64 exec, s[60:61]")
    vq.issue(f"buffer_store_dwordx4 {vr(PK,4)}, v{vHP}, s[28:31], s44 offen", "st")
    vq.issue(f"buffer_store_dwordx4 {vr(PK+4,4)}, v{vHP}, s[28:31], s44 offen offset:1024", "st")
    vq.issue(f"buffer_store_dwordx2 {vr(PK+8,2)}, v{vHL}, s[28:31], s45 offen", "st")
    k("s_mov_b64 exec, -1")
    def signal(sreg):
        vq.drain()
        k("s_barrier")
        l = k.newlab("sig")
        k(f"""
        s_cmp_lg_u32 s20, 0
        s_cbranch_scc1 {l}
        v_mov_b32 v2, 1
        v_mov_b32 v7, 0
        s_mov_b64 exec, 1
        buffer_store_dword v2, v7, s[28:31], s{sreg} offen
        s_mov_b64 exec, -1
        """)
        k.lab(l)
    stamp()
    signal(46)
    stamp()
    def finish():
        if os.environ.get("PROF3"):
            n = nst[0]
            k(f"""
            s_waitcnt vmcnt(0) lgkmcnt(0)
            s_lshl_b32 s26, s2, 2
            s_add_u32 s26, s26, s20
            s_lshl_b32 s26, s26, 7
            s_add_u32 s26, s26, {L.PROFOFF + 0x100000}
            v_mov_b32 v7, 0
            s_mov_b64 exec, 1
            """)
            for i in range(n):
                k(f"v_mov_b32 v2, s{64+2*i}")
                k(f"buffer_store_dword v2, v7, s[28:31], s26 offen offset:{4*i}")
                k("s_nop 0")
        k("s_endpgm")
    if STOP == "G1":
        finish(); k.lab(end); k("s_endpgm"); return kern

    def poll(vfl, nl, sbase):
        l = k.newlab("poll"); d = k.newlab("polld")
        k(f"""
        s_mov_b32 s47, 0
        s_mov_b64 exec, {(1 << nl) - 1}
        """)
        if E("POLL2", 0):
            k(f"buffer_load_dword v248, v{vfl}, s[28:31], {sbase} offen sc1")
            k(f"s_nop 15")
            k.lab(l)
            k(f"""
            buffer_load_dword v249, v{vfl}, s[28:31], {sbase} offen sc1
            s_add_u32 s47, s47, 1
            s_waitcnt vmcnt(1)
            v_cmp_ne_u32 vcc, 1, v248
            s_cmp_ge_u32 s47, {SPIN}
            s_cbranch_scc1 {d}
            s_cbranch_vccz {d}
            buffer_load_dword v248, v{vfl}, s[28:31], {sbase} offen sc1
            s_waitcnt vmcnt(1)
            v_cmp_ne_u32 vcc, 1, v249
            s_cbranch_vccnz {l}
            """)
            k.lab(d)
            k("s_mov_b64 exec, -1")
            vq.q = ["pollx"]
            return
        k.lab(l)
        k(f"""
        buffer_load_dword v2, v{vfl}, s[28:31], {sbase} offen sc1
        s_add_u32 s47, s47, 1
        s_waitcnt vmcnt(0)
        v_cmp_ne_u32 vcc, 1, v2
        s_cmp_ge_u32 s47, {SPIN}
        s_cbranch_scc1 {d}
        s_cbranch_vccnz {l}
        """)
        k.lab(d)
        k("s_mov_b64 exec, -1")
        vq.q = []

    w1.pop(100); w2.pop(100)
    NW3E = E("NW3E", 40)
    w3 = Pend(tile_dma(54, 0, NW3E, 0, "w3") if NW3E else [])
    w3.pop(100)
    vP3, vL3, vST, vF3 = 226, 227, 228, 229
    k(f"""
    s_lshl_b32 s26, s53, 3
    s_lshl_b32 s27, s20, 1
    s_add_u32 s56, s26, s27              ; G3 row tile of rt'=0 : 8rb128 + 2w
    s_mul_i32 s6, s56, 20480
    s_add_u32 s6, s6, {L.X1}             ; G3 X base rt0
    s_add_u32 s7, s6, 20480
    s_lshl_b32 s26, s53, 2
    s_add_u32 s26, s26, s20
    s_lshl_b32 s26, s26, 9
    s_add_u32 s8, s26, {L.F2}            ; G3 poll base
    v_lshlrev_b32 v{vST}, 3, v4
    v_lshl_add_u32 v{vST}, v3, 8, v{vST} ; g*256 + m*8
    s_lshl_b32 s9, s56, 10
    s_add_u32 s9, s9, {L.ST2}            ; G3 stats base
    s_and_b32 s42, s52, 1
    s_mul_i32 s12, s52, 7
    s_add_u32 s13, s12, 1
    s_lshr_b32 s13, s13, 1               ; ksP = (7j+1)>>1
    s_add_u32 s26, s13, 3
    s_sub_u32 s27, s13, 1
    s_cmp_eq_u32 s42, 1
    s_cselect_b32 s12, s27, s26          ; ksL
    s_lshl_b32 s13, s13, 10
    s_add_u32 s13, s13, {L.H3}
    s_lshl_b32 s12, s12, 10
    s_add_u32 s12, s12, {L.H3}
    s_lshl_b32 s14, s56, 4
    s_lshl_b32 s15, s53, 4
    s_add_u32 s15, s15, s52
    s_lshl_b32 s15, s15, 2
    s_add_u32 s15, s15, s20
    s_lshl_b32 s15, s15, 7
    s_add_u32 s15, s15, {L.F3}           ; F3 flag
    ; ST2 store offset for G2: [rowtile][part = 2j+nh][m][2]
    s_lshr_b32 s26, s43, 4
    s_lshl_b32 s26, s26, 3
    s_lshl_b32 s27, s24, 1
    s_add_u32 s26, s26, s27
    s_add_u32 s26, s26, s21
    s_lshl_b32 s26, s26, 7
    s_add_u32 s19, s26, {L.ST2}
    """)
    fm_store_addr(vP3, vL3, None, 54, "s14", "s42", k)
    k(f"s_mov_b32 s48, {L.F1}")
    poll(vPL, 4, "s48")
    stamp()
    XV = 72
    def xload(reg, ks, s0, tagp, agpr):
        o = []
        for rt in range(2):
            pre = f"s_add_u32 s{s0}, s{s0}, 4096\ns_add_u32 s{s0+1}, s{s0+1}, 4096\n" if (rt == 0 and ks and ks % 4 == 0) else ""
            r = reg + (ks*2+rt)*4
            o.append((pre + f"buffer_load_dwordx4 {ar(r,4) if agpr else vr(r,4)}, v8, s[28:31], s{s0+rt} offen offset:{(ks%4)*1024} {XSC}", f"{tagp}{ks}"))
        return o
    px = Pend()
    for ks in range(10): px.add(xload(XV, ks, 50, "x2_", False))
    NPRE = E("NPRE", 5)
    px.pop(2 * NPRE)
    w3 = Pend(tile_dma(54, NW3E, 120 - NW3E, NW3E, "w3") + tile_dma(54, 120, 20, 120, "w3"))
    for ks in range(10):
        vq.wait(f"x2_{ks}")
        i = 0
        for t in range(5):
            for rt in range(2):
                a = ACC + (rt * 5 + t) * 4
                c = "0" if ks == 0 else vr(a, 4)
                k(f"v_mfma_f32_16x16x32_bf16 {vr(a,4)}, {ar(w2reg(ks*5+t),4)}, {vr(XV+(ks*2+rt)*4,4)}, {c}")
            if px.items:
                if t in (0, 2): px.pop(1)
            elif t in ((0, 1, 3) if NW3E == 40 else (0, 1, 2, 3)): w3.pop(1)
    stamp()
    exchange()
    for t in range(5):
        k(f"v_lshlrev_b32 v{CS+4*t}, 16, v{HBR+2*t}")
        k(f"v_and_b32 v{CS+4*t+1}, 0xffff0000, v{HBR+2*t}")
        k(f"v_lshlrev_b32 v{CS+4*t+2}, 16, v{HBR+2*t+1}")
        k(f"v_and_b32 v{CS+4*t+3}, 0xffff0000, v{HBR+2*t+1}")
    for t in range(5):
        for i in (0, 2): k(f"v_pk_add_f32 {vr(ACC+4*t+i,2)}, {vr(ACC+4*t+i,2)}, {vr(CS+4*t+i,2)}")
    k("v_mov_b32 v28, 0")
    k("v_mov_b32 v29, 0")
    w3.pop(100)
    exchange2()
    for t in range(5):
        z = ACC + 4*t
        k(f"s_waitcnt lgkmcnt({4-t})")
        for i in (0, 2): k(f"v_pk_add_f32 {vr(z+i,2)}, {vr(z+i,2)}, {vr(RCV+4*t+i,2)}")
        k(f"v_cvt_pk_bf16_f32 v{PK+2*t}, v{z}, v{z+1}")
        k(f"v_cvt_pk_bf16_f32 v{PK+2*t+1}, v{z+2}, v{z+3}")
    for r in range(10):
        k(f"v_dot2_f32_bf16 v28, v{PK+r}, v{ONE}, v28")
        k(f"v_dot2_f32_bf16 v29, v{PK+r}, v{PK+r}, v29")
    pair_swaps(PK, 2)
    vq.issue(f"buffer_store_dwordx4 {vr(PK,4)}, v{vFP}, s[28:31], s38 offen", "st")
    vq.issue(f"buffer_store_dwordx4 {vr(PK+4,4)}, v{vFP}, s[28:31], s38 offen offset:1024", "st")
    vq.issue(f"buffer_store_dwordx2 {vr(PK+8,2)}, v{vFL}, s[28:31], s39 offen", "st")
    emit(reduce_g_ops([28, 29], GT))
    k("v_lshlrev_b32 v2, 3, v4")
    k("s_mov_b64 exec, 0xffff")
    vq.issue("buffer_store_dwordx2 v[28:29], v2, s[28:31], s19 offen", "st")
    k("s_mov_b64 exec, -1")
    w3.pop(100)
    stamp()
    signal(49)
    stamp()
    if STOP == "G2":
        finish(); k.lab(end); k("s_endpgm"); return kern

    DST = E("DST", 19)
    def step_slot(st):
        if st == 0 or st == 16: return 140
        if 1 <= st <= 8: return (st - 1) * 10
        if st == 9: return 150
        if st in (10, 11): return 120 + (st - 10) * 10
        if 12 <= st <= 15: return 80 + (st - 12) * 10
        if 17 <= st <= 24: return (st - 17) * 10
        raise Exception(st)
    w4_issue = lambda f0, n, s0, tag="w4": tile_dma(59, f0, n, s0, tag)
    w4a = Pend(w4_issue(0, 10, 140))
    CS3, CS3b = 88, 116
    k(f"""
    v_and_b32 v2, 31, v1
    v_lshlrev_b32 v2, 4, v2
    v_lshrrev_b32 v7, 5, v1
    v_mul_u32_u24 v7, {1792*4}, v7
    v_add_u32 v2, v2, v7
    s_mul_i32 s26, s52, 448
    s_add_u32 s26, s26, {L.CS3P}
    s_mov_b32 m0, {CS3L}
    s_nop 0
    """)
    vq.issue("buffer_load_dwordx4 v2, s[28:31], s26 offen lds", "cs3")
    vX4, vO4P, vO4L, vGB, vP4, vXA = 230, 231, 232, 233, 234, 235
    k(f"""
    s_and_b32 s36, s57, 1
    s_lshl_b32 s43, s58, 6
    s_lshl_b32 s26, s21, 5
    s_add_u32 s43, s43, s26
    s_lshl_b32 s26, s22, 4
    s_add_u32 s43, s43, s26
    s_mul_i32 s40, s57, 5
    s_add_u32 s41, s40, 1
    s_lshr_b32 s41, s41, 1               ; ksP
    s_add_u32 s26, s41, 2
    s_sub_u32 s27, s41, 1
    s_cmp_eq_u32 s36, 1
    s_cselect_b32 s40, s27, s26          ; ksL
    s_lshl_b32 s44, s41, 10
    s_lshl_b32 s45, s40, 10
    s_lshl_b32 s26, s36, 9
    s_add_u32 s45, s45, s26
    s_lshr_b32 s26, s58, 1
    s_lshl_b32 s26, s26, 4
    s_mul_i32 s27, s22, 7
    s_add_u32 s26, s26, s27
    s_lshl_b32 s26, s26, 2
    s_and_b32 s27, s58, 1
    s_lshl_b32 s27, s27, 1
    s_add_u32 s26, s26, s27
    s_add_u32 s26, s26, s21
    s_lshl_b32 s26, s26, 7
    s_add_u32 s48, s26, {L.F3}
    v_lshlrev_b32 v{vP4}, 9, v1
    s_lshl_b32 s26, s58, 2
    s_lshl_b32 s27, s21, 1
    s_add_u32 s26, s26, s27
    s_add_u32 s27, s26, s22
    s_mul_i32 s27, s27, 54
    s_mul_i32 s39, s22, 27
    s_add_u32 s27, s27, s39
    s_lshl_b32 s27, s27, 10
    s_add_u32 s50, s27, {L.H3}
    s_add_u32 s27, s26, 1
    s_sub_u32 s27, s27, s22
    s_mul_i32 s27, s27, 54
    s_add_u32 s27, s27, s39
    s_lshl_b32 s27, s27, 10
    s_add_u32 s51, s27, {L.H3}
    v_add_u32 v9, s43, v4
    v_lshrrev_b32 v11, 4, v9
    v_and_b32 v10, 15, v9
    v_mul_u32_u24 v11, 20480, v11
    v_lshl_add_u32 v11, v10, 4, v11
    v_lshrrev_b32 v2, 1, v3
    v_lshl_add_u32 v11, v2, 8, v11
    v_and_b32 v7, 1, v3
    v_lshl_add_u32 v{vX4}, v7, 3, v11
    v_mul_u32_u24 v9, 1280, v9
    v_lshlrev_b32 v7, 5, v7
    v_lshl_add_u32 v7, v2, 4, v7         ; (g&1)*32 + (g>>1)*16
    v_add_u32 v{vO4P}, v9, v7
    v_lshl_add_u32 v{vO4L}, v3, 3, v9
    v_lshlrev_b32 v{vGB}, 4, v3
    v_add_u32 v9, s43, v4
    v_lshrrev_b32 v10, 4, v9
    v_mul_u32_u24 v10, 20480, v10
    v_and_b32 v11, 1, v9
    v_lshl_add_u32 v10, v11, 3, v10
    v_lshl_add_u32 v10, v3, 7, v10       ; + g*128
    v_bfe_u32 v11, v9, 1, 3
    s_mul_i32 s26, s57, 20
    s_lshl_b32 s27, s36, 2
    s_add_u32 s27, s27, s26
    s_mul_i32 s3, s36, 16
    s_sub_u32 s3, 16, s3
    s_add_u32 s3, s3, s26""")
    for t in range(5):
        k(f"""
        {"s_add_u32 s4, s27, %d" % (4*t) if t < 4 else "s_mov_b32 s4, s3"}
        v_add_u32 v2, s4, v3
        v_bfe_u32 v2, v2, 1, 3
        v_xor_b32 v2, v2, v11
        v_lshl_add_u32 v2, v2, 4, v10
        s_lshl_b32 s4, s4, 7
        v_add_u32 v{vXA+t}, s4, v2
        """)
    k(f"""
    s_mul_i32 s37, s57, 320
    s_add_u32 s37, s37, {L.MODF + 5*2560}
    s_mul_i32 s26, s36, 256
    s_sub_u32 s26, 256, s26
    s_add_u32 s38, s37, s26              ; gb t=4
    s_lshl_b32 s26, s36, 6
    s_add_u32 s37, s37, s26              ; gb t<4
    s_mul_i32 s26, s57, 160
    s_lshl_b32 s27, s36, 5
    s_add_u32 s46, s26, s27
    s_mul_i32 s27, s36, 128
    s_sub_u32 s27, 128, s27
    s_add_u32 s49, s26, s27              ; leftover
    """)
    vq.wait("cs3")
    k(f"""
    s_lshl_b32 s26, s42, 6
    v_lshlrev_b32 v2, 4, v3
    v_add_u32 v7, {CS3L}, v2
    v_add_u32 v2, s26, v7
    s_mul_i32 s26, s42, {6*64}
    s_sub_u32 s26, {6*64}, s26
    v_add_u32 v7, s26, v7
    """)
    for t in range(6):
        k(f"ds_read_b128 {vr(CS3+4*t,4)}, v2 offset:{64*t}")
        k(f"ds_read_b128 {vr(CS3b+4*t,4)}, v2 offset:{64*t+512}")
    k(f"ds_read_b128 {vr(CS3+24,4)}, v7")
    k(f"ds_read_b128 {vr(CS3b+24,4)}, v7 offset:512")
    k("s_waitcnt lgkmcnt(0)")
    for t in range(7):
        for i in (0, 2):
            k(f"v_pk_add_f32 {vr(CS3+4*t+i,2)}, {vr(CS3+4*t+i,2)}, {vr(CS3b+4*t+i,2)}")
    XAR, GB = 116, 204
    resE = []
    for t in range(5):
        resE.append((f"s_mov_b32 s26, {L.YT}\nbuffer_load_dwordx2 {vr(XAR+2*t,2)}, v{vXA+t}, s[28:31], s26 offen", "resE"))
    for t in range(4):
        resE.append((f"buffer_load_dwordx4 {vr(GB+4*t,4)}, v{vGB}, s[28:31], s37 offen offset:{64*t}", "resE"))
    resE.append((f"buffer_load_dwordx4 {vr(GB+16,4)}, v{vGB}, s[28:31], s38 offen", "resE"))
    ACC3, WB, NWB = 32, 160, 12
    k(f"v_mov_b32 v12, v8")
    k(f"v_add_u32 v13, 0x10000, v8")
    k(f"v_add_u32 v14, 0x20000, v8")
    def wread(slot, buf, base=WB):
        o = slot * 1024
        return f"ds_read_b128 {ar(base+4*buf,4)}, v{12 + (o >> 16)} offset:{o & 0xffff}"
    uses = [(0, ks, t) for ks in range(20) for t in (0, 1, 2, 3, 6)] + [(1, ks, t) for ks in range(20) for t in (4, 5)]
    def slot3(u):
        gi, ks, t = u
        return ks * 4 + t if t < 4 else (80 + ks * 2 + t - 4 if t < 6 else 120 + ks)
    for i in range(NWB - 1): k(wread(slot3(uses[i]), i % NWB))
    k("v_lshlrev_b32 v7, 7, v1")
    poll(7, 4, "s8")
    stamp()
    px = Pend()
    for ks in range(20): px.add(xload(0, ks, 6, "x3_", True))
    STR = 16
    for rt in range(2):
        px.add([(f"buffer_load_dwordx2 {vr(STR+4*rt,2)}, v{vST}, s[28:31], s9 offen offset:{1024*rt} sc1", "st2"),
                (f"buffer_load_dwordx2 {vr(STR+4*rt+2,2)}, v{vST}, s[28:31], s9 offen offset:{1024*rt+128} sc1", "st2")])
    px.add(resE)
    px.pop(2 * E("NPRE3", 5))
    w4b = Pend()
    for i, u in enumerate(uses):
        gi, ks, t = u
        if os.environ.get("PG3") and ((gi == 0 and t == 0 and ks in (1, 10)) or (gi > 0 and ks == 0 and t == 4)): stamp()
        grp = 5 if gi == 0 else 4
        first_of_grp = (t == 0) if gi == 0 else (t == 4 and ks % 2 == 0)
        if first_of_grp:
            issued = min(i + NWB - 1, len(uses))
            need = min(i + grp, len(uses))
            allow = max(0, issued - need)
            if gi == 0: vq.wait(f"x3_{ks}", f"lgkmcnt({allow})")
            else: k(f"s_waitcnt lgkmcnt({allow})")
        for rt in range(2):
            a = ACC3 + (rt * 7 + t) * 4
            c = "0" if ks == 0 else vr(a, 4)
            k(f"v_mfma_f32_16x16x32_bf16 {vr(a,4)}, {ar(WB+4*(i%NWB),4)}, {ar((ks*2+rt)*4,4)}, {c}")
        if i + NWB - 1 < len(uses): k(wread(slot3(uses[i + NWB - 1]), (i + NWB - 1) % NWB))
        if gi == 0 and (t in (0, 2) or (t == 4 + 2 and ks >= E("X3S", 8))): px.pop(1)
        if gi == 0 and ks >= 17 and t in (1, 3): w4a.pop(1)
        if gi == 1 and ks == 1 and t == 5:
            k("s_barrier")
            w4b.add(w4_issue(10, 80, 0) + w4_issue(90, 10, 150) + w4_issue(100, 20, 120))
        if gi == 1 and ks > 1: w4b.pop(1)
    stamp()
    w4b.pop(100)
    k("s_barrier")
    w4c = Pend(w4_issue(120, 40, 80))
    k(f"s_mul_i32 s26, s22, 5120")
    k(f"s_add_u32 s55, s59, s26")
    k(f"s_add_u32 s55, s55, {DST*10240}")
    dreg = lambda st, t: 256 - (27 - DST) * 20 + (st - DST) * 20 + 4 * t
    for st in range(DST, 27):
        for t in range(5):
            pre = "s_add_u32 s55, s55, 4096\n" if t == 4 else ""
            post = f"\ns_add_u32 s55, s55, {10240 - 4096}" if t == 4 else ""
            w4c.add([(pre + f"buffer_load_dwordx4 {ar(dreg(st,t),4)}, v8, s[28:31], s55 offen offset:{(t%4)*1024}" + post, "w4d")])
    k.interval = E("IV3", 78); k.last = k.clock; k.src = lambda: (w4c.pop(1) or True) if w4c.items else False
    vq.wait("st2")
    for rt in range(2):
        k(f"v_add_f32 v{STR+4*rt}, v{STR+4*rt}, v{STR+4*rt+2}")
        k(f"v_add_f32 v{STR+4*rt+1}, v{STR+4*rt+1}, v{STR+4*rt+3}")
    k("s_nop 0")
    emit(reduce_g_ops([STR, STR+1, STR+4, STR+5], 24))
    emit(zipl(ln_ops(STR, STR+1, STR+2, 640), ln_ops(STR+4, STR+5, STR+6, 640)))
    k(f"v_mov_b32 v{VC}, {fhex(C1)}")
    k(f"v_mov_b32 v{VC+1}, {fhex(C0)}")
    PK3, GT3 = 144, 176
    for rt in range(2):
        RS3 = STR + 4*rt
        A0 = ACC3 + rt * 28
        for t in range(7):
            for i in (0, 2): k(f"v_pk_mul_f32 {vr(GT3+4*t+i,2)}, {vr(CS3+4*t+i,2)}, {vr(RS3,2)} op_sel_hi:[1,0]")
        for t in range(7):
            z = A0 + 4*t
            for i in (0, 2): k(f"v_pk_fma_f32 {vr(z+i,2)}, {vr(z+i,2)}, {vr(RS3,2)}, {vr(GT3+4*t+i,2)} op_sel:[0,1,0] op_sel_hi:[1,1,1]")
        emit(gelu_ops(A0, GT3, VC, 28))
        if rt == 1: k.src = None
        for t in range(7):
            k(f"v_cvt_pk_bf16_f32 v{PK3+16*rt+2*t}, v{A0+4*t}, v{A0+4*t+1}")
            k(f"v_cvt_pk_bf16_f32 v{PK3+16*rt+2*t+1}, v{A0+4*t+2}, v{A0+4*t+3}")
        sv = k.src; k.src = None
        pair_swaps(PK3 + 16*rt, 3)
        off = rt * 54 * 1024
        k(f"s_add_u32 s26, s13, {off}")
        k(f"s_add_u32 s27, s12, {off}")
        vq.issue(f"buffer_store_dwordx4 {vr(PK3+16*rt,4)}, v{vP3}, s[28:31], s26 offen", "st")
        vq.issue(f"buffer_store_dwordx2 {vr(PK3+16*rt+12,2)}, v{vL3}, s[28:31], s27 offen", "st")
        lab = k.newlab("j15")
        k("s_cmp_eq_u32 s52, 15")
        k(f"s_cbranch_scc1 {lab}")
        k(f"buffer_store_dwordx4 {vr(PK3+16*rt+4,4)}, v{vP3}, s[28:31], s26 offen offset:1024")
        k(f"buffer_store_dwordx4 {vr(PK3+16*rt+8,4)}, v{vP3}, s[28:31], s26 offen offset:2048")
        k.lab(lab)
        k.src = sv
    stamp()
    vq.drain()
    k(f"""
    v_mov_b32 v2, 1
    v_mov_b32 v7, 0
    s_mov_b64 exec, 1
    buffer_store_dword v2, v7, s[28:31], s15 offen
    s_mov_b64 exec, -1
    """)
    stamp()
    if STOP == "G3":
        finish(); k.lab(end); k("s_endpgm"); return kern

    w4c.pop(100)
    X1R = 96
    rl = []
    for t in range(5):
        if t < 4:
            rl.append((f"s_add_u32 s26, s44, {L.X1 + (t//2)*1024 + (t&1)*512}\nbuffer_load_dwordx2 {vr(X1R+2*t,2)}, v{vX4}, s[28:31], s26 offen sc1", "res"))
        else:
            rl.append((f"s_add_u32 s26, s45, {L.X1}\nbuffer_load_dwordx2 {vr(X1R+2*t,2)}, v{vX4}, s[28:31], s26 offen sc1", "res"))
    WB4 = 136
    k(f"""
    s_mul_i32 s26, s22, 5120
    v_add_u32 v12, s26, v8
    v_add_u32 v13, 0x10000, v12
    v_add_u32 v14, 0x20000, v12
    """)
    def wread4(slot, buf):
        o = slot * 1024
        return f"ds_read_b128 {vr(WB4+4*buf,4)}, v{12 + (o >> 16)} offset:{o & 0xffff}"
    uses = [(st, t) for st in range(27) for t in range(5)]
    luses = [u for u in uses if u[0] < DST]
    NW4 = 12
    slot4 = lambda u: step_slot(u[0]) + u[1]
    poll(vP4, 9, "s48")
    stamp()
    XRG = min(16, (256 - (27 - DST) * 20) // 8)
    def xload4(ks):
        o = []
        for rt in range(2):
            pre = "s_add_u32 s50, s50, 4096\ns_add_u32 s51, s51, 4096\n" if (rt == 0 and ks and ks % 4 == 0) else ""
            o.append((pre + f"buffer_load_dwordx4 {ar((ks % XRG)*8 + 4*rt,4)}, v8, s[28:31], s{50+rt} offen offset:{(ks%4)*1024} {XSC}", f"x4_{ks}"))
        return o
    pend = Pend()
    NPRE4 = E("NPRE4", 5)
    for ks in range(NPRE4): pend.add(xload4(ks))
    pend.pop(100)
    k("s_barrier")
    for i in range(NW4 - 1): k(wread4(slot4(luses[i]), i % NW4))
    nx = NPRE4
    for i, u in enumerate(uses):
        st, t = u
        if t == 0:
            while nx < 27 and nx - XRG < st and nx <= st + XRG - 1 and nx <= st + E("XAH", 6):
                pend.add(xload4(nx)); nx += 1
            if st == 8: pend.add(rl)
        lds = st < DST
        if t == 0:
            w = ""
            if lds:
                issued = min(i + NW4 - 1, len(luses)); need = min(i + 5, len(luses))
                w = f"lgkmcnt({max(0, issued - need)})"
            assert not pend.has(f"x4_{st}"), st
            vq.wait(f"x4_{st}", w)
        for rt in range(2):
            a_ = ACC + (rt * 5 + t) * 4
            c_ = "0" if st == 0 else vr(a_, 4)
            aop = vr(WB4+4*(i%NW4),4) if lds else ar(dreg(st, t), 4)
            k(f"v_mfma_f32_16x16x32_bf16 {vr(a_,4)}, {aop}, {ar((st % XRG)*8 + 4*rt,4)}, {c_}")
        j_ = i + NW4 - 1
        if j_ < len(luses):
            if luses[j_] == (DST - 15, 0):
                k("s_waitcnt lgkmcnt(5)")
                k("s_barrier")
                pend.items = w4_issue(160, 10, step_slot(16), "w4r") + w4_issue(170, 10 * (DST - 17), step_slot(17), "w4r") + pend.items
            if luses[j_] == (16, 0):
                assert not pend.has("w4r")
                vq.wait("w4r")
                k("s_barrier")
            k(wread4(slot4(luses[j_]), j_ % NW4))
        if i % 2 == 0 or len(pend.items) > 6: pend.pop(1)
    pend.pop(100)
    stamp()
    k("s_barrier")
    RCV = 72
    exchange()
    vq.wait("res")
    U = 136
    for t in range(5):
        for src, dst in ((X1R, U), (XAR, U + 20)):
            k(f"v_lshlrev_b32 v{dst+4*t}, 16, v{src+2*t}")
            k(f"v_and_b32 v{dst+4*t+1}, 0xffff0000, v{src+2*t}")
            k(f"v_lshlrev_b32 v{dst+4*t+2}, 16, v{src+2*t+1}")
            k(f"v_and_b32 v{dst+4*t+3}, 0xffff0000, v{src+2*t+1}")
    for t in range(5):
        for i in (0, 2): k(f"v_pk_add_f32 {vr(ACC+4*t+i,2)}, {vr(ACC+4*t+i,2)}, {vr(U+4*t+i,2)}")
    exchange2()
    for t in range(5):
        z = ACC + 4*t
        k(f"s_waitcnt lgkmcnt({4-t})")
        for i in (0, 2): k(f"v_pk_add_f32 {vr(z+i,2)}, {vr(z+i,2)}, {vr(RCV+4*t+i,2)}")
        for i in (0, 2): k(f"v_pk_fma_f32 {vr(z+i,2)}, {vr(z+i,2)}, {vr(GB+4*t+i,2)}, {vr(U+20+4*t+i,2)}")
        k(f"v_cvt_pk_bf16_f32 v{PK+2*t}, v{z}, v{z+1}")
        k(f"v_cvt_pk_bf16_f32 v{PK+2*t+1}, v{z+2}, v{z+3}")
    pair_swaps(PK, 2)
    k(f"buffer_store_dwordx4 {vr(PK,4)}, v{vO4P}, s[32:35], s46 offen")
    k(f"buffer_store_dwordx4 {vr(PK+4,4)}, v{vO4P}, s[32:35], s46 offen offset:64")
    k(f"buffer_store_dwordx2 {vr(PK+8,2)}, v{vO4L}, s[32:35], s49 offen")
    stamp()
    finish()
    k.lab(end)
    k("s_endpgm")
    return kern
```

```python
import sys, os
sys.path.insert(0, os.path.dirname(os.path.abspath(__file__)))
import layout as L

NAME = "adaLN_cond__ssm_conv_h3__mixer_s_mlp__prompt"
SZ_SD = 2048 * 640 * 2

class Kern:
    order = {}
    def __init__(self, name, grid, block, lds, vgpr=256, sgpr=102, agpr=0):
        self.name, self.grid, self.block, self.lds = name, grid, block, lds
        self.vgpr, self.sgpr, self.agpr = vgpr, (102 if (os.environ.get("PROF") or os.environ.get("PROF2")) else sgpr), agpr
        self.L = []
        self.nlab = 0
    def __call__(self, s):
        for ln in s.strip("\n").split("\n"):
            ln = ln.strip()
            if ln:
                self.L.append("    " + ln)
    def lab(self, s):
        self.L.append(s + ":")
    def newlab(self, p="L"):
        self.nlab += 1
        return f"{self.name}_{p}{self.nlab}"
    def srd(self, d, b, size, off=0):
        if off:
            self(f"s_add_u32 s{d}, s{b}, {off}")
            self(f"s_addc_u32 s{d+1}, s{b+1}, 0")
        else:
            self(f"s_mov_b32 s{d}, s{b}")
            self(f"s_mov_b32 s{d+1}, s{b+1}")
        self(f"s_mov_b32 s{d+2}, {size}")
        self(f"s_mov_b32 s{d+3}, 0x00020000")
    def round2(self, a, b, t):
        self(f"v_cvt_pk_bf16_f32 v{t}, v{a}, v{b}")
        self(f"v_lshlrev_b32 v{a}, 16, v{t}")
        self(f"v_and_b32 v{b}, 0xffff0000, v{t}")
    def unpack(self, lo, hi, src):
        self(f"v_lshlrev_b32 v{lo}, 16, v{src}")
        self(f"v_and_b32 v{hi}, 0xffff0000, v{src}")
    def stamp(self, i):
        if os.environ.get("PROF"):
            self(f"s_memtime s[{80+2*i}:{81+2*i}]")
    def stamp_end(self, n):
        if os.environ.get("PROF"):
            l = self.newlab("prof")
            self(f"""
            s_waitcnt lgkmcnt(0)
            s_cmp_lg_u32 s2, {int(os.environ.get("PROFWG", "0"))}
            s_cbranch_scc1 {l}
            s_load_dwordx2 s[76:77], s[0:1], 112
            s_waitcnt lgkmcnt(0)
            s_mov_b32 s78, 256
            s_mov_b32 s79, 0x00020000
            v_mov_b32 v1, 0
            """)
            for i in range(n):
                self(f"s_sub_u32 s75, s{80+2*i}, s80")
                self(f"v_mov_b32 v2, s75")
                self(f"buffer_store_dword v2, v1, s[76:79], 0 offen offset:{4*i}")
            self.lab(l)
    def text(self):
        sc = self.name in os.environ.get("SC1", "prep_kernel,chain_kernel").split(",")
        Ls = [(l + " sc1" if (sc and l.strip().startswith("buffer_store")) else l) for l in self.L]
        if os.environ.get("PROF2"):
            idx = Kern.order.setdefault(self.name, len(Kern.order))
            pre = ["    s_memrealtime s[90:91]", "    v_lshrrev_b32 v1, 6, v0", "    s_mov_b32 s93, s2", "    v_readfirstlane_b32 s92, v1"]
            Ls = [(f"    s_branch {self.name}_pend" if l.strip() == "s_endpgm" else l) for l in Ls]
            post = f"""{self.name}_pend:
    s_mov_b64 exec, -1
    s_waitcnt vmcnt(0) lgkmcnt(0)
    s_memrealtime s[94:95]
    s_load_dwordx2 s[96:97], s[0:1], 120
    s_lshl_b32 s93, s93, 3
    s_add_u32 s93, s93, s92
    s_lshl_b32 s93, s93, 4
    s_add_u32 s93, s93, {0x4000000 + idx * 0x20000}
    s_getreg_b32 s92, hwreg(HW_REG_XCC_ID)
    s_waitcnt lgkmcnt(0)
    s_mov_b32 s98, 0x10000000
    s_mov_b32 s99, 0x00020000
    v_mov_b32 v0, s90
    v_mov_b32 v1, s94
    v_mov_b32 v2, s92
    v_mov_b32 v3, 0x1234
    v_mov_b32 v4, s93
    s_mov_b64 exec, 1
    buffer_store_dwordx4 v[0:3], v4, s[96:99], 0 offen
    s_endpgm""".split("\n")
            Ls = pre + Ls + post
        return (f".globl {self.name}\n.p2align 8\n.type {self.name},@function\n{self.name}:\n" + "\n".join(Ls) + "\n")
    def kd(self):
        acc = (self.vgpr + 3) // 4 * 4
        nfv = self.vgpr if not self.agpr else acc + self.agpr
        return f""".p2align 6
.amdhsa_kernel {self.name}
  .amdhsa_next_free_vgpr {nfv}
  .amdhsa_next_free_sgpr {self.sgpr}
  .amdhsa_accum_offset {acc}
  .amdhsa_group_segment_fixed_size 0
  .amdhsa_kernarg_size 128
  .amdhsa_user_sgpr_count 2
  .amdhsa_user_sgpr_kernarg_segment_ptr 1
  .amdhsa_system_sgpr_workgroup_id_x 1
  .amdhsa_float_denorm_mode_32 3
.end_amdhsa_kernel
"""

def vr(a, n):
    return f"v[{a}:{a+n-1}]"

MERGE = os.environ.get("MERGE", "0") == "1"
CNT_OFF = 128

def signal(k, cnt_sgpr_or_imm):
    l = k.newlab("sig")
    k(f"""
    s_mov_b64 exec, -1
    s_waitcnt vmcnt(0)
    s_barrier
    v_cmp_eq_u32 vcc, 0, v0
    s_and_saveexec_b64 s[42:43], vcc
    s_cbranch_execz {l}
    v_mov_b32 v1, 1
    v_mov_b32 v2, {cnt_sgpr_or_imm}
    buffer_atomic_add v1, v2, s[48:51], 0 offen
    """)
    k.lab(l)
    k("s_endpgm")

def poll(k, voff, target, vtmp):
    l = k.newlab("poll"); d = k.newlab("polld")
    k("s_mov_b32 s52, 0")
    k("s_cmp_lg_u32 s20, 0")
    k(f"s_cbranch_scc1 {d}")
    k.lab(l)
    k(f"""
    buffer_load_dword v{vtmp}, v{voff}, s[48:51], 0 offen sc0 sc1
    s_waitcnt vmcnt(0)
    v_readfirstlane_b32 s53, v{vtmp}
    s_add_u32 s52, s52, 1
    s_cmp_ge_u32 s53, {target}
    s_cbranch_scc1 {d}
    s_cmp_ge_u32 s52, 0x100000
    s_cbranch_scc1 {d}
    s_sleep {int(os.environ.get("SLP", 8))}
    s_branch {l}
    """)
    k.lab(d)
    k("s_barrier")


WREG = 13824
KB = 9472
NT = os.environ.get("NT", "nt")
def gen_p():
    import gen3
    k = Kern("prep_kernel", 512, 512, 4 * WREG + 32768, vgpr=256, sgpr=100)
    end = "prep_end"
    SPIN = int(os.environ.get("SPIN", 200000))
    CONV0 = 608
    k(f"""
    s_cmp_ge_u32 s2, 512
    s_cbranch_scc1 {end}
    s_load_dwordx4 s[4:7], s[0:1], 8       ; k v
    s_load_dwordx2 s[8:9], s[0:1], 24      ; shift_k
    s_load_dwordx2 s[10:11], s[0:1], 120   ; ws
    s_load_dwordx8 s[12:19], s[0:1], 56    ; w1 w2 w3 w4
    s_load_dwordx2 s[60:61], s[0:1], 0     ; q
    s_load_dwordx2 s[62:63], s[0:1], 96    ; w_mod
    s_load_dwordx2 s[52:53], s[0:1], 88    ; c
    s_load_dwordx2 s[54:55], s[0:1], 112   ; debug
    s_load_dwordx4 s[56:59], s[0:1], 32
    s_memrealtime s[64:65]
    v_lshrrev_b32 v2, 6, v0
    v_and_b32 v1, 63, v0                   ; lane
    v_readfirstlane_b32 s20, v2
    s_waitcnt lgkmcnt(0)
    """)
    k.srd(28, 10, 0x10000000)
    k.srd(48, 54, 256)
    def nonce_issue(vn, vz):
        k(f"v_mov_b32 v{vz}, 0")
        k(f"buffer_load_dword v{vn}, v{vz}, s[48:51], 0 offen sc1")
    def nonce_get(vn, vz):
        l = k.newlab("nn"); d = k.newlab("nd")
        k("s_mov_b32 s47, 0")
        k.lab(l)
        k(f"""
        v_readfirstlane_b32 s46, v{vn}
        s_add_u32 s47, s47, 1
        s_cmp_lg_u32 s46, 0
        s_cbranch_scc1 {d}
        s_cmp_ge_u32 s47, {SPIN}
        s_cbranch_scc1 {d}
        buffer_load_dword v{vn}, v{vz}, s[48:51], 0 offen sc1
        s_waitcnt vmcnt(0)
        s_branch {l}
        """)
        k.lab(d)
    def flag_store(soff, vt):
        k(f"""
        v_mov_b32 v{vt}, s46
        v_mov_b32 v{vt+1}, 0
        s_mov_b64 exec, 1
        buffer_store_dword v{vt}, v{vt+1}, s[28:31], {soff} offen
        """)
    def poll(vaddr, vdat, execmask, sbase):
        l = k.newlab("pl"); d = k.newlab("pd")
        k(f"s_mov_b32 s47, 0")
        k(execmask)
        k.lab(l)
        k(f"""
        buffer_load_dword v{vdat}, v{vaddr}, s[28:31], {sbase} offen sc1
        s_add_u32 s47, s47, 1
        s_waitcnt vmcnt(0)
        v_cmp_ne_u32 vcc, s46, v{vdat}
        s_cmp_ge_u32 s47, {SPIN}
        s_cbranch_scc1 {d}
        s_cbranch_vccz {d}
        s_sleep {int(os.environ.get("PSLP", 8))}
        s_branch {l}
        """)
        k.lab(d)
        k("s_mov_b64 exec, -1")
    k(f"""
    s_cmp_ge_u32 s2, 416
    s_cbranch_scc1 p_pack
    s_cmp_ge_u32 s2, 256
    s_cbranch_scc1 p_conv
    s_cmp_ge_u32 s2, 160
    s_cbranch_scc1 p_aux
    """)
    l0 = k.newlab("n0")
    k(f"""
    s_or_b32 s21, s2, s20
    s_cmp_lg_u32 s21, 0
    s_cbranch_scc1 {l0}
    s_or_b32 s64, s64, 1
    v_mov_b32 v3, s64
    v_mov_b32 v4, 0
    s_mov_b64 exec, 1
    buffer_store_dword v3, v4, s[48:51], 0 offen
    s_mov_b64 exec, -1
    """)
    k.lab(l0)
    k("s_mov_b32 s45, s20")
    KVP = os.environ.get("KVPROF")
    def kst(i):
        if KVP: k(f"s_memrealtime s[{70+2*i}:{71+2*i}]")
    kst(0)
    k.srd(16, 4, SZ_SD); k.srd(20, 6, SZ_SD); k.srd(24, 8, 640 * 8)
    k(f"""
    s_lshr_b32 s47, s45, 2           ; half
    s_lshl_b32 s46, s2, 1
    s_add_u32 s46, s46, s47          ; tile
    v_and_b32 v0, 255, v0
    s_mul_i32 s32, s46, 52429
    s_lshr_b32 s32, s32, 19
    s_mul_i32 s33, s32, 10
    s_sub_u32 s33, s46, s33          ; cb
    s_lshl_b32 s43, s47, 13
    v_and_b32 v1, 15, v0             ; cgl
    v_lshrrev_b32 v2, 4, v0          ; rg
    s_lshl_b32 s34, s32, 6
    v_lshl_add_u32 v3, v2, 2, s34    ; s0
    v_mul_u32_u24 v4, 1280, v3
    s_lshl_b32 s35, s33, 7
    v_lshl_add_u32 v5, v1, 3, s35
    v_add_u32 v4, v4, v5             ; voff
    v_subrev_u32 v6, 3840, v4
    v_subrev_u32 v7, 2560, v4
    v_subrev_u32 v8, 1280, v4
    """)
    KR, VR_, SKR, SKF, KF, KVF, T, QR = 10, 24, 32, 40, 56, 84, 100, 112
    k(f"buffer_load_dwordx2 {vr(KR,2)}, v6, s[16:19], 0 offen {NT}")
    k(f"buffer_load_dwordx2 {vr(KR+2,2)}, v7, s[16:19], 0 offen {NT}")
    k(f"buffer_load_dwordx2 {vr(KR+4,2)}, v8, s[16:19], 0 offen {NT}")
    for i in range(4):
        k(f"buffer_load_dwordx2 {vr(KR+6+2*i,2)}, v4, s[16:19], 0 offen offset:{i*1280} {NT}")
    k(f"v_lshlrev_b32 v{T}, 2, v5")
    k(f"buffer_load_dwordx4 {vr(SKR,4)}, v{T}, s[24:27], 0 offen")
    k(f"buffer_load_dwordx4 {vr(SKR+4,4)}, v{T}, s[24:27], 0 offen offset:16")
    for i in range(4):
        k(f"buffer_load_dwordx2 {vr(VR_+2*i,2)}, v4, s[20:23], 0 offen offset:{i*1280} {NT}")
    k(f"""
    v_lshlrev_b32 v{T}, 9, v1
    v_sub_u32 v{T+1}, 15, v2
    v_lshl_add_u32 v{T}, v{T+1}, 3, v{T}
    v_add_u32 v{T}, s43, v{T}
    v_lshrrev_b32 v{T+1}, 3, v0
    v_mul_u32_u24 v{T+1}, {L.KVR_CH}, v{T+1}
    v_and_b32 v{T+2}, 7, v0
    v_lshl_add_u32 v{T+3}, v{T+2}, 4, v{T+1}
    v_lshlrev_b32 v{T+4}, 4, v0
    v_add_u32 v{T+4}, s43, v{T+4}
    s_mul_i32 s36, s33, {64*L.KVR_CH}
    s_lshr_b32 s37, s32, 1
    s_mul_i32 s37, s37, 272
    s_add_u32 s36, s36, s37
    s_add_u32 s36, s36, {L.KVR}
    s_and_b32 s37, s32, 1
    s_lshl_b32 s38, s37, 7
    s_sub_u32 s38, 128, s38
    s_add_u32 s38, s38, s36
    s_lshl_b32 s44, s33, 5
    s_add_u32 s44, s44, s32
    s_lshl_b32 s44, s44, 7
    s_add_u32 s44, s44, {L.PFK}
    s_waitcnt vmcnt(4)
    """)
    kst(1)
    nonce_issue(122, 123)
    for c in range(4):
        k.unpack(SKF + c, SKF + 4 + c, SKR + 2*c)
        k.unpack(SKF + 8 + c, SKF + 12 + c, SKR + 2*c + 1)
    for r in range(7):
        k.unpack(KF + 4*r, KF + 4*r + 1, KR + 2*r)
        k.unpack(KF + 4*r + 2, KF + 4*r + 3, KR + 2*r + 1)
    for j in (3, 2, 1, 0):
        for s_ in range(4):
            for p in range(2):
                A = KVF + 4*s_ + 2*p
                if j == 3: k(f"v_pk_mul_f32 {vr(A,2)}, {vr(KF+4*s_+2*p,2)}, {vr(SKF+12+2*p,2)}")
                else: k(f"v_pk_fma_f32 {vr(A,2)}, {vr(KF+4*(s_+3-j)+2*p,2)}, {vr(SKF+4*j+2*p,2)}, {vr(A,2)}")
    O = KF; O2 = KF + 8
    for i in range(8):
        k(f"v_cvt_pk_bf16_f32 v{O+i}, v{KVF+2*i}, v{KVF+2*i+1}")
    k("s_waitcnt vmcnt(1)")
    for i in range(8):
        k(f"v_lshlrev_b32 v{KVF+2*i}, 16, v{O+i}")
        k(f"v_and_b32 v{KVF+2*i+1}, 0xffff0000, v{O+i}")
    for i in range(8):
        k.unpack(O + 8 + 2*(i % 4), O + 9 + 2*(i % 4), VR_ + i)
        k(f"v_pk_mul_f32 {vr(KVF+2*i,2)}, {vr(KVF+2*i,2)}, {vr(O+8+2*(i%4),2)}")
    for c in range(4):
        for d in range(2):
            k(f"v_cvt_pk_bf16_f32 v{O2+2*c+d}, v{KVF+4*(3-2*d)+c}, v{KVF+4*(2-2*d)+c}")
    kst(2)
    for c in range(4):
        k(f"ds_write_b64 v{T}, {vr(O2+2*c,2)} offset:{128*c}")
    k(f"""
    s_waitcnt lgkmcnt(0)
    s_barrier
    """)
    kst(3)
    for i in range(2):
        k(f"ds_read_b128 {vr(KR+4*i,4)}, v{T+4} offset:{4096*i}")
    for i in range(2):
        k(f"s_waitcnt lgkmcnt({1-i})")
        k(f"buffer_store_dwordx4 {vr(KR+4*i,4)}, v{T+3}, s[28:31], s38 offen")
        k(f"s_add_u32 s38, s38, {32*L.KVR_CH}")
    hl = k.newlab(); zl = k.newlab()
    k(f"""
    v_cmp_eq_u32 vcc, 0, v{T+2}
    s_and_saveexec_b64 s[66:67], vcc
    s_cmp_eq_u32 s37, 0
    s_cbranch_scc1 {hl}
    s_cmp_eq_u32 s32, 31
    s_cbranch_scc1 {zl}
    """)
    for i in range(2):
        k(f"buffer_store_dwordx4 {vr(KR+4*i,4)}, v{T+1}, s[28:31], s36 offen offset:{272+256}")
        k(f"s_add_u32 s36, s36, {32*L.KVR_CH}")
    k(f"s_branch {zl}")
    k.lab(hl)
    k(f"""
    s_cmp_lg_u32 s32, 0
    s_cbranch_scc1 {zl}
    v_mov_b32 v{T+8}, 0
    v_mov_b32 v{T+9}, 0
    v_mov_b32 v{T+10}, 0
    v_mov_b32 v{T+11}, 0
    """)
    for i in range(2):
        k(f"buffer_store_dwordx4 {vr(T+8,4)}, v{T+1}, s[28:31], s36 offen offset:256")
        k(f"s_add_u32 s36, s36, {32*L.KVR_CH}")
    k.lab(zl)
    k("s_mov_b64 exec, -1")
    kst(4)
    k("s_waitcnt vmcnt(0)")
    kst(5)
    k("s_barrier")
    kst(6)
    if KVP:
        k(f"""
        s_waitcnt lgkmcnt(0)
        s_lshl_b32 s41, s2, 3
        s_add_u32 s41, s41, s45
        s_lshl_b32 s41, s41, 5
        s_add_u32 s41, s41, {L.PROFOFF + 0x100000}
        v_mov_b32 v125, 0
        s_mov_b64 exec, 1
        """)
        for i in range(7):
            k(f"v_mov_b32 v126, s{70+2*i}")
            k(f"buffer_store_dword v126, v125, s[28:31], s41 offen offset:{4*i}")
            k("s_nop 0")
        k("s_mov_b64 exec, -1")
    k("s_and_b32 s45, s45, 3")
    k("s_cmp_lg_u32 s45, 0")
    k(f"s_cbranch_scc1 {end}")
    nonce_get(122, 123)
    flag_store("s44", 124)
    k("s_endpgm")
    k.lab(end)
    k("s_endpgm")

    k.lab("p_aux")
    nonce_issue(250, 251)
    k(f"""
    s_sub_u32 s21, s2, 160               ; a (0..95)
    s_cmp_ge_u32 s20, 6
    s_cbranch_scc1 {end}
    s_cmp_ge_u32 s20, 3
    s_cbranch_scc1 p_misc
    s_cmp_eq_u32 s20, 0
    s_cbranch_scc1 p_st
    s_cmp_eq_u32 s20, 2
    s_cbranch_scc1 p_aux2
    s_add_u32 s21, s21, 96
    s_cmp_lt_u32 s21, 128
    s_cbranch_scc1 p_st
    s_sub_u32 s21, s21, 128
    s_branch p_mod
    """)
    k.lab("p_aux2")
    k(f"""
    s_cmp_ge_u32 s21, 56
    s_cbranch_scc1 {end}
    s_add_u32 s21, s21, 64
    """)
    k.lab("p_mod")
    C, W, A, T = 8, 32, 112, 120
    k(f"""
    s_lshr_b32 s32, s21, 2               ; cb
    s_and_b32 s33, s21, 3                ; kq
    v_lshrrev_b32 v4, 3, v1              ; row_l
    v_and_b32 v3, 7, v1                  ; chunk
    s_mul_i32 s34, s33, 160
    v_add_u32 v4, s34, v4
    v_lshlrev_b32 v5, 1, v4              ; c offset
    v_mul_u32_u24 v6, 7680, v4
    s_lshl_b32 s36, s32, 7
    v_lshl_add_u32 v7, v3, 4, s36
    v_add_u32 v6, v6, v7
    """)
    k.srd(16, 52, 1280); k.srd(24, 62, 640 * 7680)
    k(f"""
    s_mul_i32 s35, s33, 320
    v_lshlrev_b32 v5, 3, v1
    buffer_load_dwordx2 v[30:31], v5, s[16:19], s35 offen
    s_mov_b32 s37, 0
    """)
    for it in range(20):
        k(f"buffer_load_dwordx4 {vr(W+4*it,4)}, v6, s[24:27], s37 offen {NT}")
        if it < 19: k(f"s_add_u32 s37, s37, {8*7680}")
    TT = T
    k(f"""
    s_mul_i32 s35, s20, {WREG}
    v_lshlrev_b32 v5, 4, v1
    v_add_u32 v5, s35, v5
    v_lshrrev_b32 v29, 3, v1
    v_lshlrev_b32 v29, 2, v29
    v_add_u32 v29, s35, v29
    s_waitcnt vmcnt(20)
    """)
    k.unpack(C, C + 1, 30); k.unpack(C + 2, C + 3, 31)
    for i in range(4): k(f"v_mul_f32 v{TT+i}, 0xbfb8aa3b, v{C+i}")
    for i in range(4): k(f"v_exp_f32 v{TT+i}, v{TT+i}")
    for i in range(4): k(f"v_add_f32 v{TT+i}, 1.0, v{TT+i}")
    for i in range(4): k(f"v_rcp_f32 v{TT+i}, v{TT+i}")
    k("s_nop 0")
    for i in range(4): k(f"v_mul_f32 v{C+i}, v{C+i}, v{TT+i}")
    for i in (0, 2): k.round2(C + i, C + i + 1, TT)
    k(f"ds_write_b128 v5, {vr(C,4)}")
    k("s_waitcnt lgkmcnt(0)")
    for it in range(20): k(f"ds_read_b32 v{C+it}, v29 offset:{32*it}")
    k("s_waitcnt lgkmcnt(0)")
    for j in range(8): k(f"v_mov_b32 v{A+j}, 0")
    for it in range(20):
        k(f"s_waitcnt vmcnt({19-it})")
        for d in range(4): k.unpack(T + 2*d, T + 2*d + 1, W + 4*it + d)
        sel = "op_sel:[0,0,0] op_sel_hi:[1,0,1]" if it % 2 == 0 else "op_sel:[0,1,0] op_sel_hi:[1,1,1]"
        for d in range(4):
            k(f"v_pk_fma_f32 {vr(A+2*d,2)}, {vr(T+2*d,2)}, {vr(C+(it&~1),2)}, {vr(A+2*d,2)} {sel}")
    k("s_nop 1")
    for d in range(8):
        k(f"v_add_f32_dpp v{A+d}, v{A+d}, v{A+d} row_ror:8 row_mask:0xf bank_mask:0xf")
    for x in gen3.reduce_g_ops([A + d for d in range(8)], T): k(x)
    k(f"""
    v_lshlrev_b32 v7, 5, v3
    s_mul_i32 s36, s33, {3840*4}
    s_lshl_b32 s37, s32, 8
    s_add_u32 s37, s37, s36
    s_add_u32 s37, s37, {L.MODP}
    s_lshl_b32 s44, s21, 7
    s_add_u32 s44, s44, {L.PFM}
    s_mov_b64 exec, 0xff
    buffer_store_dwordx4 {vr(A,4)}, v7, s[28:31], s37 offen
    buffer_store_dwordx4 {vr(A+4,4)}, v7, s[28:31], s37 offen offset:16
    s_mov_b64 exec, -1
    s_waitcnt vmcnt(0)
    """)
    nonce_get(250, 251)
    flag_store("s44", 132)
    k("s_endpgm")
    k.lab("p_st")
    k.srd(16, 60, SZ_SD)
    k(f"""
    v_lshrrev_b32 v5, 3, v1              ; r
    v_and_b32 v6, 7, v1                  ; c
    s_lshl_b32 s23, s21, 4
    v_add_u32 v7, s23, v5
    v_mul_u32_u24 v9, 1280, v7
    v_lshl_add_u32 v9, v6, 4, v9
    v_mov_b32 v20, 0x3f803f80
    s_mov_b32 s24, 0
    """)
    for p in range(2):
        for t in range(10):
            k(f"buffer_load_dwordx4 {vr(32+40*p+4*t,4)}, v9, s[16:19], s24 offen offset:{128*t} {NT}")
        if p < 1: k(f"s_add_u32 s24, s24, {8*1280}")
    k(f"""
    v_and_b32 v21, 1, v5
    v_lshl_add_u32 v21, v6, 1, v21
    v_lshlrev_b32 v21, 7, v21
    v_lshrrev_b32 v22, 1, v5
    v_xor_b32 v22, v22, v6
    v_lshl_add_u32 v21, v22, 4, v21
    v_xor_b32 v23, 64, v21
    s_mul_i32 s25, s21, 20480
    s_add_u32 s25, s25, {L.Q4}
    """)
    for i in range(4): k(f"v_mov_b32 v{10+i}, 0")
    for p in range(2):
        for t in range(10):
            k(f"s_waitcnt vmcnt({19 - (10*p + t) + (10*p + t)})") if False else None
            X = 32 + 40*p + 4*t
            k(f"s_waitcnt vmcnt({min(63, 19 - (10*p + t) + (10*p + t))})") if False else None
            nld = 10*p + t
            k(f"s_waitcnt vmcnt({19 - nld + nld})") if False else None
            k(f"s_waitcnt vmcnt(19)")
            for d in range(4):
                k(f"v_dot2_f32_bf16 v{10+2*p}, v{X+d}, v20, v{10+2*p}")
                k(f"v_dot2_f32_bf16 v{11+2*p}, v{X+d}, v{X+d}, v{11+2*p}")
            O = 120 + 4*(t & 1)
            k(f"v_mov_b32 v{O}, v{X}")
            k(f"v_mov_b32 v{O+1}, v{X+1}")
            k(f"v_mov_b32 v{O+2}, v{X+2}")
            k(f"v_mov_b32 v{O+3}, v{X+3}")
            k(f"v_mov_b32_dpp v{O}, v{X+2} row_ror:8 row_mask:0xf bank_mask:0xc")
            k(f"v_mov_b32_dpp v{O+1}, v{X+3} row_ror:8 row_mask:0xf bank_mask:0xc")
            k(f"v_mov_b32_dpp v{O+2}, v{X} row_ror:8 row_mask:0xf bank_mask:0x3")
            k(f"v_mov_b32_dpp v{O+3}, v{X+1} row_ror:8 row_mask:0xf bank_mask:0x3")
            k(f"s_add_u32 s26, s25, {2048*t}")
            k(f"buffer_store_dwordx4 {vr(O,4)}, v{21 if p == 0 else 23}, s[28:31], s26 offen")
    k("s_nop 2")
    for ctl in ("quad_perm:[1,0,3,2]", "quad_perm:[2,3,0,1]", "row_half_mirror"):
        for i in range(4):
            k(f"v_add_f32_dpp v{10+i}, v{10+i}, v{10+i} {ctl} row_mask:0xf bank_mask:0xf")
    for x in gen3.zipl(*[gen3.ln_ops(10+2*p, 11+2*p, 24+p, 640) for p in range(2)]): k(x)
    k(f"""
    v_lshlrev_b32 v7, 3, v7
    v_cmp_eq_u32 vcc, 0, v6
    s_lshl_b32 s44, s21, 7
    s_add_u32 s44, s44, {L.PFS}
    s_mov_b32 s23, {L.ST1}
    s_and_saveexec_b64 s[66:67], vcc
    """)
    for p in range(2):
        k(f"buffer_store_dwordx2 {vr(10+2*p,2)}, v7, s[28:31], s23 offen offset:{64*p}")
    k("s_mov_b64 exec, -1")
    k("s_waitcnt vmcnt(0)")
    nonce_get(250, 251)
    flag_store("s44", 30)
    k("s_endpgm")
    k.lab("p_misc")
    k(f"""
    s_sub_u32 s24, s20, 3
    s_mul_i32 s23, s24, 96
    s_add_u32 s23, s23, s21
    s_cmp_ge_u32 s23, 256
    s_cbranch_scc1 {end}
    s_mul_i32 s22, s24, 12
    s_lshr_b32 s25, s21, 3
    s_add_u32 s22, s22, s25
    """)
    k(f"""
    v_lshlrev_b32 v1, 4, v1
    v_mov_b32 v60, 0
    v_mov_b32 v61, 0
    v_mov_b32 v62, 0
    v_mov_b32 v63, 0
    s_lshl_b32 s24, s23, 10
    s_add_u32 s25, s24, {L.FLG}
    s_add_u32 s26, s24, {L.H1S}
    s_add_u32 s27, s24, {L.H1S + 127*20480 - 20480}
    s_cmp_ge_u32 s23, 20
    s_cselect_b32 s26, s27, s26
    """)
    zl = k.newlab("nz"); zl2 = k.newlab("nz")
    k(f"""
    s_cmp_ge_u32 s23, {L.FLG_KB}
    s_cbranch_scc1 {zl}
    buffer_store_dwordx4 v[60:63], v1, s[28:31], s25 offen
    """)
    k.lab(zl)
    k(f"""
    s_cmp_ge_u32 s23, 40
    s_cbranch_scc1 {zl2}
    buffer_store_dwordx4 v[60:63], v1, s[28:31], s26 offen
    """)
    k.lab(zl2)
    if not os.environ.get("NOCPF"):
        k("s_getpc_b64 s[24:25]")
        k.lab("p_pcref")
        k(f"""
        s_sub_u32 s24, s24, p_pcref-{k.name}
        s_subb_u32 s25, s25, 0
        s_lshl_b32 s23, s22, 11
        """)
        for i in range(2):
            k(f"""
            s_add_u32 s26, s23, {1024*i}
            s_min_u32 s26, s26, (chain_end-{k.name}-1020)&0xfffffff0
            v_add_u32 v64, s26, v1
            v_mov_b32 v5, s25
            v_add_co_u32 v4, vcc, s24, v64
            v_addc_co_u32 v5, vcc, 0, v5, vcc
            global_load_dwordx4 {vr(72+4*i,4)}, v[4:5], off
            """)
    k("s_waitcnt vmcnt(0)")
    k("s_endpgm")
    k.lab("p_conv")
    k("s_cmp_ge_u32 s20, 4")
    k(f"s_cbranch_scc1 {end}")
    if os.environ.get("PRIO", "1") == "1": k("s_setprio 3")
    k.stamp(0)
    k(f"""
    s_and_b32 s21, s2, 7
    s_mul_i32 s21, s21, 20
    s_sub_u32 s2, s2, 256
    s_lshr_b32 s2, s2, 3
    s_add_u32 s2, s2, s21                  ; s2 := cg
    """)
    k.srd(24, 56, 640 * 4096)
    k(f"""
    s_lshl_b32 s21, s2, 3
    s_add_u32 s22, s58, s21
    s_addc_u32 s23, s59, 0
    s_load_dwordx2 s[32:33], s[22:23], 0
    s_lshl_b32 s21, s2, 2
    s_add_u32 s21, s21, s20                 ; ch
    s_mul_i32 s34, s20, {WREG}
    v_lshlrev_b32 v3, 4, v1                 ; lane*16
    s_lshl_b32 s35, s21, 12                 ; ch*4096
    s_add_u32 s36, s34, 256
    s_mov_b32 m0, s36
    s_mul_i32 s37, s21, {L.KVR_CH}
    s_add_u32 s37, s37, {L.KVR}
    """)
    for i in range(4):
        k(f"buffer_load_dwordx4 v3, s[24:27], s35 offen offset:{1024*i} {NT} lds")
    k(f"""
    s_add_u32 s36, s34, {KB + 256}
    s_mov_b32 m0, s36
    s_add_u32 s40, s35, 8
    v_mov_b32 v16, 0
    """)
    for i in range(4):
        k(f"buffer_load_dwordx4 v3, s[24:27], s40 offen offset:{1024*i} lds")
    k(f"buffer_load_dwordx2 v[252:253], v16, s[24:27], s35 offen")
    k(f"""
    v_lshrrev_b32 v4, 3, v0
    v_mul_u32_u24 v4, 20480, v4
    s_lshr_b32 s38, s2, 1
    s_and_b32 s38, s38, 7
    v_and_b32 v5, 7, v0
    v_xor_b32 v5, s38, v5
    v_lshl_add_u32 v4, v5, 4, v4            ; (t>>3)*20480 + ((t&7)^sw)*16
    s_lshl_b32 s38, s2, 7                   ; cg*128
    """)
    nonce_issue(17, 16)
    k("s_waitcnt vmcnt(0)")
    nonce_get(17, 16)
    k(f"""
    s_lshr_b32 s40, s2, 4
    s_lshl_b32 s40, s40, 12
    s_add_u32 s40, s40, {L.PFK}
    v_lshlrev_b32 v16, 7, v1
    """)
    lw = k.newlab("w0")
    k("s_cmp_lg_u32 s20, 0")
    k(f"s_cbranch_scc1 {lw}")
    poll(16, 17, "s_mov_b32 exec_lo, -1\ns_mov_b32 exec_hi, 0", "s40")
    k.lab(lw)
    k("s_barrier")
    k(f"""
    s_add_u32 s36, s34, 4352
    s_mov_b32 m0, s36
    s_nop 0
    """)
    for i in range(4):
        k(f"buffer_load_dwordx4 v3, s[28:31], s37 offen offset:{1024*i} sc1 lds")
    k(f"""
    s_add_u32 s36, s34, {4352+4096}
    s_mov_b32 m0, s36
    s_add_u32 s37, s37, 4096
    buffer_load_dwordx4 v3, s[28:31], s37 offen sc1 lds
    """)
    QL = 4 * WREG
    def late_load(i):
        k(f"s_lshl_b32 s39, s20, 10")
        k(f"s_add_u32 m0, s39, {QL + 4096*i}")
        k(f"s_add_u32 s39, s38, {L.Q4 + i*32*20480}")
        k(f"buffer_load_dwordx4 v4, s[28:31], s39 offen sc1 lds")
    k(f"""
    v_lshl_add_u32 v5, v1, 2, s34
    v_mov_b32 v6, 0
    ds_write_b32 v5, v6
    ds_write_b32 v5, v6 offset:{KB}
    v_and_b32 v7, 15, v1                    ; n16
    v_bfe_u32 v8, v1, 4, 1                  ; ph
    v_lshrrev_b32 v9, 5, v1                 ; g
    v_mul_u32_u24 v10, 272, v7
    v_lshl_add_u32 v10, v9, 4, v10
    v_add_u32 v10, s34, v10
    v_add_u32 v10, {4352+4}, v10
    v_lshlrev_b32 v11, 2, v8
    v_sub_u32 v10, v10, v11
    v_and_b32 v12, 7, v1
    v_mul_u32_u24 v13, 272, v12
    v_lshl_add_u32 v13, v9, 4, v13
    v_add_u32 v13, s34, v13
    v_add_u32 v13, {4352+4}, v13
    v_sub_u32 v13, v13, v11                 ; vBP
    v_bfe_u32 v11, v1, 3, 1                 ; a'
    v_lshlrev_b32 v11, 4, v11
    v_sub_u32 v11, 16, v11
    v_and_b32 v14, 31, v1
    v_lshlrev_b32 v14, 3, v14
    v_lshl_add_u32 v14, v9, 4, v14
    v_add_u32 v14, s34, v14
    v_and_b32 v17, 1, v1
    v_mul_u32_u24 v17, {KB - 8}, v17
    v_sub_u32 v17, {KB}, v17
    v_add_u32 v14, v17, v14                 ; vA
    v_cmp_ne_u32 vcc, 0, v12
    v_mov_b32 v16, 0
    s_nop 1
    v_cndmask_b32 v15, v16, -1, vcc
    """)
    k(f"""
    s_add_u32 s36, s34, {KB + 248}
    v_mov_b32 v17, s36
    s_waitcnt vmcnt(0) lgkmcnt(0)
    s_mov_b64 exec, 1
    ds_write_b64 v17, v[252:253]
    s_mov_b64 exec, -1
    s_waitcnt lgkmcnt(0)
    """)
    B0, B1, BP, AX, AY, AP_, AM, APk = 32, 64, 96, 128, 144, 160, 176, 208
    k.stamp(1)
    def aread(reg, off):
        return f"ds_read_b128 {vr(reg,4)}, v14 offset:{off}"
    for ks in range(8):
        k(aread(AM+4*ks, 256*7+32*ks))
    TB = 16
    for ks in range(8):
        k(f"ds_read2_b32 {vr(B1+4*ks,2)}, v10 offset0:{8*ks} offset1:{8*ks+1}")
        k(f"ds_read2_b32 {vr(B1+4*ks+2,2)}, v10 offset0:{8*ks+2} offset1:{8*ks+3}")
    prd = []
    for ks in range(8):
        prd.append(f"ds_read_b32 v{TB+ks}, v10 offset:{32*ks+16}")
    for ks in range(8):
        prd.append(f"ds_read2_b32 {vr(BP+4*ks,2)}, v13 offset0:{8*ks} offset1:{8*ks+1}")
        prd.append(f"ds_read2_b32 {vr(BP+4*ks+2,2)}, v13 offset0:{8*ks+2} offset1:{8*ks+3}")
        prd.append(f"ds_read_b32 v{TB+8+ks}, v13 offset:{32*ks+16}")
    al0 = []; alp = []
    for ks in range(8):
        for d in range(4):
            hi = B1 + 4*ks + d + 1 if d < 3 else TB + ks
            al0.append(f"v_alignbit_b32 v{B0+4*ks+d}, v{hi}, v{B1+4*ks+d}, 16")
            hi = BP + 4*ks + d + 1 if d < 3 else TB + 8 + ks
            alp.append(f"v_alignbit_b32 v{BP+4*ks+d}, v{hi}, v{BP+4*ks+d}, v11")
    k.stamp(2)
    DPP = "row_mask:0xf bank_mask:0xf bound_ctrl:0"
    def mfma(acc, a, b, first):
        c = "0" if first else vr(acc, 16)
        k(f"v_mfma_f32_32x32x16_bf16 {vr(acc,16)}, {vr(a,4)}, {vr(b,4)}, {c}")
    def phase(acc, Areg, Breg, first, reads, late, pad=True, rg=8):
        reads = list(reads); late = list(late)
        for ks in range(8):
            mfma(acc, Areg + 4*ks, Breg + 4*ks, first and ks == 0)
            n = (len(reads) + (rg - 1 - ks)) // (rg - ks) if ks < rg else 0
            for s in reads[:n]:
                k(s)
            reads = reads[n:]
            if ks < 2:
                if pad and late and n < 5:
                    k(f"s_nop {4 - n}")
            else:
                n = (len(late) + (7 - ks)) // (8 - ks)
                for s in late[:n]:
                    k(s)
                late = late[n:]
        assert not late and not reads
    def shift_ops(acc, masked):
        if masked:
            return [f"v_and_b32_dpp v{acc+r}, v{acc+r}, v15 row_shr:1 {DPP}" for r in range(16)]
        return [f"v_mov_b32_dpp v{acc+r}, v{acc+r} row_shr:1 {DPP}" for r in range(16)]
    def areads(reg, off):
        o = []
        for ks in range(8):
            o += aread(reg + 4*ks, off + 32*ks).split("\n")
        return o
    lateq = []
    QF0 = int(os.environ.get("QF0", 3))
    for q in range(7, -1, -1):
        first = (q == 7)
        if q == QF0 + 1:
            k(f"""
            s_lshr_b32 s40, s2, 4
            s_lshl_b32 s40, s40, 9
            s_add_u32 s40, s40, {L.PFM}
            s_mov_b32 s41, {L.PFS}
            v_lshrrev_b32 v16, 2, v1
            v_mul_u32_u24 v16, {40*128}, v16
            v_and_b32 v17, 3, v1
            v_lshl_add_u32 v16, v17, 7, v16
            v_lshlrev_b32 v18, 7, v1
            v_mov_b32 v17, s46
            s_add_u32 s42, s41, 8192
            buffer_load_dword v19, v18, s[28:31], s41 offen sc1
            buffer_load_dword v28, v18, s[28:31], s42 offen sc1
            s_mov_b64 exec, 0xfff
            buffer_load_dword v17, v16, s[28:31], s40 offen sc1
            s_mov_b64 exec, -1
            """)
        if q == QF0:
            lp = k.newlab("mp"); ld = k.newlab("md")
            k("s_mov_b32 s47, 0")
            k.lab(lp)
            k(f"""
            s_waitcnt vmcnt(0)
            v_cmp_ne_u32 vcc, s46, v17
            v_cmp_ne_u32 s[66:67], s46, v19
            v_cmp_ne_u32 s[68:69], s46, v28
            s_add_u32 s47, s47, 1
            s_nop 2
            s_or_b64 vcc, vcc, s[66:67]
            s_or_b64 vcc, vcc, s[68:69]
            s_cmp_ge_u32 s47, {SPIN}
            s_cbranch_scc1 {ld}
            s_cbranch_vccz {ld}
            buffer_load_dword v19, v18, s[28:31], s41 offen sc1
            buffer_load_dword v28, v18, s[28:31], s42 offen sc1
            s_mov_b64 exec, 0xfff
            buffer_load_dword v17, v16, s[28:31], s40 offen sc1
            s_mov_b64 exec, -1
            s_branch {lp}
            """)
            k.lab(ld)
            k(f"""
            s_lshl_b32 s40, s2, 4
            s_add_u32 s40, s40, {L.MODP}
            v_lshrrev_b32 v16, 2, v1
            v_mul_u32_u24 v16, 2560, v16
            v_and_b32 v17, 3, v1
            v_mul_u32_u24 v17, {3840*4}, v17
            v_add_u32 v16, v16, v17
            v_lshlrev_b32 v18, 4, v1
            s_mov_b64 exec, 0xfff
            buffer_load_dwordx4 v[20:23], v16, s[28:31], s40 offen sc1
            s_mov_b64 exec, -1
            """)
            k("s_lshl_b32 s43, s20, 10")
            for e in range(4):
                lateq.append(f"s_add_u32 m0, s43, {QL + 16384 + 4096*e}\ns_add_u32 s39, s43, {L.ST1 + 4096*e}\nbuffer_load_dwordx4 v18, s[28:31], s39 offen sc1 lds")
                lateq.append(f"s_add_u32 m0, s43, {QL + 4096*e}\ns_add_u32 s39, s38, {L.Q4 + e*32*20480}\nbuffer_load_dwordx4 v4, s[28:31], s39 offen sc1 lds")
        k("s_waitcnt lgkmcnt(0)")
        apl = areads(APk, 256*(q+8))
        if first:
            for ks in range(8):
                mfma(AY, AM + 4*ks, B1 + 4*ks, ks == 0)
                if ks == 0:
                    for x in prd[:16]: k(x)
                elif ks == 1:
                    for x in prd[16:]: k(x)
                elif ks == 2:
                    k("s_waitcnt lgkmcnt(15)")
                    k("s_waitcnt lgkmcnt(0)")
                    for x in al0[:4]: k(x)
                else:
                    for x in al0[4 + (ks-3)*6: 4 + (ks-2)*6]: k(x)
            k("s_nop 0")
            phase(AX, AM, B0, True, apl, alp[:16] + shift_ops(AY, False) + alp[16:] + ["s_nop 0"])
        else:
            phase(AY, AM, B1, False, apl, shift_ops(AP_, True))
            lq = lateq[:2]; lateq = lateq[2:]
            phase(AX, AM, B0, False, lq, shift_ops(AY, False) if q > 0 else [])
        k("s_waitcnt lgkmcnt(0)")
        aml = areads(AM, 256*(q-1)) if q > 0 else []
        lq = lateq[:2]; lateq = lateq[2:]
        phase(AP_, APk, BP, first, aml + lq, shift_ops(AX, False) if q > 0 else [], rg=5 if not lq else 8)
    k.stamp(3)
    k("s_nop 11")
    for r in range(16):
        k(f"v_add_f32_dpp v{AX+r}, v{AP_+r}, v{AX+r} row_shr:8 {DPP}")
    k("""
    s_mov_b32 s42, 0xff00ff00
    s_mov_b32 s43, 0xff00ff00
    s_mov_b64 exec, s[42:43]
    """)
    for r in range(16):
        k(f"v_add_f32 v{AY+r}, v{AP_+r}, v{AY+r}")
    k("s_mov_b64 exec, -1")
    k(f"""
    v_mul_u32_u24 v16, 264, v7
    v_lshl_add_u32 v16, v9, 5, v16
    v_lshl_add_u32 v16, v8, 2, v16
    v_add_u32 v16, s34, v16
    """)
    for r in range(16):
        k(f"v_cvt_pk_bf16_f32 v{32+r}, v{AX+r}, v{AY+r}")
    for r in range(16):
        k(f"ds_write_b32 v16, v{32+r} offset:{64*(r>>2)+8*(r&3)}")
    k(f"""
    s_lshl_b32 s44, s32, 16
    s_and_b32 s45, s32, 0xffff0000
    s_lshl_b32 s46, s33, 16
    s_and_b32 s47, s33, 0xffff0000
    v_mul_u32_u24 v17, 264, v2
    v_lshl_add_u32 v17, v1, 2, v17
    s_waitcnt lgkmcnt(0)
    s_barrier
    """)
    Y = 48
    KV = 224
    k(f"""
    v_mul_u32_u24 v19, 272, v2
    v_lshlrev_b32 v18, 2, v1
    v_sub_u32 v19, v19, v18
    v_add_u32 v19, {4352 + 252}, v19
    """)
    for e in range(4):
        for c in range(4):
            k(f"ds_read_b32 v{Y+4*e+c}, v17 offset:{c*WREG+1056*e}")
    k("s_waitcnt lgkmcnt(0)")
    for e in range(4):
        for c in range(4):
            k(f"ds_read_b32 v{KV+4*e+c}, v19 offset:{c*WREG+1088*e}")
    T = 64; O = 96
    QF, SR, PP = 112, 144, 160
    k(f"""
    v_mov_b32 v28, s44
    v_mov_b32 v29, s45
    v_mov_b32 v30, s46
    v_mov_b32 v31, s47
    s_waitcnt vmcnt(0)
    """)
    k(f"v_lshlrev_b32 v18, 4, v0")
    k(f"v_add_u32 v18, {QL}, v18")
    k("s_waitcnt lgkmcnt(0)")
    for e in range(4):
        k(f"ds_read_b128 {vr(176+4*e,4)}, v18 offset:{4096*e}")
        k(f"ds_read_b128 {vr(SR+4*e,4)}, v18 offset:{16384+4096*e}")
    for ctl in ("quad_perm:[1,0,3,2]", "quad_perm:[2,3,0,1]"):
        k("s_nop 1")
        for c in range(4): k(f"v_add_f32_dpp v{20+c}, v{20+c}, v{20+c} {ctl} row_mask:0xf bank_mask:0xf")
    k("s_nop 1")
    for c in (0, 2): k.round2(20 + c, 21 + c, 24)
    for c in range(4): k(f"v_add_f32 v{24+c}, 1.0, v{20+c}")
    for c in (0, 2): k.round2(24 + c, 25 + c, 10)
    k("s_nop 1")
    for c in range(4):
        k(f"v_readlane_b32 s{68+c}, v{20+c}, 0")
        k(f"v_readlane_b32 s{72+c}, v{24+c}, 4")
        k(f"v_readlane_b32 s{76+c}, v{20+c}, 8")
    k("s_nop 1")
    for c in range(4): k(f"v_mov_b32 v{10+c}, s{76+c}")
    for c in range(4):
        k(f"v_mul_f32 v{PP+c}, s{72+c}, v{10+c}")
        k(f"v_mul_f32 v{PP+4+c}, s{68+c}, v{10+c}")
    k("s_waitcnt lgkmcnt(0)")
    BCX = "op_sel:[0,1,0] op_sel_hi:[1,1,0]"
    for e in range(4):
        for c in range(4):
            k.unpack(T + 4 + c, T + c, KV + 4*e + c)
        for c in range(4):
            k.unpack(T + 10 + c, T + 14 + c, Y + 4*e + c)
        for d in range(4):
            k.unpack(QF + 2*d, QF + 2*d + 1, 176 + 4*e + d)
        for d in range(4):
            k(f"v_pk_fma_f32 {vr(T+2*d,2)}, {vr(T+2*d,2)}, {vr(28+2*(d%2),2)}, {vr(T+10+2*d,2)}")
        for d in range(4):
            S_ = SR + 4*e + 2*(d // 2)
            k(f"v_pk_fma_f32 {vr(QF+8+2*d,2)}, {vr(QF+2*d,2)}, {vr(S_,2)}, {vr(S_,2)} {BCX}")
        for d in range(4):
            k(f"v_pk_fma_f32 {vr(QF+8+2*d,2)}, {vr(QF+8+2*d,2)}, {vr(PP+2*(d%2),2)}, {vr(PP+4+2*(d%2),2)}")
        for d in range(4):
            k(f"v_pk_fma_f32 {vr(T+2*d,2)}, {vr(T+2*d,2)}, {vr(QF+8+2*d,2)}, {vr(QF+2*d,2)}")
        for d in range(4):
            k(f"v_cvt_pk_bf16_f32 v{O+4*e+d}, v{T+2*d}, v{T+2*d+1}")
    k(f"s_add_u32 s39, s38, {L.YT}")
    for e in range(4):
        k(f"buffer_store_dwordx4 {vr(O+4*e,4)}, v4, s[28:31], s39 offen")
        k(f"s_add_u32 s39, s39, {32*20480}")
    if os.environ.get("DBGSPIN"):
        k("""
        s_cmp_lg_u32 s2, 0
        s_cbranch_scc1 dbg_skip
        v_mov_b32 v1, 0
        v_mov_b32 v20, s70
        v_mov_b32 v21, s71
        v_mov_b32 v22, s72
        v_mov_b32 v23, s73
        buffer_store_dwordx4 v[20:23], v1, s[48:51], 0 offen offset:16
        """)
        k.lab("dbg_skip")
    k.stamp(4)
    k("s_waitcnt vmcnt(0)")
    k.stamp(5)
    k.stamp_end(6)
    k("s_endpgm")

    k.lab("p_pack")
    k(f"""
    s_sub_u32 s21, s2, 416                ; h
    s_mul_i32 s34, s20, {WREG}
    s_cmp_ge_u32 s20, 4
    s_cbranch_scc1 {end}
    s_cmp_eq_u32 s20, 0
    s_cbranch_scc1 k1_pack
    s_cmp_eq_u32 s20, 1
    s_cbranch_scc0 p_pk2
    s_cmp_lt_u32 s21, 58
    s_cbranch_scc0 p_pk1
    s_add_u32 s21, s21, 96
    s_branch k1_pack
    """)
    k.lab("p_pk1")
    k(f"""
    s_sub_u32 s21, s21, 58
    s_cmp_ge_u32 s21, 30
    s_cbranch_scc1 {end}
    s_branch p_fin
    """)
    k.lab("p_pk2")
    k(f"""
    s_sub_u32 s22, s20, 2
    s_mul_i32 s22, s22, 96
    s_add_u32 s21, s21, s22
    s_cmp_ge_u32 s21, 120
    s_cbranch_scc1 {end}
    s_add_u32 s21, s21, 120
    """)
    nonce_issue(250, 251)
    k("s_branch p_mod")
    k.lab("p_fin")
    k("s_add_u32 s21, s21, 30")
    nonce_issue(17, 16)
    k("s_waitcnt vmcnt(0)")
    nonce_get(17, 16)
    k(f"""
    s_lshl_b32 s40, s21, 9
    s_add_u32 s40, s40, {L.PFM}
    v_lshlrev_b32 v16, 7, v1
    """)
    poll(16, 17, "s_mov_b64 exec, 15", "s40")
    k(f"""
    v_lshlrev_b32 v7, 2, v1
    s_lshl_b32 s22, s21, 8
    s_add_u32 s23, s22, {L.MODP}
    """)
    for part in range(4):
        k(f"buffer_load_dword v{10+part}, v7, s[28:31], s23 offen sc1")
        if part < 3: k(f"s_add_u32 s23, s23, {3840*4}")
    l1 = k.newlab("f1"); l2 = k.newlab("f2")
    k(f"""
    s_waitcnt vmcnt(0)
    v_add_f32 v10, v10, v11
    v_add_f32 v12, v12, v13
    s_nop 0
    v_add_f32 v10, v10, v12
    s_nop 0
    v_cvt_pk_bf16_f32 v10, v10, v10
    s_nop 0
    v_lshlrev_b32 v10, 16, v10
    s_sub_u32 s24, s21, 10
    s_cmp_lt_u32 s24, 10
    s_cbranch_scc1 {l1}
    s_sub_u32 s24, s21, 40
    s_cmp_lt_u32 s24, 10
    s_cbranch_scc0 {l2}
    """)
    k.lab(l1)
    k("""
    v_add_f32 v10, 1.0, v10
    s_nop 0
    v_cvt_pk_bf16_f32 v10, v10, v10
    s_nop 0
    v_lshlrev_b32 v10, 16, v10
    """)
    k.lab(l2)
    k(f"""
    s_add_u32 s22, s22, {L.MODF}
    buffer_store_dword v10, v7, s[28:31], s22 offen
    """)
    k("s_endpgm")
    k.lab("k1_pack")
    labs = [k.newlab("pk") for _ in range(4)]
    k(f"""
    v_lshrrev_b32 v3, 3, v1
    v_and_b32 v4, 7, v1                    ; chunk
    v_mul_u32_u24 v5, 144, v3
    v_lshl_add_u32 v5, v4, 4, v5
    v_add_u32 v5, s34, v5
    v_and_b32 v6, 15, v1
    v_lshrrev_b32 v7, 4, v1                ; g
    v_lshrrev_b32 v8, 2, v6
    v_lshl_add_u32 v8, v7, 3, v8           ; 8g + (i>>2)
    v_mul_u32_u24 v8, 144, v8
    v_and_b32 v9, 3, v6
    v_lshl_add_u32 v8, v9, 3, v8
    v_add_u32 v8, s34, v8
    v_lshlrev_b32 v9, 4, v1                ; lane*16
    s_cmp_lt_u32 s21, 20
    s_cbranch_scc1 {labs[0]}
    s_cmp_lt_u32 s21, 40
    s_cbranch_scc1 {labs[1]}
    s_cmp_lt_u32 s21, 94
    s_cbranch_scc1 {labs[2]}
    s_branch {labs[3]}
    """)
    for m in range(4):
        k.lab(labs[m])
        N = [640, 640, 1728, 640][m]; Kd = [640, 640, 640, 1728][m]
        pitch = N * 2
        nks = 10 if m < 3 else 9
        ub = [0, 20, 40, 94][m]
        ncb = N // 64
        k.srd(24, 12 + 2*m, Kd * N * 2)
        magic = {10: (52429, 19), 27: (2428, 16)}[ncb]
        k(f"""
        s_sub_u32 s32, s21, {ub}
        s_mul_i32 s33, s32, {magic[0]}
        s_lshr_b32 s33, s33, {magic[1]}       ; kq
        s_mul_i32 s35, s33, {ncb}
        s_sub_u32 s35, s32, s35               ; cbk
        v_mul_u32_u24 v10, {pitch}, v3
        v_lshl_add_u32 v10, v4, 4, v10
        s_mul_i32 s36, s33, {nks*32*pitch}
        s_lshl_b32 s37, s35, 7
        s_add_u32 s36, s36, s37
        """)
        R = 32
        for i in range(nks):
            for j in range(4):
                k(f"buffer_load_dwordx4 {vr(R+16*i+4*j,4)}, v10, s[24:27], s36 offen {NT}")
                if not (i == nks - 1 and j == 3): k(f"s_add_u32 s36, s36, {8*pitch}")
        for nt in range(4):
            k(f"s_lshl_b32 s36, s35, 2")
            k(f"s_add_u32 s36, s36, {nt}")
            if m < 2:
                k(f"""
                s_mul_i32 s38, s36, 6554
                s_lshr_b32 s38, s38, 16
                s_mul_i32 s39, s38, 10
                s_sub_u32 s39, s36, s39
                s_cmp_ge_u32 s39, 5
                s_cselect_b32 s40, 1, 0
                s_sub_u32 s41, s39, 6
                s_cmp_eq_u32 s39, 5
                s_cselect_b32 s41, 4, s41
                s_cmp_eq_u32 s40, 1
                s_cselect_b32 s39, s41, s39
                s_mul_i32 s37, s38, 200
                s_mul_i32 s40, s40, 100
                s_add_u32 s37, s37, s40
                s_mul_i32 s40, s33, 50
                s_add_u32 s37, s37, s40
                s_add_u32 s37, s37, s39
                s_lshl_b32 s37, s37, 10
                s_add_u32 s{44+nt}, s37, {L.W1C if m == 0 else L.W2C}
                s_movk_i32 s{48+nt}, 5120
                """)
            elif m == 2:
                k(f"""
                s_mul_i32 s38, s36, 9363
                s_lshr_b32 s38, s38, 16
                s_mul_i32 s39, s38, 7
                s_sub_u32 s39, s36, s39
                s_sub_u32 s41, s39, 1
                s_cmp_eq_u32 s39, 0
                s_cselect_b32 s41, 6, s41
                s_and_b32 s40, s38, 1
                s_cmp_eq_u32 s40, 1
                s_cselect_b32 s39, s41, s39
                s_mov_b32 s41, 4
                s_mov_b32 s40, s39
                s_cmp_ge_u32 s39, 4
                s_cselect_b32 s41, 2, s41
                s_add_u32 s42, s39, 76
                s_cmp_ge_u32 s39, 4
                s_cselect_b32 s40, s42, s40
                s_cmp_eq_u32 s39, 6
                s_cselect_b32 s41, 1, s41
                s_cselect_b32 s40, 120, s40
                s_mul_i32 s42, s33, 10
                s_mul_i32 s42, s42, s41
                s_add_u32 s40, s40, s42
                s_mul_i32 s37, s38, 140
                s_add_u32 s37, s37, s40
                s_lshl_b32 s37, s37, 10
                s_add_u32 s{44+nt}, s37, {L.W3C}
                s_lshl_b32 s{48+nt}, s41, 10
                """)
            else:
                k(f"""
                s_mul_i32 s38, s36, 13108
                s_lshr_b32 s38, s38, 16
                s_mul_i32 s39, s38, 5
                s_sub_u32 s39, s36, s39
                s_sub_u32 s41, s39, 1
                s_cmp_eq_u32 s39, 0
                s_cselect_b32 s41, 4, s41
                s_and_b32 s40, s38, 1
                s_cmp_eq_u32 s40, 1
                s_cselect_b32 s39, s41, s39
                s_mul_i32 s40, s33, 21846
                s_lshr_b32 s40, s40, 16
                s_mul_i32 s41, s40, 3
                s_sub_u32 s41, s33, s41
                s_mul_i32 s37, s38, 270
                s_mul_i32 s41, s41, 90
                s_add_u32 s37, s37, s41
                s_mul_i32 s40, s40, 5
                s_add_u32 s37, s37, s40
                s_add_u32 s37, s37, s39
                s_lshl_b32 s37, s37, 10
                s_add_u32 s{44+nt}, s37, {L.W4C}
                s_movk_i32 s{48+nt}, 10240
                """)
        cs = m in (0, 2)
        if cs:
            for nt in range(4): k(f"v_mov_b32 v{12+nt}, 0")
            k("v_mov_b32 v16, 0x3f803f80")
        F = 200
        nld = nks * 4
        def wr(i):
            k(f"s_waitcnt vmcnt({min(63, nld - 4*(i+1) + stores[0])})")
            for j in range(4):
                k(f"ds_write_b128 v5, {vr(R+16*i+4*j,4)} offset:{4608*(i&1) + 1152*j}")
        stores = [0]
        wr(0)
        for i in range(nks):
            k("s_waitcnt lgkmcnt(0)")
            for nt in range(4):
                k(f"ds_read_b64_tr_b16 {vr(F+16*(i&1)+4*nt,2)}, v8 offset:{4608*(i&1) + 32*nt}")
                k(f"ds_read_b64_tr_b16 {vr(F+16*(i&1)+4*nt+2,2)}, v8 offset:{4608*(i&1) + 32*nt + 576}")
            if i + 1 < nks: wr(i + 1)
            k(f"s_waitcnt lgkmcnt({4 if i + 1 < nks else 0})")
            for nt in range(4):
                k(f"buffer_store_dwordx4 {vr(F+16*(i&1)+4*nt,4)}, v9, s[28:31], s{44+nt} offen")
                k(f"s_add_u32 s{44+nt}, s{44+nt}, s{48+nt}")
                stores[0] += 1
                if cs:
                    for d in range(4): k(f"v_dot2_f32_bf16 v{12+nt}, v{F+16*(i&1)+4*nt+d}, v16, v{12+nt}")
        if cs:
            k("s_nop 2")
            for x in gen3.reduce_g_ops([12, 13, 14, 15], 20): k(x)
            k(f"""
            s_mul_i32 s38, s33, {1792*4}
            s_lshl_b32 s39, s35, 8
            s_add_u32 s38, s38, s39
            s_add_u32 s38, s38, {L.CS3P if m == 2 else L.CS1P}
            v_lshlrev_b32 v14+0, 0, v14
            """.replace("v_lshlrev_b32 v14+0, 0, v14", "v_lshlrev_b32 v17, 2, v1"))
            k("s_mov_b64 exec, 0xffff")
            for nt in range(4):
                k(f"buffer_store_dword v{12+nt}, v17, s[28:31], s38 offen offset:{64*nt}")
        k("s_endpgm")
    return k

def build(kerns, path):
    hdr = open(os.path.join(os.path.dirname(os.path.abspath(__file__)), "..", NAME + ".s.ref")).read().split("\n")
    com = [l for l in hdr if l.startswith(";") and "@launch" not in l and "Override launch" not in l and "grid=ceil" not in l]
    s = "\n".join(com) + "\n"
    for k in kerns:
        s += f"; @launch kernel={k.name} grid=({k.grid},1,1) block=({k.block},1,1) lds={k.lds}\n"
    s += '.amdgcn_target "amdgcn-amd-amdhsa--gfx950"\n.text\n'
    for k in kerns:
        s += k.text()
    s += '.section .rodata,"a"\n'
    for k in kerns:
        s += k.kd()
    open(path, "w").write(s)

if __name__ == "__main__":
    out = sys.argv[1] if len(sys.argv) > 1 else os.path.join(os.path.dirname(os.path.abspath(__file__)), "..", NAME + ".s")
    kerns = [gen_p()]
    try:
        import gen3
        kerns += [gen3.gen_chain(Kern, None)]
    except ImportError:
        raise
    build(kerns, out)
    print("wrote", out)
```

```python
import sys, os
sys.path.insert(0, os.path.dirname(os.path.abspath(__file__)))
import layout as L

NAME = "adaLN_cond__ssm_conv_h3__mixer_s_mlp__prompt"
SZ_SD = 2048 * 640 * 2

class Kern:
    order = {}
    def __init__(self, name, grid, block, lds, vgpr=256, sgpr=102, agpr=0):
        self.name, self.grid, self.block, self.lds = name, grid, block, lds
        self.vgpr, self.sgpr, self.agpr = vgpr, (102 if (os.environ.get("PROF") or os.environ.get("PROF2")) else sgpr), agpr
        self.L = []
        self.nlab = 0
    def __call__(self, s):
        for ln in s.strip("\n").split("\n"):
            ln = ln.strip()
            if ln:
                self.L.append("    " + ln)
    def lab(self, s):
        self.L.append(s + ":")
    def newlab(self, p="L"):
        self.nlab += 1
        return f"{self.name}_{p}{self.nlab}"
    def srd(self, d, b, size, off=0):
        if off:
            self(f"s_add_u32 s{d}, s{b}, {off}")
            self(f"s_addc_u32 s{d+1}, s{b+1}, 0")
        else:
            self(f"s_mov_b32 s{d}, s{b}")
            self(f"s_mov_b32 s{d+1}, s{b+1}")
        self(f"s_mov_b32 s{d+2}, {size}")
        self(f"s_mov_b32 s{d+3}, 0x00020000")
    def round2(self, a, b, t):
        self(f"v_cvt_pk_bf16_f32 v{t}, v{a}, v{b}")
        self(f"v_lshlrev_b32 v{a}, 16, v{t}")
        self(f"v_and_b32 v{b}, 0xffff0000, v{t}")
    def unpack(self, lo, hi, src):
        self(f"v_lshlrev_b32 v{lo}, 16, v{src}")
        self(f"v_and_b32 v{hi}, 0xffff0000, v{src}")
    def stamp(self, i):
        if os.environ.get("PROF"):
            self(f"s_memtime s[{80+2*i}:{81+2*i}]")
    def stamp_end(self, n):
        if os.environ.get("PROF"):
            l = self.newlab("prof")
            self(f"""
            s_waitcnt lgkmcnt(0)
            s_cmp_lg_u32 s2, {int(os.environ.get("PROFWG", "0"))}
            s_cbranch_scc1 {l}
            s_load_dwordx2 s[76:77], s[0:1], 112
            s_waitcnt lgkmcnt(0)
            s_mov_b32 s78, 256
            s_mov_b32 s79, 0x00020000
            v_mov_b32 v1, 0
            """)
            for i in range(n):
                self(f"s_sub_u32 s75, s{80+2*i}, s80")
                self(f"v_mov_b32 v2, s75")
                self(f"buffer_store_dword v2, v1, s[76:79], 0 offen offset:{4*i}")
            self.lab(l)
    def text(self):
        sc = self.name in os.environ.get("SC1", "prep_kernel,chain_kernel").split(",")
        Ls = [(l + " sc1" if (sc and l.strip().startswith("buffer_store")) else l) for l in self.L]
        if os.environ.get("PROF2"):
            idx = Kern.order.setdefault(self.name, len(Kern.order))
            pre = ["    s_memrealtime s[90:91]", "    v_lshrrev_b32 v1, 6, v0", "    s_mov_b32 s93, s2", "    v_readfirstlane_b32 s92, v1"]
            Ls = [(f"    s_branch {self.name}_pend" if l.strip() == "s_endpgm" else l) for l in Ls]
            post = f"""{self.name}_pend:
    s_mov_b64 exec, -1
    s_waitcnt vmcnt(0) lgkmcnt(0)
    s_memrealtime s[94:95]
    s_load_dwordx2 s[96:97], s[0:1], 120
    s_lshl_b32 s93, s93, 3
    s_add_u32 s93, s93, s92
    s_lshl_b32 s93, s93, 4
    s_add_u32 s93, s93, {0x4000000 + idx * 0x20000}
    s_getreg_b32 s92, hwreg(HW_REG_XCC_ID)
    s_waitcnt lgkmcnt(0)
    s_mov_b32 s98, 0x10000000
    s_mov_b32 s99, 0x00020000
    v_mov_b32 v0, s90
    v_mov_b32 v1, s94
    v_mov_b32 v2, s92
    v_mov_b32 v3, 0x1234
    v_mov_b32 v4, s93
    s_mov_b64 exec, 1
    buffer_store_dwordx4 v[0:3], v4, s[96:99], 0 offen
    s_endpgm""".split("\n")
            Ls = pre + Ls + post
        return (f".globl {self.name}\n.p2align 8\n.type {self.name},@function\n{self.name}:\n" + "\n".join(Ls) + "\n")
    def kd(self):
        acc = (self.vgpr + 3) // 4 * 4
        nfv = self.vgpr if not self.agpr else acc + self.agpr
        return f""".p2align 6
.amdhsa_kernel {self.name}
  .amdhsa_next_free_vgpr {nfv}
  .amdhsa_next_free_sgpr {self.sgpr}
  .amdhsa_accum_offset {acc}
  .amdhsa_group_segment_fixed_size 0
  .amdhsa_kernarg_size 128
  .amdhsa_user_sgpr_count 2
  .amdhsa_user_sgpr_kernarg_segment_ptr 1
  .amdhsa_system_sgpr_workgroup_id_x 1
  .amdhsa_float_denorm_mode_32 3
.end_amdhsa_kernel
"""

def vr(a, n):
    return f"v[{a}:{a+n-1}]"

MERGE = os.environ.get("MERGE", "0") == "1"
CNT_OFF = 128

def signal(k, cnt_sgpr_or_imm):
    l = k.newlab("sig")
    k(f"""
    s_mov_b64 exec, -1
    s_waitcnt vmcnt(0)
    s_barrier
    v_cmp_eq_u32 vcc, 0, v0
    s_and_saveexec_b64 s[42:43], vcc
    s_cbranch_execz {l}
    v_mov_b32 v1, 1
    v_mov_b32 v2, {cnt_sgpr_or_imm}
    buffer_atomic_add v1, v2, s[48:51], 0 offen
    """)
    k.lab(l)
    k("s_endpgm")

def poll(k, voff, target, vtmp):
    l = k.newlab("poll"); d = k.newlab("polld")
    k("s_mov_b32 s52, 0")
    k("s_cmp_lg_u32 s20, 0")
    k(f"s_cbranch_scc1 {d}")
    k.lab(l)
    k(f"""
    buffer_load_dword v{vtmp}, v{voff}, s[48:51], 0 offen sc0 sc1
    s_waitcnt vmcnt(0)
    v_readfirstlane_b32 s53, v{vtmp}
    s_add_u32 s52, s52, 1
    s_cmp_ge_u32 s53, {target}
    s_cbranch_scc1 {d}
    s_cmp_ge_u32 s52, 0x100000
    s_cbranch_scc1 {d}
    s_sleep {int(os.environ.get("SLP", 8))}
    s_branch {l}
    """)
    k.lab(d)
    k("s_barrier")


WREG = 13824
KB = 9472
NT = os.environ.get("NT", "nt")
def gen_p():
    import gen3
    k = Kern("prep_kernel", 512, 512, 4 * WREG + 32768 + 16384 + 64, vgpr=256, sgpr=100)
    end = "prep_end"
    SPIN = int(os.environ.get("SPIN", 200000))
    CONV0 = 608
    k(f"""
    s_cmp_ge_u32 s2, 512
    s_cbranch_scc1 {end}
    s_load_dwordx4 s[4:7], s[0:1], 8       ; k v
    s_load_dwordx2 s[8:9], s[0:1], 24      ; shift_k
    s_load_dwordx2 s[10:11], s[0:1], 120   ; ws
    s_load_dwordx8 s[12:19], s[0:1], 56    ; w1 w2 w3 w4
    s_load_dwordx2 s[60:61], s[0:1], 0     ; q
    s_load_dwordx2 s[62:63], s[0:1], 96    ; w_mod
    s_load_dwordx2 s[52:53], s[0:1], 88    ; c
    s_load_dwordx2 s[54:55], s[0:1], 112   ; debug
    s_load_dwordx4 s[56:59], s[0:1], 32
    s_memrealtime s[64:65]
    v_lshrrev_b32 v2, 6, v0
    v_and_b32 v1, 63, v0                   ; lane
    v_readfirstlane_b32 s20, v2
    s_waitcnt lgkmcnt(0)
    """)
    k.srd(28, 10, 0x10000000)
    k.srd(48, 54, 256)
    def nonce_issue(vn, vz):
        k(f"v_mov_b32 v{vz}, 0")
        k(f"buffer_load_dword v{vn}, v{vz}, s[48:51], 0 offen sc1")
    def nonce_get(vn, vz):
        l = k.newlab("nn"); d = k.newlab("nd")
        k("s_mov_b32 s47, 0")
        k.lab(l)
        k(f"""
        v_readfirstlane_b32 s46, v{vn}
        s_add_u32 s47, s47, 1
        s_cmp_lg_u32 s46, 0
        s_cbranch_scc1 {d}
        s_cmp_ge_u32 s47, {SPIN}
        s_cbranch_scc1 {d}
        buffer_load_dword v{vn}, v{vz}, s[48:51], 0 offen sc1
        s_waitcnt vmcnt(0)
        s_branch {l}
        """)
        k.lab(d)
    def flag_store(soff, vt):
        k(f"""
        v_mov_b32 v{vt}, s46
        v_mov_b32 v{vt+1}, 0
        s_mov_b64 exec, 1
        buffer_store_dword v{vt}, v{vt+1}, s[28:31], {soff} offen
        """)
    def poll(vaddr, vdat, execmask, sbase):
        l = k.newlab("pl"); d = k.newlab("pd")
        k(f"s_mov_b32 s47, 0")
        k(execmask)
        k.lab(l)
        k(f"""
        buffer_load_dword v{vdat}, v{vaddr}, s[28:31], {sbase} offen sc1
        s_add_u32 s47, s47, 1
        s_waitcnt vmcnt(0)
        v_cmp_ne_u32 vcc, s46, v{vdat}
        s_cmp_ge_u32 s47, {SPIN}
        s_cbranch_scc1 {d}
        s_cbranch_vccz {d}
        s_sleep {int(os.environ.get("PSLP", 14))}
        s_branch {l}
        """)
        k.lab(d)
        k("s_mov_b64 exec, -1")
    k(f"""
    s_cmp_ge_u32 s2, 416
    s_cbranch_scc1 p_pack
    s_cmp_ge_u32 s2, 256
    s_cbranch_scc1 p_conv
    s_cmp_ge_u32 s2, 160
    s_cbranch_scc1 p_aux
    """)
    l0 = k.newlab("n0")
    k(f"""
    s_or_b32 s21, s2, s20
    s_cmp_lg_u32 s21, 0
    s_cbranch_scc1 {l0}
    s_or_b32 s64, s64, 1
    v_mov_b32 v3, s64
    v_mov_b32 v4, 0
    s_mov_b64 exec, 1
    buffer_store_dword v3, v4, s[48:51], 0 offen
    s_mov_b64 exec, -1
    """)
    k.lab(l0)
    k("s_mov_b32 s45, s20")
    KVP = os.environ.get("KVPROF")
    def kst(i):
        if KVP: k(f"s_memrealtime s[{70+2*i}:{71+2*i}]")
    kst(0)
    k.srd(16, 4, SZ_SD); k.srd(20, 6, SZ_SD); k.srd(24, 8, 640 * 8)
    k(f"""
    s_lshr_b32 s47, s45, 2           ; half
    s_lshl_b32 s46, s2, 1
    s_add_u32 s46, s46, s47          ; tile
    v_and_b32 v0, 255, v0
    s_mul_i32 s32, s46, 52429
    s_lshr_b32 s32, s32, 19
    s_mul_i32 s33, s32, 10
    s_sub_u32 s33, s46, s33          ; cb
    s_lshl_b32 s43, s47, 13
    v_and_b32 v1, 15, v0             ; cgl
    v_lshrrev_b32 v2, 4, v0          ; rg
    s_lshl_b32 s34, s32, 6
    v_lshl_add_u32 v3, v2, 2, s34    ; s0
    v_mul_u32_u24 v4, 1280, v3
    s_lshl_b32 s35, s33, 7
    v_lshl_add_u32 v5, v1, 3, s35
    v_add_u32 v4, v4, v5             ; voff
    v_subrev_u32 v6, 3840, v4
    v_subrev_u32 v7, 2560, v4
    v_subrev_u32 v8, 1280, v4
    """)
    KR, VR_, SKR, SKF, KF, KVF, T, QR = 10, 24, 32, 40, 56, 84, 100, 112
    k(f"buffer_load_dwordx2 {vr(KR,2)}, v6, s[16:19], 0 offen {NT}")
    k(f"buffer_load_dwordx2 {vr(KR+2,2)}, v7, s[16:19], 0 offen {NT}")
    k(f"buffer_load_dwordx2 {vr(KR+4,2)}, v8, s[16:19], 0 offen {NT}")
    for i in range(4):
        k(f"buffer_load_dwordx2 {vr(KR+6+2*i,2)}, v4, s[16:19], 0 offen offset:{i*1280} {NT}")
    k(f"v_lshlrev_b32 v{T}, 2, v5")
    k(f"buffer_load_dwordx4 {vr(SKR,4)}, v{T}, s[24:27], 0 offen")
    k(f"buffer_load_dwordx4 {vr(SKR+4,4)}, v{T}, s[24:27], 0 offen offset:16")
    for i in range(4):
        k(f"buffer_load_dwordx2 {vr(VR_+2*i,2)}, v4, s[20:23], 0 offen offset:{i*1280} {NT}")
    k(f"""
    v_lshlrev_b32 v{T}, 9, v1
    v_sub_u32 v{T+1}, 15, v2
    v_lshl_add_u32 v{T}, v{T+1}, 3, v{T}
    v_add_u32 v{T}, s43, v{T}
    v_lshrrev_b32 v{T+1}, 3, v0
    v_mul_u32_u24 v{T+1}, {L.KVR_CH}, v{T+1}
    v_and_b32 v{T+2}, 7, v0
    v_lshl_add_u32 v{T+3}, v{T+2}, 4, v{T+1}
    v_lshlrev_b32 v{T+4}, 4, v0
    v_add_u32 v{T+4}, s43, v{T+4}
    s_mul_i32 s36, s33, {64*L.KVR_CH}
    s_lshr_b32 s37, s32, 1
    s_mul_i32 s37, s37, 272
    s_add_u32 s36, s36, s37
    s_add_u32 s36, s36, {L.KVR}
    s_and_b32 s37, s32, 1
    s_lshl_b32 s38, s37, 7
    s_sub_u32 s38, 128, s38
    s_add_u32 s38, s38, s36
    s_lshl_b32 s44, s33, 5
    s_add_u32 s44, s44, s32
    s_lshl_b32 s44, s44, 7
    s_add_u32 s44, s44, {L.PFK}
    s_waitcnt vmcnt(4)
    """)
    kst(1)
    nonce_issue(122, 123)
    for c in range(4):
        k.unpack(SKF + c, SKF + 4 + c, SKR + 2*c)
        k.unpack(SKF + 8 + c, SKF + 12 + c, SKR + 2*c + 1)
    for r in range(7):
        k.unpack(KF + 4*r, KF + 4*r + 1, KR + 2*r)
        k.unpack(KF + 4*r + 2, KF + 4*r + 3, KR + 2*r + 1)
    for j in (3, 2, 1, 0):
        for s_ in range(4):
            for p in range(2):
                A = KVF + 4*s_ + 2*p
                if j == 3: k(f"v_pk_mul_f32 {vr(A,2)}, {vr(KF+4*s_+2*p,2)}, {vr(SKF+12+2*p,2)}")
                else: k(f"v_pk_fma_f32 {vr(A,2)}, {vr(KF+4*(s_+3-j)+2*p,2)}, {vr(SKF+4*j+2*p,2)}, {vr(A,2)}")
    O = KF; O2 = KF + 8
    for i in range(8):
        k(f"v_cvt_pk_bf16_f32 v{O+i}, v{KVF+2*i}, v{KVF+2*i+1}")
    k("s_waitcnt vmcnt(1)")
    for i in range(8):
        k(f"v_lshlrev_b32 v{KVF+2*i}, 16, v{O+i}")
        k(f"v_and_b32 v{KVF+2*i+1}, 0xffff0000, v{O+i}")
    for i in range(8):
        k.unpack(O + 8 + 2*(i % 4), O + 9 + 2*(i % 4), VR_ + i)
        k(f"v_pk_mul_f32 {vr(KVF+2*i,2)}, {vr(KVF+2*i,2)}, {vr(O+8+2*(i%4),2)}")
    for c in range(4):
        for d in range(2):
            k(f"v_cvt_pk_bf16_f32 v{O2+2*c+d}, v{KVF+4*(3-2*d)+c}, v{KVF+4*(2-2*d)+c}")
    kst(2)
    for c in range(4):
        k(f"ds_write_b64 v{T}, {vr(O2+2*c,2)} offset:{128*c}")
    k(f"""
    s_waitcnt lgkmcnt(0)
    s_barrier
    """)
    kst(3)
    for i in range(2):
        k(f"ds_read_b128 {vr(KR+4*i,4)}, v{T+4} offset:{4096*i}")
    for i in range(2):
        k(f"s_waitcnt lgkmcnt({1-i})")
        k(f"buffer_store_dwordx4 {vr(KR+4*i,4)}, v{T+3}, s[28:31], s38 offen")
        k(f"s_add_u32 s38, s38, {32*L.KVR_CH}")
    hl = k.newlab(); zl = k.newlab()
    k(f"""
    v_cmp_eq_u32 vcc, 0, v{T+2}
    s_and_saveexec_b64 s[66:67], vcc
    s_cmp_eq_u32 s37, 0
    s_cbranch_scc1 {hl}
    s_cmp_eq_u32 s32, 31
    s_cbranch_scc1 {zl}
    """)
    for i in range(2):
        k(f"buffer_store_dwordx4 {vr(KR+4*i,4)}, v{T+1}, s[28:31], s36 offen offset:{272+256}")
        k(f"s_add_u32 s36, s36, {32*L.KVR_CH}")
    k(f"s_branch {zl}")
    k.lab(hl)
    k(f"""
    s_cmp_lg_u32 s32, 0
    s_cbranch_scc1 {zl}
    v_mov_b32 v{T+8}, 0
    v_mov_b32 v{T+9}, 0
    v_mov_b32 v{T+10}, 0
    v_mov_b32 v{T+11}, 0
    """)
    for i in range(2):
        k(f"buffer_store_dwordx4 {vr(T+8,4)}, v{T+1}, s[28:31], s36 offen offset:256")
        k(f"s_add_u32 s36, s36, {32*L.KVR_CH}")
    k.lab(zl)
    k("s_mov_b64 exec, -1")
    kst(4)
    k("s_waitcnt vmcnt(0)")
    kst(5)
    k("s_barrier")
    kst(6)
    if KVP:
        k(f"""
        s_waitcnt lgkmcnt(0)
        s_lshl_b32 s41, s2, 3
        s_add_u32 s41, s41, s45
        s_lshl_b32 s41, s41, 5
        s_add_u32 s41, s41, {L.PROFOFF + 0x100000}
        v_mov_b32 v125, 0
        s_mov_b64 exec, 1
        """)
        for i in range(7):
            k(f"v_mov_b32 v126, s{70+2*i}")
            k(f"buffer_store_dword v126, v125, s[28:31], s41 offen offset:{4*i}")
            k("s_nop 0")
        k("s_mov_b64 exec, -1")
    k("s_and_b32 s45, s45, 3")
    k("s_cmp_lg_u32 s45, 0")
    k(f"s_cbranch_scc1 {end}")
    nonce_get(122, 123)
    flag_store("s44", 124)
    k("s_endpgm")
    k.lab(end)
    k("s_endpgm")

    k.lab("p_aux")
    nonce_issue(250, 251)
    if os.environ.get("AUXDELAY", "1") == "1":
        k("s_waitcnt vmcnt(0)")
        nonce_get(250, 251)
    k(f"""
    s_sub_u32 s21, s2, 160               ; a (0..95)
    s_cmp_ge_u32 s20, 6
    s_cbranch_scc1 {end}
    s_cmp_ge_u32 s20, 3
    s_cbranch_scc1 p_misc
    s_cmp_eq_u32 s20, 0
    s_cbranch_scc1 p_st
    s_cmp_eq_u32 s20, 2
    s_cbranch_scc1 p_aux2
    s_add_u32 s21, s21, 96
    s_cmp_lt_u32 s21, 128
    s_cbranch_scc1 p_st
    s_sub_u32 s21, s21, 128
    s_branch p_mod
    """)
    k.lab("p_aux2")
    k(f"""
    s_cmp_ge_u32 s21, 56
    s_cbranch_scc1 {end}
    s_add_u32 s21, s21, 64
    """)
    k.lab("p_mod")
    C, W, A, T = 8, 32, 112, 120
    k(f"""
    s_lshr_b32 s32, s21, 2               ; cb
    s_and_b32 s33, s21, 3                ; kq
    v_lshrrev_b32 v4, 3, v1              ; row_l
    v_and_b32 v3, 7, v1                  ; chunk
    s_mul_i32 s34, s33, 160
    v_add_u32 v4, s34, v4
    v_lshlrev_b32 v5, 1, v4              ; c offset
    v_mul_u32_u24 v6, 7680, v4
    s_lshl_b32 s36, s32, 7
    v_lshl_add_u32 v7, v3, 4, s36
    v_add_u32 v6, v6, v7
    """)
    k.srd(16, 52, 1280); k.srd(24, 62, 640 * 7680)
    k(f"""
    s_mul_i32 s35, s33, 320
    v_lshlrev_b32 v5, 3, v1
    buffer_load_dwordx2 v[30:31], v5, s[16:19], s35 offen
    s_mov_b32 s37, 0
    """)
    for it in range(20):
        k(f"buffer_load_dwordx4 {vr(W+4*it,4)}, v6, s[24:27], s37 offen {NT}")
        if it < 19: k(f"s_add_u32 s37, s37, {8*7680}")
    TT = T
    k(f"""
    s_mul_i32 s35, s20, {WREG}
    v_lshlrev_b32 v5, 4, v1
    v_add_u32 v5, s35, v5
    v_lshrrev_b32 v29, 3, v1
    v_lshlrev_b32 v29, 2, v29
    v_add_u32 v29, s35, v29
    s_waitcnt vmcnt(20)
    """)
    k.unpack(C, C + 1, 30); k.unpack(C + 2, C + 3, 31)
    for i in range(4): k(f"v_mul_f32 v{TT+i}, 0xbfb8aa3b, v{C+i}")
    for i in range(4): k(f"v_exp_f32 v{TT+i}, v{TT+i}")
    for i in range(4): k(f"v_add_f32 v{TT+i}, 1.0, v{TT+i}")
    for i in range(4): k(f"v_rcp_f32 v{TT+i}, v{TT+i}")
    k("s_nop 0")
    for i in range(4): k(f"v_mul_f32 v{C+i}, v{C+i}, v{TT+i}")
    for i in (0, 2): k.round2(C + i, C + i + 1, TT)
    k(f"ds_write_b128 v5, {vr(C,4)}")
    k("s_waitcnt lgkmcnt(0)")
    for it in range(20): k(f"ds_read_b32 v{C+it}, v29 offset:{32*it}")
    k("s_waitcnt lgkmcnt(0)")
    for j in range(8): k(f"v_mov_b32 v{A+j}, 0")
    for it in range(20):
        k(f"s_waitcnt vmcnt({19-it})")
        for d in range(4): k.unpack(T + 2*d, T + 2*d + 1, W + 4*it + d)
        sel = "op_sel:[0,0,0] op_sel_hi:[1,0,1]" if it % 2 == 0 else "op_sel:[0,1,0] op_sel_hi:[1,1,1]"
        for d in range(4):
            k(f"v_pk_fma_f32 {vr(A+2*d,2)}, {vr(T+2*d,2)}, {vr(C+(it&~1),2)}, {vr(A+2*d,2)} {sel}")
    k("s_nop 1")
    for d in range(8):
        k(f"v_add_f32_dpp v{A+d}, v{A+d}, v{A+d} row_ror:8 row_mask:0xf bank_mask:0xf")
    for x in gen3.reduce_g_ops([A + d for d in range(8)], T): k(x)
    k(f"""
    v_lshlrev_b32 v7, 5, v3
    s_mul_i32 s36, s33, {3840*4}
    s_lshl_b32 s37, s32, 8
    s_add_u32 s37, s37, s36
    s_add_u32 s37, s37, {L.MODP}
    s_lshl_b32 s44, s21, 7
    s_add_u32 s44, s44, {L.PFM}
    s_mov_b64 exec, 0xff
    buffer_store_dwordx4 {vr(A,4)}, v7, s[28:31], s37 offen
    buffer_store_dwordx4 {vr(A+4,4)}, v7, s[28:31], s37 offen offset:16
    s_mov_b64 exec, -1
    s_waitcnt vmcnt(0)
    """)
    nonce_get(250, 251)
    flag_store("s44", 132)
    k("s_endpgm")
    k.lab("p_st")
    k.srd(16, 60, SZ_SD)
    k(f"""
    v_lshrrev_b32 v5, 3, v1              ; r
    v_and_b32 v6, 7, v1                  ; c
    s_lshl_b32 s23, s21, 4
    v_add_u32 v7, s23, v5
    v_mul_u32_u24 v9, 1280, v7
    v_lshl_add_u32 v9, v6, 4, v9
    v_mov_b32 v20, 0x3f803f80
    s_mov_b32 s24, 0
    """)
    for p in range(2):
        for t in range(10):
            k(f"buffer_load_dwordx4 {vr(32+40*p+4*t,4)}, v9, s[16:19], s24 offen offset:{128*t} {NT}")
        if p < 1: k(f"s_add_u32 s24, s24, {8*1280}")
    k(f"""
    v_and_b32 v21, 1, v5
    v_lshl_add_u32 v21, v6, 1, v21
    v_lshlrev_b32 v21, 7, v21
    v_lshrrev_b32 v22, 1, v5
    v_xor_b32 v22, v22, v6
    v_lshl_add_u32 v21, v22, 4, v21
    v_xor_b32 v23, 64, v21
    s_mul_i32 s25, s21, 20480
    s_add_u32 s25, s25, {L.Q4}
    """)
    for i in range(4): k(f"v_mov_b32 v{10+i}, 0")
    for p in range(2):
        for t in range(10):
            k(f"s_waitcnt vmcnt({19 - (10*p + t) + (10*p + t)})") if False else None
            X = 32 + 40*p + 4*t
            k(f"s_waitcnt vmcnt({min(63, 19 - (10*p + t) + (10*p + t))})") if False else None
            nld = 10*p + t
            k(f"s_waitcnt vmcnt({19 - nld + nld})") if False else None
            k(f"s_waitcnt vmcnt(19)")
            for d in range(4):
                k(f"v_dot2_f32_bf16 v{10+2*p}, v{X+d}, v20, v{10+2*p}")
                k(f"v_dot2_f32_bf16 v{11+2*p}, v{X+d}, v{X+d}, v{11+2*p}")
            O = 120 + 4*(t & 1)
            k(f"v_mov_b32 v{O}, v{X}")
            k(f"v_mov_b32 v{O+1}, v{X+1}")
            k(f"v_mov_b32 v{O+2}, v{X+2}")
            k(f"v_mov_b32 v{O+3}, v{X+3}")
            k(f"v_mov_b32_dpp v{O}, v{X+2} row_ror:8 row_mask:0xf bank_mask:0xc")
            k(f"v_mov_b32_dpp v{O+1}, v{X+3} row_ror:8 row_mask:0xf bank_mask:0xc")
            k(f"v_mov_b32_dpp v{O+2}, v{X} row_ror:8 row_mask:0xf bank_mask:0x3")
            k(f"v_mov_b32_dpp v{O+3}, v{X+1} row_ror:8 row_mask:0xf bank_mask:0x3")
            k(f"s_add_u32 s26, s25, {2048*t}")
            k(f"buffer_store_dwordx4 {vr(O,4)}, v{21 if p == 0 else 23}, s[28:31], s26 offen")
    k("s_nop 2")
    for ctl in ("quad_perm:[1,0,3,2]", "quad_perm:[2,3,0,1]", "row_half_mirror"):
        for i in range(4):
            k(f"v_add_f32_dpp v{10+i}, v{10+i}, v{10+i} {ctl} row_mask:0xf bank_mask:0xf")
    for x in gen3.zipl(*[gen3.ln_ops(10+2*p, 11+2*p, 24+p, 640) for p in range(2)]): k(x)
    k(f"""
    v_lshlrev_b32 v7, 3, v7
    v_cmp_eq_u32 vcc, 0, v6
    s_lshl_b32 s44, s21, 7
    s_add_u32 s44, s44, {L.PFS}
    s_mov_b32 s23, {L.ST1}
    s_and_saveexec_b64 s[66:67], vcc
    """)
    for p in range(2):
        k(f"buffer_store_dwordx2 {vr(10+2*p,2)}, v7, s[28:31], s23 offen offset:{64*p}")
    k("s_mov_b64 exec, -1")
    k("s_waitcnt vmcnt(0)")
    nonce_get(250, 251)
    flag_store("s44", 30)
    k("s_endpgm")
    k.lab("p_misc")
    k(f"""
    s_sub_u32 s24, s20, 3
    s_mul_i32 s23, s24, 96
    s_add_u32 s23, s23, s21
    s_cmp_ge_u32 s23, 256
    s_cbranch_scc1 {end}
    s_mul_i32 s22, s24, 12
    s_lshr_b32 s25, s21, 3
    s_add_u32 s22, s22, s25
    """)
    k(f"""
    v_lshlrev_b32 v1, 4, v1
    v_mov_b32 v60, 0
    v_mov_b32 v61, 0
    v_mov_b32 v62, 0
    v_mov_b32 v63, 0
    s_lshl_b32 s24, s23, 10
    s_add_u32 s25, s24, {L.FLG}
    s_add_u32 s26, s24, {L.H1S}
    s_add_u32 s27, s24, {L.H1S + 127*20480 - 20480}
    s_cmp_ge_u32 s23, 20
    s_cselect_b32 s26, s27, s26
    """)
    zl = k.newlab("nz"); zl2 = k.newlab("nz")
    k(f"""
    s_cmp_ge_u32 s23, {L.FLG_KB}
    s_cbranch_scc1 {zl}
    buffer_store_dwordx4 v[60:63], v1, s[28:31], s25 offen
    """)
    k.lab(zl)
    k(f"""
    s_cmp_ge_u32 s23, 40
    s_cbranch_scc1 {zl2}
    buffer_store_dwordx4 v[60:63], v1, s[28:31], s26 offen
    """)
    k.lab(zl2)
    if not os.environ.get("NOCPF"):
        k("s_getpc_b64 s[24:25]")
        k.lab("p_pcref")
        k(f"""
        s_sub_u32 s24, s24, p_pcref-{k.name}
        s_subb_u32 s25, s25, 0
        s_lshl_b32 s23, s22, 11
        """)
        for i in range(2):
            k(f"""
            s_add_u32 s26, s23, {1024*i}
            s_min_u32 s26, s26, (chain_end-{k.name}-1020)&0xfffffff0
            v_add_u32 v64, s26, v1
            v_mov_b32 v5, s25
            v_add_co_u32 v4, vcc, s24, v64
            v_addc_co_u32 v5, vcc, 0, v5, vcc
            global_load_dwordx4 {vr(72+4*i,4)}, v[4:5], off
            """)
    k("s_waitcnt vmcnt(0)")
    k("s_endpgm")
    k.lab("p_conv")
    QL = 4 * WREG
    APL = QL + 32768
    PPL = APL + 16384
    k.stamp(0)
    k(f"""
    s_and_b32 s21, s2, 7
    s_mul_i32 s21, s21, 20
    s_sub_u32 s2, s2, 256
    s_lshr_b32 s2, s2, 3
    s_add_u32 s2, s2, s21                  ; s2 := cg
    s_and_b32 s19, s20, 3
    """)
    k.srd(24, 56, 640 * 4096)
    k(f"""
    s_lshl_b32 s21, s2, 3
    s_add_u32 s22, s58, s21
    s_addc_u32 s23, s59, 0
    s_load_dwordx2 s[32:33], s[22:23], 0
    s_lshl_b32 s21, s2, 2
    s_add_u32 s21, s21, s19                 ; ch
    s_mul_i32 s34, s19, {WREG}
    v_lshlrev_b32 v3, 4, v1                 ; lane*16
    s_lshl_b32 s35, s21, 12                 ; ch*4096
    s_mul_i32 s37, s21, {L.KVR_CH}
    s_add_u32 s37, s37, {L.KVR}
    v_lshrrev_b32 v4, 3, v0
    v_mul_u32_u24 v4, 20480, v4
    s_lshr_b32 s38, s2, 1
    s_and_b32 s38, s38, 7
    v_and_b32 v5, 7, v0
    v_xor_b32 v5, s38, v5
    v_lshl_add_u32 v4, v5, 4, v4            ; (t>>3)*20480 + ((t&7)^sw)*16
    s_lshl_b32 s38, s2, 7                   ; cg*128
    v_lshl_add_u32 v5, v1, 2, s34
    v_mov_b32 v6, 0
    v_and_b32 v7, 15, v1                    ; n16
    v_bfe_u32 v8, v1, 4, 1                  ; ph
    v_lshrrev_b32 v9, 5, v1                 ; g
    v_and_b32 v14, 31, v1
    v_lshlrev_b32 v14, 3, v14
    v_lshl_add_u32 v14, v9, 4, v14
    v_add_u32 v14, s34, v14
    v_and_b32 v17, 1, v1
    v_mul_u32_u24 v17, {KB - 8}, v17
    v_sub_u32 v17, {KB}, v17
    v_add_u32 v14, v17, v14                 ; vA
    s_cmp_ge_u32 s20, 4
    s_cbranch_scc1 p_convP
    """)
    B0, B1, BP, AX, AY, AP_, A0, A1 = 32, 64, 96, 128, 144, 160, 176, 208
    DPP = "row_mask:0xf bank_mask:0xf bound_ctrl:0"
    def aread(reg, off):
        return f"ds_read_b128 {vr(reg,4)}, v14 offset:{off}"
    def areads(reg, off):
        return [aread(reg + 4*ks, off + 32*ks) for ks in range(8)]
    def mfma(acc, a, b, first):
        c = "0" if first else vr(acc, 16)
        k(f"v_mfma_f32_32x32x16_bf16 {vr(acc,16)}, {vr(a,4)}, {vr(b,4)}, {c}")
    def phase(acc, Areg, Breg, first, reads, late, pad=True, rg=8):
        reads = list(reads); late = list(late)
        for ks in range(8):
            mfma(acc, Areg + 4*ks, Breg + 4*ks, first and ks == 0)
            n = (len(reads) + (rg - 1 - ks)) // (rg - ks) if ks < rg else 0
            for s_ in reads[:n]: k(s_)
            reads = reads[n:]
            if ks < 2:
                if pad and late and n < 5: k(f"s_nop {4 - n}")
            else:
                n = (len(late) + (7 - ks)) // (8 - ks)
                for s_ in late[:n]: k(s_)
                late = late[n:]
        assert not late and not reads
    def shift_ops(acc, masked):
        if masked:
            return [f"v_and_b32_dpp v{acc+r}, v{acc+r}, v15 row_shr:1 {DPP}" for r in range(16)]
        return [f"v_mov_b32_dpp v{acc+r}, v{acc+r} row_shr:1 {DPP}" for r in range(16)]

    k(f"""
    s_add_u32 s36, s34, 256
    s_mov_b32 m0, s36
    ds_write_b32 v5, v6
    """)
    for i in range(4):
        k(f"buffer_load_dwordx4 v3, s[24:27], s35 offen offset:{1024*i} {NT} lds")
    k(f"""
    v_mul_u32_u24 v10, 272, v7
    v_lshl_add_u32 v10, v9, 4, v10
    v_add_u32 v10, s34, v10
    v_add_u32 v10, {4352+4}, v10
    v_lshlrev_b32 v11, 2, v8
    v_sub_u32 v10, v10, v11
    """)
    lw = k.newlab("w0")
    k("s_cmp_lg_u32 s20, 0")
    k(f"s_cbranch_scc1 {lw}")
    nonce_issue(17, 16)
    k("s_waitcnt vmcnt(0)")
    nonce_get(17, 16)
    k(f"""
    s_lshr_b32 s40, s2, 4
    s_lshl_b32 s40, s40, 12
    s_add_u32 s40, s40, {L.PFK}
    v_lshlrev_b32 v16, 7, v1
    """)
    poll(16, 17, "s_mov_b32 exec_lo, -1\ns_mov_b32 exec_hi, 0", "s40")
    k.lab(lw)
    k("s_barrier")
    k(f"""
    s_add_u32 s36, s34, 4352
    s_mov_b32 m0, s36
    s_nop 0
    """)
    for i in range(4):
        k(f"buffer_load_dwordx4 v3, s[28:31], s37 offen offset:{1024*i} sc1 lds")
    k(f"""
    s_add_u32 s36, s34, {4352+4096}
    s_mov_b32 m0, s36
    s_add_u32 s37, s37, 4096
    buffer_load_dwordx4 v3, s[28:31], s37 offen sc1 lds
    s_waitcnt vmcnt(0) lgkmcnt(0)
    s_barrier
    """)
    k.stamp(1)
    if os.environ.get("CONVQ"): k("s_memtime s[82:83]")
    TB = 16
    for ks in range(8):
        k(f"ds_read2_b32 {vr(B1+4*ks,2)}, v10 offset0:{8*ks} offset1:{8*ks+1}")
        k(f"ds_read2_b32 {vr(B1+4*ks+2,2)}, v10 offset0:{8*ks+2} offset1:{8*ks+3}")
    for ks in range(8):
        k(f"ds_read_b32 v{TB+ks}, v10 offset:{32*ks+16}")
    k("s_waitcnt lgkmcnt(8)")
    for x in areads(A1, 256*7): k(x)
    al0 = []
    for ks in range(8):
        for d in range(4):
            hi = B1 + 4*ks + d + 1 if d < 3 else TB + ks
            al0.append(f"v_alignbit_b32 v{B0+4*ks+d}, v{hi}, v{B1+4*ks+d}, 16")
    k.stamp(2)
    AB = lambda q: A1 if q & 1 else A0
    for q in range(7, -1, -1):
        first = (q == 7)
        if os.environ.get("CONVQ"): k(f"s_memtime s[{84 + 2*(7-q)}:{85 + 2*(7-q)}]")
        k("s_waitcnt lgkmcnt(0)")
        if first:
            phase(AY, AB(q), B1, True, al0, [], rg=8)
            k("s_nop 1")
            phase(AX, AB(q), B0, True, areads(AB(q - 1), 256*(q-1)), shift_ops(AY, False), rg=6)
        else:
            k("s_nop 0")
            phase(AY, AB(q), B1, False, [], shift_ops(AX, False))
            k("s_nop 1")
            phase(AX, AB(q), B0, False, areads(AB(q - 1), 256*(q-1)) if q > 0 else [], shift_ops(AY, False) if q > 0 else [], rg=6)
    k.stamp(3)
    k("s_nop 7")
    if os.environ.get("CONVQ"): k("s_memtime s[68:69]")
    k("s_barrier")
    if os.environ.get("CONVQ"): k("s_memtime s[70:71]")
    k(f"""
    s_mul_i32 s36, s19, 4096
    s_add_u32 s36, s36, {APL}
    v_lshlrev_b32 v16, 4, v1
    v_add_u32 v16, s36, v16
    """)
    for i in range(4): k(f"ds_read_b128 {vr(AP_+4*i,4)}, v16 offset:{1024*i}")
    k(f"""
    v_mul_u32_u24 v16, 264, v7
    v_lshl_add_u32 v16, v9, 5, v16
    v_lshl_add_u32 v16, v8, 2, v16
    v_add_u32 v16, s34, v16
    s_mov_b32 s42, 0xff00ff00
    s_mov_b32 s43, 0xff00ff00
    s_waitcnt lgkmcnt(0)
    """)
    for r in range(16):
        k(f"v_add_f32_dpp v{AX+r}, v{AP_+r}, v{AX+r} row_shr:8 {DPP}")
    k("s_mov_b64 exec, s[42:43]")
    for r in range(16):
        k(f"v_add_f32 v{AY+r}, v{AP_+r}, v{AY+r}")
    k("s_mov_b64 exec, -1")
    for r in range(16):
        k(f"v_cvt_pk_bf16_f32 v{32+r}, v{AX+r}, v{AY+r}")
    for r in range(16):
        k(f"ds_write_b32 v16, v{32+r} offset:{64*(r>>2)+8*(r&3)}")
    k("s_branch p_convE")

    k.lab("p_convP")
    k(f"""
    s_add_u32 s36, s34, {KB + 256}
    s_mov_b32 m0, s36
    s_add_u32 s40, s35, 8
    v_mov_b32 v16, 0
    ds_write_b32 v5, v6 offset:{KB}
    """)
    for i in range(4):
        k(f"buffer_load_dwordx4 v3, s[24:27], s40 offen offset:{1024*i} lds")
    k(f"buffer_load_dwordx2 v[252:253], v16, s[24:27], s35 offen")
    nonce_issue(250, 251)
    k(f"""
    v_lshlrev_b32 v11, 2, v8
    v_and_b32 v12, 7, v1
    v_mul_u32_u24 v13, 272, v12
    v_lshl_add_u32 v13, v9, 4, v13
    v_add_u32 v13, s34, v13
    v_add_u32 v13, {4352+4}, v13
    v_sub_u32 v13, v13, v11                 ; vBP
    v_bfe_u32 v11, v1, 3, 1                 ; a'
    v_lshlrev_b32 v11, 4, v11
    v_sub_u32 v11, 16, v11
    v_cmp_ne_u32 vcc, 0, v12
    v_mov_b32 v16, 0
    s_add_u32 s36, s34, {KB + 248}
    v_cndmask_b32 v15, v16, -1, vcc
    v_mov_b32 v17, s36
    s_waitcnt vmcnt(0) lgkmcnt(0)
    s_mov_b64 exec, 1
    ds_write_b64 v17, v[252:253]
    s_mov_b64 exec, -1
    s_barrier
    s_waitcnt lgkmcnt(0)
    s_barrier
    """)
    TP = 24
    for ks in range(8):
        k(f"ds_read2_b32 {vr(BP+4*ks,2)}, v13 offset0:{8*ks} offset1:{8*ks+1}")
        k(f"ds_read2_b32 {vr(BP+4*ks+2,2)}, v13 offset0:{8*ks+2} offset1:{8*ks+3}")
    k("s_waitcnt lgkmcnt(6)")
    for ks in range(8):
        k(f"ds_read_b32 v{TP+ks}, v13 offset:{32*ks+16}")
    k("s_waitcnt lgkmcnt(7)")
    for x in areads(A1, 256*15): k(x)
    k("s_waitcnt lgkmcnt(8)")
    for ks in range(8):
        for d in range(4):
            hi = BP + 4*ks + d + 1 if d < 3 else TP + ks
            k(f"v_alignbit_b32 v{BP+4*ks+d}, v{hi}, v{BP+4*ks+d}, v11")
    k("s_setprio 3")
    for q in range(7, -1, -1):
        first = (q == 7)
        k("s_waitcnt lgkmcnt(0)")
        if not first:
            k("s_nop 11")
            for x in shift_ops(AP_, True): k(x)
        k("s_nop 1")
        phase(AP_, AB(q), BP, first, areads(AB(q - 1), 256*(q + 7)) if q > 0 else [], [], rg=6)
    k("s_setprio 0")
    nonce_get(250, 251)
    lp = k.newlab("mp"); ld = k.newlab("md")
    k(f"""
    s_lshr_b32 s40, s2, 4
    s_lshl_b32 s40, s40, 9
    s_add_u32 s40, s40, {L.PFM}
    s_mov_b32 s41, {L.PFS}
    v_lshrrev_b32 v16, 2, v1
    v_mul_u32_u24 v16, {40*128}, v16
    v_and_b32 v17, 3, v1
    v_lshl_add_u32 v16, v17, 7, v16
    v_lshlrev_b32 v18, 7, v1
    v_mov_b32 v17, s46
    s_add_u32 s42, s41, 8192
    s_mov_b32 s47, 0
    """)
    k.lab(lp)
    k(f"""
    buffer_load_dword v19, v18, s[28:31], s41 offen sc1
    buffer_load_dword v28, v18, s[28:31], s42 offen sc1
    s_mov_b64 exec, 0xfff
    buffer_load_dword v17, v16, s[28:31], s40 offen sc1
    s_mov_b64 exec, -1
    s_waitcnt vmcnt(0)
    v_cmp_ne_u32 vcc, s46, v17
    v_cmp_ne_u32 s[66:67], s46, v19
    v_cmp_ne_u32 s[68:69], s46, v28
    s_add_u32 s47, s47, 1
    s_nop 2
    s_or_b64 vcc, vcc, s[66:67]
    s_or_b64 vcc, vcc, s[68:69]
    s_cmp_ge_u32 s47, {SPIN}
    s_cbranch_scc1 {ld}
    s_cbranch_vccz {ld}
    s_sleep 8
    s_branch {lp}
    """)
    k.lab(ld)
    k(f"""
    s_lshl_b32 s40, s2, 4
    s_add_u32 s40, s40, {L.MODP}
    v_lshrrev_b32 v16, 2, v1
    v_mul_u32_u24 v16, 2560, v16
    v_and_b32 v17, 3, v1
    v_mul_u32_u24 v17, {3840*4}, v17
    v_add_u32 v16, v16, v17
    s_mov_b64 exec, 0xfff
    buffer_load_dwordx4 v[20:23], v16, s[28:31], s40 offen sc1
    s_mov_b64 exec, -1
    v_lshlrev_b32 v18, 4, v1
    v_subrev_u32 v19, {32*20480}, v4
    s_lshl_b32 s43, s20, 10                 ; w*1024 (w = 4..7)
    s_sub_u32 s44, s43, 4096                ; partner
    """)
    for e in range(2):
        for sreg, vq_ in (("s43", 4), ("s44", 19)):
            k(f"s_add_u32 m0, {sreg}, {QL + 8192*e}")
            k(f"s_add_u32 s39, s38, {L.Q4 + e*64*20480}")
            k(f"buffer_load_dwordx4 v{vq_}, s[28:31], s39 offen sc1 lds")
            k(f"s_add_u32 m0, {sreg}, {QL + 16384 + 8192*e}")
            k(f"s_add_u32 s39, {sreg}, {L.ST1 + 8192*e}")
            k(f"buffer_load_dwordx4 v18, s[28:31], s39 offen sc1 lds")
    k(f"""
    s_mul_i32 s36, s19, 4096
    s_add_u32 s36, s36, {APL}
    v_lshlrev_b32 v16, 4, v1
    v_add_u32 v16, s36, v16
    s_nop 4
    """)
    for i in range(4): k(f"ds_write_b128 v16, {vr(AP_+4*i,4)} offset:{1024*i}")
    k("s_waitcnt vmcnt(8)")
    for ctl in ("quad_perm:[1,0,3,2]", "quad_perm:[2,3,0,1]"):
        k("s_nop 1")
        for c in range(4): k(f"v_add_f32_dpp v{20+c}, v{20+c}, v{20+c} {ctl} row_mask:0xf bank_mask:0xf")
    k("s_nop 1")
    for c in (0, 2): k.round2(20 + c, 21 + c, 24)
    for c in range(4): k(f"v_add_f32 v{24+c}, 1.0, v{20+c}")
    for c in (0, 2): k.round2(24 + c, 25 + c, 10)
    k("s_nop 1")
    for c in range(4):
        k(f"v_readlane_b32 s{68+c}, v{20+c}, 0")
        k(f"v_readlane_b32 s{72+c}, v{24+c}, 4")
        k(f"v_readlane_b32 s{76+c}, v{20+c}, 8")
    k("s_nop 1")
    for c in range(4): k(f"v_mov_b32 v{10+c}, s{76+c}")
    for c in range(4):
        k(f"v_mul_f32 v{20+c}, s{72+c}, v{10+c}")
        k(f"v_mul_f32 v{24+c}, s{68+c}, v{10+c}")
    k(f"""
    v_mov_b32 v16, {PPL}
    s_mov_b64 exec, 1
    ds_write_b128 v16, v[20:23]
    ds_write_b128 v16, v[24:27] offset:16
    s_mov_b64 exec, -1
    s_waitcnt vmcnt(0) lgkmcnt(0)
    s_barrier
    """)

    k.lab("p_convE")
    Y, KV, T, O, QF, SR, PP, QRAW = 48, 224, 64, 208, 112, 144, 160, 176
    k(f"""
    v_lshrrev_b32 v2, 6, v0
    s_lshl_b32 s44, s32, 16
    s_and_b32 s45, s32, 0xffff0000
    s_lshl_b32 s46, s33, 16
    s_and_b32 s47, s33, 0xffff0000
    v_mul_u32_u24 v17, 264, v2
    v_lshl_add_u32 v17, v1, 2, v17
    v_mul_u32_u24 v19, 272, v2
    v_lshlrev_b32 v18, 2, v1
    v_sub_u32 v19, v19, v18
    v_add_u32 v19, {4352 + 252}, v19
    v_lshlrev_b32 v18, 4, v0
    v_add_u32 v18, {QL}, v18
    v_mov_b32 v16, {PPL}
    """)
    for e in range(2):
        for c in range(4):
            k(f"ds_read_b32 v{KV+4*e+c}, v19 offset:{c*WREG+2176*e}")
    for e in range(2):
        k(f"ds_read_b128 {vr(QRAW+4*e,4)}, v18 offset:{8192*e}")
        k(f"ds_read_b128 {vr(SR+4*e,4)}, v18 offset:{16384+8192*e}")
    k(f"ds_read_b128 {vr(PP,4)}, v16")
    k(f"ds_read_b128 {vr(PP+4,4)}, v16 offset:16")
    k(f"""
    v_mov_b32 v28, s44
    v_mov_b32 v29, s45
    v_mov_b32 v30, s46
    v_mov_b32 v31, s47
    s_waitcnt lgkmcnt(0)
    s_barrier
    """)
    if os.environ.get("CONVQ"): k("s_memtime s[72:73]")
    for e in range(2):
        for c in range(4):
            k(f"ds_read_b32 v{Y+4*e+c}, v17 offset:{c*WREG+2112*e}")
    BCX = "op_sel:[0,1,0] op_sel_hi:[1,1,0]"
    for e in range(2):
        TE = T + 20*e; QE = QF + 16*e
        for c in range(4):
            k.unpack(TE + 4 + c, TE + c, KV + 4*e + c)
        for d in range(4):
            k.unpack(QE + 2*d, QE + 2*d + 1, QRAW + 4*e + d)
        for d in range(4):
            S_ = SR + 4*e + 2*(d // 2)
            k(f"v_pk_fma_f32 {vr(QE+8+2*d,2)}, {vr(QE+2*d,2)}, {vr(S_,2)}, {vr(S_,2)} {BCX}")
        for d in range(4):
            k(f"v_pk_fma_f32 {vr(QE+8+2*d,2)}, {vr(QE+8+2*d,2)}, {vr(PP+2*(d%2),2)}, {vr(PP+4+2*(d%2),2)}")
    k("s_waitcnt lgkmcnt(0)")
    for e in range(2):
        TE = T + 20*e; QE = QF + 16*e
        for c in range(4):
            k.unpack(TE + 10 + c, TE + 14 + c, Y + 4*e + c)
        for d in range(4):
            k(f"v_pk_fma_f32 {vr(TE+2*d,2)}, {vr(TE+2*d,2)}, {vr(28+2*(d%2),2)}, {vr(TE+10+2*d,2)}")
        for d in range(4):
            k(f"v_pk_fma_f32 {vr(TE+2*d,2)}, {vr(TE+2*d,2)}, {vr(QE+8+2*d,2)}, {vr(QE+2*d,2)}")
        for d in range(4):
            k(f"v_cvt_pk_bf16_f32 v{O+4*e+d}, v{TE+2*d}, v{TE+2*d+1}")
        k(f"s_add_u32 s39, s38, {L.YT + e*64*20480}")
        k(f"buffer_store_dwordx4 {vr(O+4*e,4)}, v4, s[28:31], s39 offen")
    if os.environ.get("CONVQ"):
        k("""
        s_waitcnt lgkmcnt(0)
        s_or_b32 s26, s2, s20
        s_cmp_lg_u32 s26, 0
        s_cbranch_scc1 cq_skip
        v_mov_b32 v1, 0
        """)
        k("s_memtime s[74:75]")
        k("s_waitcnt vmcnt(0)")
        k("s_memtime s[76:77]")
        k("s_waitcnt lgkmcnt(0)")
        for i, r in enumerate((98, 68, 70, 72, 74, 76)):
            k(f"s_sub_u32 s26, s{r}, s82")
            k(f"v_mov_b32 v2, s26")
            k(f"buffer_store_dword v2, v1, s[48:51], 0 offen offset:{16+4*i}")
        for i in range(0):
            k(f"s_sub_u32 s26, s{84+2*i}, s82")
            k(f"v_mov_b32 v2, s26")
            k(f"buffer_store_dword v2, v1, s[48:51], 0 offen offset:{16+4*i}")
        k.lab("cq_skip")
    k.stamp(4)
    k("s_waitcnt vmcnt(0)")
    k.stamp(5)
    k.stamp_end(6)
    k("s_endpgm")

    k.lab("p_pack")
    k(f"""
    s_sub_u32 s21, s2, 416                ; h
    s_mul_i32 s34, s20, {WREG}
    s_cmp_ge_u32 s20, 4
    s_cbranch_scc1 {end}
    s_cmp_eq_u32 s20, 0
    s_cbranch_scc1 k1_pack
    s_cmp_eq_u32 s20, 1
    s_cbranch_scc0 p_pk2
    s_cmp_lt_u32 s21, 58
    s_cbranch_scc0 p_pk1
    s_add_u32 s21, s21, 96
    s_branch k1_pack
    """)
    k.lab("p_pk1")
    k(f"""
    s_sub_u32 s21, s21, 58
    s_cmp_ge_u32 s21, 30
    s_cbranch_scc1 {end}
    s_branch p_fin
    """)
    k.lab("p_pk2")
    k(f"""
    s_sub_u32 s22, s20, 2
    s_mul_i32 s22, s22, 96
    s_add_u32 s21, s21, s22
    s_cmp_ge_u32 s21, 120
    s_cbranch_scc1 {end}
    s_add_u32 s21, s21, 120
    """)
    nonce_issue(250, 251)
    k("s_branch p_mod")
    k.lab("p_fin")
    k("s_add_u32 s21, s21, 30")
    nonce_issue(17, 16)
    k("s_waitcnt vmcnt(0)")
    nonce_get(17, 16)
    k(f"""
    s_lshl_b32 s40, s21, 9
    s_add_u32 s40, s40, {L.PFM}
    v_lshlrev_b32 v16, 7, v1
    """)
    poll(16, 17, "s_mov_b64 exec, 15", "s40")
    k(f"""
    v_lshlrev_b32 v7, 2, v1
    s_lshl_b32 s22, s21, 8
    s_add_u32 s23, s22, {L.MODP}
    """)
    for part in range(4):
        k(f"buffer_load_dword v{10+part}, v7, s[28:31], s23 offen sc1")
        if part < 3: k(f"s_add_u32 s23, s23, {3840*4}")
    l1 = k.newlab("f1"); l2 = k.newlab("f2")
    k(f"""
    s_waitcnt vmcnt(0)
    v_add_f32 v10, v10, v11
    v_add_f32 v12, v12, v13
    s_nop 0
    v_add_f32 v10, v10, v12
    s_nop 0
    v_cvt_pk_bf16_f32 v10, v10, v10
    s_nop 0
    v_lshlrev_b32 v10, 16, v10
    s_sub_u32 s24, s21, 10
    s_cmp_lt_u32 s24, 10
    s_cbranch_scc1 {l1}
    s_sub_u32 s24, s21, 40
    s_cmp_lt_u32 s24, 10
    s_cbranch_scc0 {l2}
    """)
    k.lab(l1)
    k("""
    v_add_f32 v10, 1.0, v10
    s_nop 0
    v_cvt_pk_bf16_f32 v10, v10, v10
    s_nop 0
    v_lshlrev_b32 v10, 16, v10
    """)
    k.lab(l2)
    k(f"""
    s_add_u32 s22, s22, {L.MODF}
    buffer_store_dword v10, v7, s[28:31], s22 offen
    """)
    k("s_endpgm")
    k.lab("k1_pack")
    labs = [k.newlab("pk") for _ in range(4)]
    k(f"""
    v_lshrrev_b32 v3, 3, v1
    v_and_b32 v4, 7, v1                    ; chunk
    v_mul_u32_u24 v5, 144, v3
    v_lshl_add_u32 v5, v4, 4, v5
    v_add_u32 v5, s34, v5
    v_and_b32 v6, 15, v1
    v_lshrrev_b32 v7, 4, v1                ; g
    v_lshrrev_b32 v8, 2, v6
    v_lshl_add_u32 v8, v7, 3, v8           ; 8g + (i>>2)
    v_mul_u32_u24 v8, 144, v8
    v_and_b32 v9, 3, v6
    v_lshl_add_u32 v8, v9, 3, v8
    v_add_u32 v8, s34, v8
    v_lshlrev_b32 v9, 4, v1                ; lane*16
    s_cmp_lt_u32 s21, 20
    s_cbranch_scc1 {labs[0]}
    s_cmp_lt_u32 s21, 40
    s_cbranch_scc1 {labs[1]}
    s_cmp_lt_u32 s21, 94
    s_cbranch_scc1 {labs[2]}
    s_branch {labs[3]}
    """)
    for m in range(4):
        k.lab(labs[m])
        N = [640, 640, 1728, 640][m]; Kd = [640, 640, 640, 1728][m]
        pitch = N * 2
        nks = 10 if m < 3 else 9
        ub = [0, 20, 40, 94][m]
        ncb = N // 64
        k.srd(24, 12 + 2*m, Kd * N * 2)
        magic = {10: (52429, 19), 27: (2428, 16)}[ncb]
        k(f"""
        s_sub_u32 s32, s21, {ub}
        s_mul_i32 s33, s32, {magic[0]}
        s_lshr_b32 s33, s33, {magic[1]}       ; kq
        s_mul_i32 s35, s33, {ncb}
        s_sub_u32 s35, s32, s35               ; cbk
        v_mul_u32_u24 v10, {pitch}, v3
        v_lshl_add_u32 v10, v4, 4, v10
        s_mul_i32 s36, s33, {nks*32*pitch}
        s_lshl_b32 s37, s35, 7
        s_add_u32 s36, s36, s37
        """)
        R = 32
        for i in range(nks):
            for j in range(4):
                k(f"buffer_load_dwordx4 {vr(R+16*i+4*j,4)}, v10, s[24:27], s36 offen {NT}")
                if not (i == nks - 1 and j == 3): k(f"s_add_u32 s36, s36, {8*pitch}")
        for nt in range(4):
            k(f"s_lshl_b32 s36, s35, 2")
            k(f"s_add_u32 s36, s36, {nt}")
            if m < 2:
                k(f"""
                s_mul_i32 s38, s36, 6554
                s_lshr_b32 s38, s38, 16
                s_mul_i32 s39, s38, 10
                s_sub_u32 s39, s36, s39
                s_cmp_ge_u32 s39, 5
                s_cselect_b32 s40, 1, 0
                s_sub_u32 s41, s39, 6
                s_cmp_eq_u32 s39, 5
                s_cselect_b32 s41, 4, s41
                s_cmp_eq_u32 s40, 1
                s_cselect_b32 s39, s41, s39
                s_mul_i32 s37, s38, 200
                s_mul_i32 s40, s40, 100
                s_add_u32 s37, s37, s40
                s_mul_i32 s40, s33, 50
                s_add_u32 s37, s37, s40
                s_add_u32 s37, s37, s39
                s_lshl_b32 s37, s37, 10
                s_add_u32 s{44+nt}, s37, {L.W1C if m == 0 else L.W2C}
                s_movk_i32 s{48+nt}, 5120
                """)
            elif m == 2:
                k(f"""
                s_mul_i32 s38, s36, 9363
                s_lshr_b32 s38, s38, 16
                s_mul_i32 s39, s38, 7
                s_sub_u32 s39, s36, s39
                s_sub_u32 s41, s39, 1
                s_cmp_eq_u32 s39, 0
                s_cselect_b32 s41, 6, s41
                s_and_b32 s40, s38, 1
                s_cmp_eq_u32 s40, 1
                s_cselect_b32 s39, s41, s39
                s_mov_b32 s41, 4
                s_mov_b32 s40, s39
                s_cmp_ge_u32 s39, 4
                s_cselect_b32 s41, 2, s41
                s_add_u32 s42, s39, 76
                s_cmp_ge_u32 s39, 4
                s_cselect_b32 s40, s42, s40
                s_cmp_eq_u32 s39, 6
                s_cselect_b32 s41, 1, s41
                s_cselect_b32 s40, 120, s40
                s_mul_i32 s42, s33, 10
                s_mul_i32 s42, s42, s41
                s_add_u32 s40, s40, s42
                s_mul_i32 s37, s38, 140
                s_add_u32 s37, s37, s40
                s_lshl_b32 s37, s37, 10
                s_add_u32 s{44+nt}, s37, {L.W3C}
                s_lshl_b32 s{48+nt}, s41, 10
                """)
            else:
                k(f"""
                s_mul_i32 s38, s36, 13108
                s_lshr_b32 s38, s38, 16
                s_mul_i32 s39, s38, 5
                s_sub_u32 s39, s36, s39
                s_sub_u32 s41, s39, 1
                s_cmp_eq_u32 s39, 0
                s_cselect_b32 s41, 4, s41
                s_and_b32 s40, s38, 1
                s_cmp_eq_u32 s40, 1
                s_cselect_b32 s39, s41, s39
                s_mul_i32 s40, s33, 21846
                s_lshr_b32 s40, s40, 16
                s_mul_i32 s41, s40, 3
                s_sub_u32 s41, s33, s41
                s_mul_i32 s37, s38, 270
                s_mul_i32 s41, s41, 90
                s_add_u32 s37, s37, s41
                s_mul_i32 s40, s40, 5
                s_add_u32 s37, s37, s40
                s_add_u32 s37, s37, s39
                s_lshl_b32 s37, s37, 10
                s_add_u32 s{44+nt}, s37, {L.W4C}
                s_movk_i32 s{48+nt}, 10240
                """)
        cs = m in (0, 2)
        if cs:
            for nt in range(4): k(f"v_mov_b32 v{12+nt}, 0")
            k("v_mov_b32 v16, 0x3f803f80")
        F = 200
        nld = nks * 4
        def wr(i):
            k(f"s_waitcnt vmcnt({min(63, nld - 4*(i+1) + stores[0])})")
            for j in range(4):
                k(f"ds_write_b128 v5, {vr(R+16*i+4*j,4)} offset:{4608*(i&1) + 1152*j}")
        stores = [0]
        wr(0)
        for i in range(nks):
            k("s_waitcnt lgkmcnt(0)")
            for nt in range(4):
                k(f"ds_read_b64_tr_b16 {vr(F+16*(i&1)+4*nt,2)}, v8 offset:{4608*(i&1) + 32*nt}")
                k(f"ds_read_b64_tr_b16 {vr(F+16*(i&1)+4*nt+2,2)}, v8 offset:{4608*(i&1) + 32*nt + 576}")
            if i + 1 < nks: wr(i + 1)
            k(f"s_waitcnt lgkmcnt({4 if i + 1 < nks else 0})")
            for nt in range(4):
                k(f"buffer_store_dwordx4 {vr(F+16*(i&1)+4*nt,4)}, v9, s[28:31], s{44+nt} offen")
                k(f"s_add_u32 s{44+nt}, s{44+nt}, s{48+nt}")
                stores[0] += 1
                if cs:
                    for d in range(4): k(f"v_dot2_f32_bf16 v{12+nt}, v{F+16*(i&1)+4*nt+d}, v16, v{12+nt}")
        if cs:
            k("s_nop 2")
            for x in gen3.reduce_g_ops([12, 13, 14, 15], 20): k(x)
            k(f"""
            s_mul_i32 s38, s33, {1792*4}
            s_lshl_b32 s39, s35, 8
            s_add_u32 s38, s38, s39
            s_add_u32 s38, s38, {L.CS3P if m == 2 else L.CS1P}
            v_lshlrev_b32 v14+0, 0, v14
            """.replace("v_lshlrev_b32 v14+0, 0, v14", "v_lshlrev_b32 v17, 2, v1"))
            k("s_mov_b64 exec, 0xffff")
            for nt in range(4):
                k(f"buffer_store_dword v{12+nt}, v17, s[28:31], s38 offen offset:{64*nt}")
        k("s_endpgm")
    return k

def build(kerns, path):
    hdr = open(os.path.join(os.path.dirname(os.path.abspath(__file__)), "..", NAME + ".s.ref")).read().split("\n")
    com = [l for l in hdr if l.startswith(";") and "@launch" not in l and "Override launch" not in l and "grid=ceil" not in l]
    s = "\n".join(com) + "\n"
    for k in kerns:
        s += f"; @launch kernel={k.name} grid=({k.grid},1,1) block=({k.block},1,1) lds={k.lds}\n"
    s += '.amdgcn_target "amdgcn-amd-amdhsa--gfx950"\n.text\n'
    for k in kerns:
        s += k.text()
    s += '.section .rodata,"a"\n'
    for k in kerns:
        s += k.kd()
    open(path, "w").write(s)

if __name__ == "__main__":
    out = sys.argv[1] if len(sys.argv) > 1 else os.path.join(os.path.dirname(os.path.abspath(__file__)), "..", NAME + ".s")
    kerns = [gen_p()]
    try:
        import gen3
        kerns += [gen3.gen_chain(Kern, None)]
    except ImportError:
        raise
    build(kerns, out)
    print("wrote", out)
```

```python
import os, struct
import layout as L
SZ_SD = 2048 * 640 * 2
C0 = -2.0 * 0.7978845608028654 * 1.4426950408889634
C1 = C0 * 0.044715
def fhex(x):
    return "0x%08x" % struct.unpack("<I", struct.pack("<f", x))[0]
def vr(a, n): return f"v[{a}:{a+n-1}]" if n > 1 else f"v{a}"
def ar(a, n): return f"a[{a}:{a+n-1}]"
E = lambda n, d: int(os.environ.get(n, d))
SPIN = E("SPIN", 200000)
XSC = os.environ.get("XSC", "sc1")

class VQ:
    def __init__(self, k): self.k, self.q, self.seen = k, [], set()
    def note(self, tag): self.q.append(tag); self.seen.add(tag)
    def issue(self, text, tag): self.k(text); self.q.append(tag); self.seen.add(tag)
    def waittext(self, tag, extra=""):
        assert tag in self.seen, f"wait for {tag} before issue"
        idx = [i for i, t in enumerate(self.q) if t == tag]
        if not idx:
            return f"s_waitcnt {extra}" if extra else None
        n = len(self.q) - 1 - idx[-1]
        self.q = self.q[idx[-1] + 1:] if n <= 63 else self.q[-63:]
        return f"s_waitcnt vmcnt({min(n, 63)}) {extra}"
    def wait(self, tag, extra=""):
        t = self.waittext(tag, extra)
        if t: self.k(t)
    def drain(self, extra=""):
        self.k(f"s_waitcnt vmcnt(0) {extra}"); self.q = []

def il(main, side, frac=1.0):
    out = []; n = max(1, int(len(main) * frac)); m = len(side); si = 0
    for i, x in enumerate(main):
        out.append(x)
        want = min(m, m * (i + 1) // n)
        while si < want:
            out.append(side[si]); si += 1
    out += side[si:]
    return out

def zipl(*ls):
    out = []; ls = [list(l) for l in ls]
    while any(ls):
        for l in ls:
            if l: out.append(l.pop(0))
    return out

def ln_ops(s1, s2, t, n):
    return [f"v_mul_f32 v{s1}, {fhex(1.0/n)}, v{s1}", f"v_mul_f32 v{s2}, {fhex(1.0/n)}, v{s2}",
            f"v_fma_f32 v{s2}, -v{s1}, v{s1}, v{s2}", f"v_max_f32 v{s2}, 0, v{s2}",
            f"v_cvt_pk_bf16_f32 v{t}, v{s1}, v{s2}", f"v_lshlrev_b32 v{s1}, 16, v{t}", f"v_and_b32 v{s2}, 0xffff0000, v{t}",
            f"v_add_f32 v{s2}, {fhex(1e-5)}, v{s2}", f"v_cvt_pk_bf16_f32 v{t}, v{s2}, v{s2}", f"v_lshlrev_b32 v{s2}, 16, v{t}",
            f"v_sqrt_f32 v{s2}, v{s2}", "s_nop 0", f"v_cvt_pk_bf16_f32 v{t}, v{s2}, v{s2}", f"v_lshlrev_b32 v{s2}, 16, v{t}",
            f"v_rcp_f32 v{s2}, v{s2}", "s_nop 0", f"v_mul_f32 v{s1}, v{s1}, v{s2}", f"v_sub_f32 v{s1}, 0, v{s1}"]

def reduce16_ops(regs):
    o = []
    for ci, ctl in enumerate(("quad_perm:[1,0,3,2]", "quad_perm:[2,3,0,1]", "row_half_mirror", "row_mirror")):
        if len(regs) < 3 or ci == 0: o.append("s_nop 1")
        for a in regs: o.append(f"v_add_f32_dpp v{a}, v{a}, v{a} {ctl} row_mask:0xf bank_mask:0xf")
    return o

def reduce_g_ops(regs, t):
    o = []
    for sw in ("v_permlane32_swap_b32", "v_permlane16_swap_b32"):
        for i, a in enumerate(regs): o.append(f"v_mov_b32 v{t+i}, v{a}")
        o.append("s_nop 1")
        for i, a in enumerate(regs): o.append(f"{sw} v{t+i}, v{a}")
        o.append("s_nop 1")
        for i, a in enumerate(regs): o.append(f"v_add_f32 v{a}, v{a}, v{t+i}")
    return o

def gelu_ops(z, t, vc, n):
    o = []
    for i in range(0, n, 2): o.append(f"v_pk_mul_f32 {vr(t+i,2)}, {vr(z+i,2)}, {vr(z+i,2)}")
    for i in range(0, n, 2): o.append(f"v_pk_fma_f32 {vr(t+i,2)}, {vr(t+i,2)}, {vr(vc,2)}, {vr(vc,2)} op_sel:[0,0,1] op_sel_hi:[1,0,1]")
    for i in range(0, n, 2): o.append(f"v_pk_mul_f32 {vr(t+i,2)}, {vr(t+i,2)}, {vr(z+i,2)}")
    for i in range(n): o.append(f"v_exp_f32 v{t+i}, v{t+i}")
    for i in range(0, n, 2): o.append(f"v_pk_add_f32 {vr(t+i,2)}, {vr(t+i,2)}, 1.0 op_sel_hi:[1,0]")
    for i in range(n): o.append(f"v_rcp_f32 v{t+i}, v{t+i}")
    for i in range(0, n, 2): o.append(f"v_pk_mul_f32 {vr(z+i,2)}, {vr(z+i,2)}, {vr(t+i,2)}")
    return o

BC = "op_sel:[0,1,0] op_sel_hi:[1,1,0]"

YL, AT, MODL = 0, 40960, 122880
RSL = 138240
CSL = 139264
EX = 143360
CS3L = 162816
LDS_TOTAL = 163840

G4MAP = """s_and_b32 s57, s26, 7
    s_lshr_b32 s27, s26, 3
    s_and_b32 s58, s2, 7
    s_lshl_b32 s58, s58, 2
    s_add_u32 s58, s58, s27""" if os.environ.get("G4_1D", "1") == "1" else ""
G3MAP = """s_and_b32 s52, s26, 15
    s_lshr_b32 s27, s26, 4
    s_and_b32 s53, s2, 7
    s_lshl_b32 s53, s53, 1
    s_add_u32 s53, s53, s27""" if os.environ.get("G3_1D", "0") == "1" else ""
def gen_chain(Kern, front=None):
    kern = Kern("chain_kernel", 256, 256, LDS_TOTAL, vgpr=256, sgpr=100, agpr=256)
    if front:
        front(kern)
        kern.lab("main_join")
        kern("s_mov_b32 s2, s99")
    class KW:
        def __init__(s): s.clock = 0.0; s.last = 0.0; s.src = None; s.interval = 80; s.busy = False
        def cost(s, ln):
            op = ln.split()[0]
            if op.startswith("v_mfma"): return 16
            if op.startswith(("v_exp", "v_rcp", "v_sqrt", "v_rsq", "v_permlane")): return 8.3
            if op.startswith("ds_write"): return 35
            if op.startswith("ds_"): return 13
            if op.startswith("buffer_"): return 14
            if op.startswith("v_"): return 4.2
            return 4.5
        def __call__(s, txt):
            for ln in txt.strip("\n").split("\n"):
                ln = ln.strip()
                if not ln: continue
                kern(ln)
                if ln.startswith(";"): continue
                s.clock += s.cost(ln)
                if s.src and not s.busy and s.clock - s.last >= s.interval and not ln.startswith(("s_cmp", "s_cbranch", "s_mov_b32 m0", "s_add_u32 m0", "s_mov_b64 exec", "s_mov_b32 exec", "v_cmp", "v_readfirstlane", "s_nop")) and s.safe:
                    s.busy = True
                    if s.src(): s.last = s.clock
                    s.busy = False
        safe = True
        def lab(s, l): kern.lab(l)
        def newlab(s, p="L"): return kern.newlab(p)
        def srd(s, d, b, size, off=0): kern.srd(d, b, size, off)
    k = KW()
    end = "chain_end"
    STOP = os.environ.get("STOP", "")
    vq = VQ(k)
    nst = [0, 0]
    SKIP = 8
    def stamp(grp=None):
        if os.environ.get("PROF3") and nst[0] < 18 and not (os.environ.get("PG3") and nst[1] < SKIP and (nst.__setitem__(1, nst[1] + 1) or True) and nst[1] > 1):
            op = "s_memtime" if os.environ.get("PROF3") == "cyc" else "s_memrealtime"
            k(f"{op} s[{64+2*nst[0]}:{65+2*nst[0]}]"); nst[0] += 1
    def emit(lst):
        for x in lst: k(x)
    class Pend:
        def __init__(s, items=()): s.items = list(items)
        def add(s, items): s.items += list(items)
        def pop(s, n=1):
            if getattr(s, "late", False) and n < 50: return
            for _ in range(n):
                if s.items:
                    t, tg = s.items.pop(0); vq.issue(t, tg)
        def has(s, tag): return any(tg == tag for _, tg in s.items)
    stamp()
    k(f"""
    s_cmp_ge_u32 s2, 256
    s_cbranch_scc1 {end}
    s_load_dwordx2 s[4:5], s[0:1], 0
    s_load_dwordx2 s[6:7], s[0:1], 104
    s_load_dwordx2 s[10:11], s[0:1], 120
    v_lshrrev_b32 v2, 6, v0
    v_and_b32 v1, 63, v0
    v_readfirstlane_b32 s20, v2
    s_and_b32 s25, s2, 7                ; x
    s_lshr_b32 s26, s2, 3               ; idx
    s_lshl_b32 s23, s25, 3
    s_lshr_b32 s27, s26, 2
    s_add_u32 s23, s23, s27
    s_and_b32 s24, s26, 3               ; j
    s_and_b32 s21, s20, 1
    s_lshr_b32 s22, s20, 1              ; kh
    v_lshrrev_b32 v3, 4, v1             ; g  (= r4)
    v_and_b32 v4, 15, v1                ; m  (= c)
    v_lshlrev_b32 v8, 4, v1             ; lane*16
    s_waitcnt lgkmcnt(0)
    """)
    if os.environ.get("PSTART"): stamp()
    k.srd(28, 10, 0x10000000)
    XR, XF, PM, T, ONE = 32, 72, 152, 192, 224
    SA, NB_ = 216, 220
    HBR = 16
    k(f"""
    s_mul_i32 s25, s20, 10240
    s_add_u32 s10, s25, {YL}
    s_mul_i32 s11, s23, 40960
    s_add_u32 s11, s11, s25
    s_add_u32 s11, s11, {L.YT}
    s_lshl_b32 s12, s20, 10
    s_add_u32 s13, s12, {L.MODF + 7680}
    s_add_u32 s12, s12, {MODL + 7680}
    s_lshl_b32 s14, s21, 10
    s_add_u32 s14, s14, {CSL}
    s_mul_i32 s15, s21, {1792*4}
    s_mul_i32 s25, s24, 640
    s_add_u32 s15, s15, s25
    s_add_u32 s15, s15, {L.CS1P}
    """)
    first = []
    for i in range(10):
        pre = "s_mov_b32 m0, s10\ns_add_u32 s10, s10, 4096\n" if i % 4 == 0 else ""
        post = "\ns_add_u32 s11, s11, 4096" if i % 4 == 3 else ""
        first.append((pre + f"buffer_load_dwordx4 v8, s[28:31], s11 offen offset:{(i%4)*1024} lds" + post, "y"))
    first.append(("s_mov_b32 m0, s12\ns_nop 0\nbuffer_load_dwordx4 v8, s[28:31], s13 offen lds", "y"))
    first.append((f"s_mov_b32 m0, {MODL + 7680 + 4096}\ns_mov_b32 s13, {L.MODF + 7680 + 4096}\nbuffer_load_dwordx4 v8, s[28:31], s13 offen lds", "y"))
    first.append(("s_mov_b32 m0, s14\ns_nop 0\nbuffer_load_dwordx4 v8, s[28:31], s15 offen lds", "y"))
    first = Pend(first)
    if not front: first.pop(100)
    if os.environ.get("PSTART"): stamp()
    realk = k
    class Cap:
        def __init__(s): s.L = []
        def __call__(s, txt):
            for ln in txt.strip("\n").split("\n"):
                ln = ln.strip()
                if ln: s.L.append(ln)
        def srd(s, d, b, size):
            s(f"s_mov_b32 s{d}, s{b}\ns_mov_b32 s{d+1}, s{b+1}\ns_mov_b32 s{d+2}, {size}\ns_mov_b32 s{d+3}, 0x00020000")
    cap = Cap()
    k = cap
    k.srd(32, 6, SZ_SD)
    vY, vPM, vAW, vA0e, vA0o, vA1e, vA1o = 226, 227, 228, 229, 230, 231, 232
    vCS, vCS4, vRS, vHB = 233, 234, 235, 236
    vHP, vHL, vFP, vFL, vPL = 241, 242, 243, 244, 245
    vEXW, vEXR = 246, 247
    k(f"""
    s_mul_i32 s36, s24, 200
    s_mul_i32 s37, s21, 100
    s_add_u32 s36, s36, s37
    s_mul_i32 s37, s22, 50
    s_add_u32 s36, s36, s37
    s_lshl_b32 s36, s36, 10
    s_add_u32 s37, s36, {L.W2C}
    s_add_u32 s36, s36, {L.W1C}
    v_lshrrev_b32 v2, 1, v3
    s_lshl_b32 s26, s21, 2
    v_add_u32 v2, s26, v2
    v_and_b32 v7, 7, v4
    v_xor_b32 v2, v2, v7
    v_lshlrev_b32 v2, 4, v2
    v_lshl_add_u32 v{vY}, v4, 8, v2
    v_and_b32 v2, 1, v3
    v_lshl_add_u32 v{vY}, v2, 3, v{vY}
    s_mul_i32 s26, s22, 20480
    s_add_u32 s27, s26, {YL}
    v_add_u32 v{vY}, s27, v{vY}
    v_lshlrev_b32 v{vPM}, 5, v4
    v_add_u32 v{vPM}, {MODL}, v{vPM}
    s_lshl_b32 s27, s21, 3
    v_add_u32 v2, s27, v3
    v_xor_b32 v2, v2, v7
    v_lshlrev_b32 v2, 4, v2
    v_and_b32 v7, 3, v4
    v_lshl_add_u32 v2, v7, 8, v2
    v_lshrrev_b32 v7, 2, v4
    v_lshl_add_u32 v2, v7, 10, v2
    s_add_u32 s27, s26, {AT}
    v_add_u32 v{vAW}, s27, v2
    v_xor_b32 v2, v4, v3                 ; m ^ g
    v_lshlrev_b32 v2, 4, v2
    v_lshl_add_u32 v2, v3, 8, v2
    v_xor_b32 v7, 64, v2                 ; odd-ks
    s_mul_i32 s26, s22, 30720
    s_add_u32 s26, s26, {AT}
    s_mul_i32 s27, s22, 10240
    s_sub_u32 s27, {AT + 20480}, s27
    v_add_u32 v{vA0e}, s26, v2
    v_add_u32 v{vA0o}, s26, v7
    v_add_u32 v{vA1e}, s27, v2
    v_add_u32 v{vA1o}, s27, v7
    v_lshlrev_b32 v2, 4, v3
    s_mul_i32 s26, s21, {96*4}
    s_add_u32 s26, s26, {CSL}
    v_add_u32 v{vCS}, s26, v2
    s_mul_i32 s26, s21, {16*4}
    s_add_u32 s26, s26, {CSL + 64*4}
    v_add_u32 v{vCS4}, s26, v2
    s_lshl_b32 s26, s22, 7
    s_add_u32 s26, s26, {RSL}
    v_lshl_add_u32 v{vRS}, v4, 3, s26
    s_mul_i32 s39, s24, 5
    s_mul_i32 s40, s21, 3
    s_add_u32 s40, s40, s39
    s_add_u32 s41, s39, 2                ; ksL = 5j + 2
    v_lshrrev_b32 v12, 1, v3             ; g>>1
    v_and_b32 v13, 1, v3
    v_lshlrev_b32 v13, 3, v13            ; (g&1)*8
    """)
    for t in range(5):
        if t < 4:
            k(f"s_add_u32 s26, s40, {t//2}")
            k(f"v_add_u32 v14, {2*(t&1)}, v12")
        else:
            k(f"s_mov_b32 s26, s41")
            k(f"s_lshl_b32 s27, s21, 1")
            k(f"v_add_u32 v14, s27, v12")
        k(f"""
        s_and_b32 s27, s26, 1
        s_lshl_b32 s27, s27, 2
        v_add_u32 v15, s27, v14
        v_xor_b32 v15, v15, v4
        v_lshlrev_b32 v15, 4, v15
        v_lshl_add_u32 v15, v14, 8, v15
        v_add_u32 v15, v15, v13
        s_mul_i32 s27, s22, 20
        s_add_u32 s27, s27, s26
        s_lshl_b32 s27, s27, 10
        s_add_u32 s27, s27, {AT}
        v_add_u32 v{vHB+t}, s27, v15
        """)
    def fm_store_addr(vP, vL, shift_sgpr, nks, rowbase_s, half_s, kk):
        o = f"v_add_u32 v{vP}, {rowbase_s}, v4\n"
        if shift_sgpr:
            o += f"v_add_u32 v{vP}, {shift_sgpr}, v{vP}\ns_movk_i32 s27, 2048\nv_cmp_gt_u32 s[60:61], s27, v{vP}\n"
        o += f"""
        v_lshrrev_b32 v{vL}, 4, v{vP}
        v_and_b32 v{vP}, 15, v{vP}
        s_mov_b32 s27, {nks*1024}
        v_mul_lo_u32 v{vL}, v{vL}, s27
        v_lshl_add_u32 v{vL}, v{vP}, 4, v{vL}
        v_and_b32 v{vP}, 1, v3
        v_lshlrev_b32 v{vP}, 9, v{vP}
        v_lshrrev_b32 v2, 1, v3
        v_lshl_add_u32 v{vP}, v2, 8, v{vP}
        v_add_u32 v{vP}, v{vP}, v{vL}
        s_lshl_b32 s27, {half_s}, 9
        v_lshl_add_u32 v{vL}, v2, 8, v{vL}
        v_add_u32 v{vL}, s27, v{vL}
        v_and_b32 v2, 1, v3
        v_lshl_add_u32 v{vL}, v2, 3, v{vL}
        """
        kk(o)
    k(f"""
    s_lshr_b32 s26, s24, 1
    s_add_u32 s26, s26, 1
    s_sub_u32 s27, 0, s26
    s_and_b32 s42, s24, 1
    s_cmp_eq_u32 s42, 1
    s_cselect_b32 s42, s27, s26          ; shift: j 0:+1 1:-1 2:+2 3:-2
    s_lshl_b32 s43, s23, 5
    s_lshl_b32 s26, s22, 4
    s_add_u32 s43, s43, s26
    """)
    fm_store_addr(vHP, vHL, "s42", 20, "s43", "s21", k)
    k(f"""
    s_lshl_b32 s44, s40, 10
    s_add_u32 s44, s44, {L.H1S}
    s_lshl_b32 s45, s41, 10
    s_add_u32 s45, s45, {L.H1S}
    s_lshl_b32 s46, s23, 2
    s_add_u32 s46, s46, s24
    s_lshl_b32 s46, s46, 7
    s_add_u32 s46, s46, {L.F1}           ; F1 flag
    s_mul_i32 s26, s20, 5120
    s_add_u32 s26, s26, {EX}
    v_add_u32 v{vEXW}, s26, v8
    s_xor_b32 s27, s20, 2
    s_mul_i32 s27, s27, 5120
    s_add_u32 s27, s27, {EX}
    v_add_u32 v{vEXR}, s27, v8
    v_mov_b32 v{ONE}, 0x3f803f80
    """)
    for s in range(2):
        for b in (SA, NB_):
            k(f"v_mov_b32 v{b+2*s}, 0"); k(f"v_mov_b32 v{b+2*s+1}, 0")
    k = realk
    capL = cap.L
    def tile_dma(sbase, f0, n, s0, tag):
        q = (n + 3) // 4
        o = []
        for i in range(q):
            pre = ""
            if i == 0:
                pre = f"s_mul_i32 s25, s20, {q}\n" + (f"s_min_u32 s25, s25, {n-q}\n" if n % 4 else "") + f"s_lshl_b32 s25, s25, 10\ns_add_u32 s62, s25, {s0*1024}\ns_add_u32 s63, s25, s{sbase}\ns_mov_b32 m0, s62\ns_add_u32 s63, s63, {f0*1024}\n"
            elif i % 4 == 0:
                pre = "s_add_u32 s62, s62, 4096\ns_mov_b32 m0, s62\ns_add_u32 s63, s63, 4096\n"
            o.append((pre + f"buffer_load_dwordx4 v8, s[28:31], s63 offen offset:{(i%4)*1024} lds", tag))
        return o
    w2reg = lambda f: 200 + 4*f if f < 14 else 4*(f - 14)
    def wlist(sreg, tagp, reg=lambda f: 4*f):
        o = []
        for f in range(50):
            pre = f"s_add_u32 s{sreg}, s{sreg}, 4096\n" if (f and f % 4 == 0) else ""
            o.append((pre + f"buffer_load_dwordx4 {ar(reg(f),4)}, v8, s[28:31], s{sreg} offen offset:{(f%4)*1024}", f"{tagp}{f//5}"))
        return o
    w1 = Pend(wlist(36, "w1_"))
    w2 = Pend(wlist(37, "w2_", w2reg))
    w2l = w2.items
    w1.add(w2l[:14]); w2.items = w2l[14:]
    ksdone = [0]; nw2 = [14]
    def g1src():
        if w1.items:
            w1.pop(1); return True
        f = nw2[0]
        if f < 50 and (f - 14) // 5 < ksdone[0]:
            w2.pop(1); nw2[0] += 1; return True
        return False
    if front:
        for x in capL: k(x)
        lp = k.newlab("cp"); ld = k.newlab("cd"); lw = k.newlab("cw")
        k(f"""
        s_cmp_lg_u32 s20, 0
        s_cbranch_scc1 {lw}
        v_lshlrev_b32 v7, 7, v1
        v_mov_b32 v9, 10
        v_mov_b32 v10, 46
        v_cmp_gt_u32 vcc, 16, v1
        s_mov_b32 s47, 0
        s_mov_b32 s48, {L.FC}
        s_nop 0
        v_cndmask_b32 v9, v10, v9, vcc
        s_mov_b64 exec, 0xfffff
        """)
        ls = k.newlab("cs")
        k.lab(lp)
        k(f"""
        buffer_load_dword v2, v7, s[28:31], s48 offen sc1
        s_add_u32 s47, s47, 1
        s_waitcnt vmcnt(0)
        v_cmp_ne_u32 vcc, v9, v2
        s_cmp_ge_u32 s47, {SPIN}
        s_cbranch_scc1 {ld}
        s_cbranch_vccz {ld}
        v_cmp_ne_u32 vcc, 0, v2
        s_nop 1
        s_and_b32 s26, vcc_lo, 0xffff
        s_cmp_lg_u32 s26, 0
        s_cbranch_scc1 {ls}
        s_sleep {E("SLPL", 16)}
        """)
        k.lab(ls)
        k(f"""
        s_sleep {E("SLPS", 2)}
        s_branch {lp}
        """)
        k.lab(ld)
        k("s_mov_b64 exec, -1")
        k.lab(lw)
        k("s_barrier")
        stamp()
        first.pop(100)
        for _ in range(E("W1B", 12)): g1src()
        k.interval = E("IV1", 70); k.last = k.clock; k.src = g1src
    else:
        k.interval = E("IV1", 70); k.last = k.clock; k.src = g1src
        for x in capL: k(x)
        for _ in range(E("W1B", 2)): g1src()
    if os.environ.get("PSTART"): stamp()
    vq.wait("y")
    if os.environ.get("PSTART"): stamp()
    k("s_barrier")
    stamp()
    k(f"v_xor_b32 v12, 32, v{vY}")
    def rd_x(c_):
        t, s_ = c_ // 2, c_ % 2
        va = vY if s_ == 0 else 12
        return [f"ds_read_b64 {vr(XR+4*c_,2)}, v{va} offset:{t*4096}", f"ds_read_b64 {vr(XR+4*c_+2,2)}, v{va} offset:{t*4096+128}"]
    emit(rd_x(0) + rd_x(1) + rd_x(2))
    for c_ in range(10):
        s_ = c_ % 2
        nxt = rd_x(c_ + 3) if c_ + 3 < 10 else []
        k(f"s_waitcnt lgkmcnt({min(4, 2*(9-c_))})")
        v = []
        for d in range(4):
            x = XR + 4*c_ + d
            v.append(f"v_dot2_f32_bf16 v{NB_+2*s_}, v{x}, v{ONE}, v{NB_+2*s_}")
            v.append(f"v_lshlrev_b32 v{XF+8*c_+2*d}, 16, v{x}")
            v.append(f"v_dot2_f32_bf16 v{NB_+2*s_+1}, v{x}, v{x}, v{NB_+2*s_+1}")
            v.append(f"v_and_b32 v{XF+8*c_+2*d+1}, 0xffff0000, v{x}")
        emit(il(v, nxt, 0.6))
    k("s_nop 2")
    emit(reduce16_ops([NB_, NB_+1, NB_+2, NB_+3]))
    emit(zipl(ln_ops(NB_, NB_+1, T, 640), ln_ops(NB_+2, NB_+3, T+1, 640)))
    stamp()
    def rd_c(t):
        b = t & 1
        o = []
        for vi, vec in enumerate((4, 3)):
            o.append(f"ds_read_b128 {vr(PM+16*b+8*vi,4)}, v{vPM} offset:{vec*2560+t*512}")
            o.append(f"ds_read_b128 {vr(PM+16*b+8*vi+4,4)}, v{vPM} offset:{vec*2560+t*512+16}")
        return o
    for s in range(2):
        k(f"v_mov_b32 v{SA+2*s}, 0"); k(f"v_mov_b32 v{SA+2*s+1}, 0")
    k(f"v_xor_b32 v12, 64, v{vAW}")
    emit(rd_c(0))
    for c_ in range(10):
        t, s = c_ // 2, c_ % 2
        nxt = rd_c(t + 1) if (s == 0 and t < 4) else []
        if s == 0: k(f"s_waitcnt lgkmcnt({1 if c_ else 0})")
        M = PM + 16*(t & 1); S_ = SA + 2*s; N_ = NB_ + 2*s
        X_ = XF + 8*c_; R_ = XR + 4*c_
        v = []
        for d in range(4): v.append(f"v_pk_fma_f32 {vr(X_+2*d,2)}, {vr(X_+2*d,2)}, {vr(N_,2)}, {vr(N_,2)} {BC}")
        for d in range(4): v.append(f"v_pk_fma_f32 {vr(X_+2*d,2)}, {vr(X_+2*d,2)}, {vr(M+2*d,2)}, {vr(M+8+2*d,2)}")
        for d in range(4): v.append(f"v_cvt_pk_bf16_f32 v{R_+d}, v{X_+2*d}, v{X_+2*d+1}")
        for d in range(4):
            v.append(f"v_dot2_f32_bf16 v{S_}, v{R_+d}, v{ONE}, v{S_}")
            v.append(f"v_dot2_f32_bf16 v{S_+1}, v{R_+d}, v{R_+d}, v{S_+1}")
        emit(il(v, nxt, 0.6))
        k(f"ds_write_b128 v{vAW if s == 0 else 12}, {vr(R_,4)} offset:{4096*t}")
    while w1.has("w1_9"): w1.pop(1)
    k("""
    s_waitcnt lgkmcnt(0)
    s_barrier
    """)
    ln3 = [x for x in reduce16_ops([SA, SA+1, SA+2, SA+3]) + zipl(ln_ops(SA, SA+1, T, 640), ln_ops(SA+2, SA+3, T+1, 640)) if not x.startswith("s_nop")]
    ln3 += [f"s_lshl_b32 s26, s20, 6", f"v_lshl_add_u32 v2, v3, 3, s26", f"v_add_u32 v2, {RSL}, v2", f"ds_write_b64 v2, {vr(SA,2)}", f"ds_write_b64 v2, {vr(SA+2,2)} offset:32"]
    stamp()
    ACC, AF, RCV = 32, 72, 88
    CS, CS2, RS, GT, VC, PK = 112, 132, 152, 160, 30, 180
    def aread(ks):
        b = AF + 8 * (ks & 1)
        va, vb = (vA0e, vA1e) if ks % 2 == 0 else (vA0o, vA1o)
        return [f"ds_read_b128 {vr(b,4)}, v{va} offset:{ks*1024}", f"ds_read_b128 {vr(b+4,4)}, v{vb} offset:{ks*1024}"]
    side = []
    for t in range(4):
        side.append(f"ds_read_b128 {vr(CS+4*t,4)}, v{vCS} offset:{64*t}")
        side.append(f"ds_read_b128 {vr(CS2+4*t,4)}, v{vCS} offset:{64*t+1024}")
    side.append(f"ds_read_b128 {vr(CS+16,4)}, v{vCS4}")
    side.append(f"ds_read_b128 {vr(CS2+16,4)}, v{vCS4} offset:1024")
    for t in range(5): side.append(f"ds_read_b64 {vr(HBR+2*t,2)}, v{vHB+t}")
    emit(aread(0))
    for ks in range(10):
        ksdone[0] = ks
        vq.wait(f"w1_{ks}", "lgkmcnt(0)")
        b = AF + 8 * (ks & 1)
        mf = []
        for t in range(5):
            for rt in range(2):
                a = ACC + (rt * 5 + t) * 4
                c = "0" if ks == 0 else vr(a, 4)
                mf.append(f"v_mfma_f32_16x16x32_bf16 {vr(a,4)}, {ar((ks*5+t)*4,4)}, {vr(b+4*rt,4)}, {c}")
        ds = aread(ks + 1) if ks < 9 else []
        ds += side[:2]; side = side[2:]
        for i, m_ in enumerate(mf):
            k(m_)
            if i % 2 == 1 and i < 8 and ds: k(ds.pop(0))
            elif ln3 and ks >= 1: k(ln3.pop(0))
        emit(ds)
    assert not side
    emit(ln3)
    stamp()
    def exchange():
        k("s_nop 4")
        for t in range(5):
            k(f"ds_write_b128 v{vEXW}, {vr(ACC+(5+t)*4,4)} offset:{1024*t}")
    def exchange2():
        k("s_waitcnt lgkmcnt(0)")
        k("s_barrier")
        for t in range(5):
            k(f"ds_read_b128 {vr(RCV+4*t,4)}, v{vEXR} offset:{1024*t}")
    ksdone[0] = 10
    k("s_waitcnt lgkmcnt(0)")
    exchange()
    for t in range(5):
        for i in (0, 2):
            k(f"v_pk_add_f32 {vr(CS+4*t+i,2)}, {vr(CS+4*t+i,2)}, {vr(CS2+4*t+i,2)}")
    k(f"v_mov_b32 v{VC}, {fhex(C1)}")
    k(f"v_mov_b32 v{VC+1}, {fhex(C0)}")
    k("s_waitcnt lgkmcnt(0)")
    k("s_barrier")
    k(f"ds_read_b64 {vr(RS,2)}, v{vRS}")
    for t in range(5):
        k(f"ds_read_b128 {vr(RCV+4*t,4)}, v{vEXR} offset:{1024*t}")
    k("s_waitcnt lgkmcnt(5)")
    for t in range(5):
        for i in (0, 2): k(f"v_pk_mul_f32 {vr(CS+4*t+i,2)}, {vr(CS+4*t+i,2)}, {vr(RS,2)} op_sel_hi:[1,0]")
    for t in range(5):
        z = ACC + 4*t
        k(f"s_waitcnt lgkmcnt({4-t})")
        for i in (0, 2): k(f"v_pk_add_f32 {vr(z+i,2)}, {vr(z+i,2)}, {vr(RCV+4*t+i,2)}")
    for t in range(5):
        z = ACC + 4*t
        for i in (0, 2): k(f"v_pk_fma_f32 {vr(z+i,2)}, {vr(z+i,2)}, {vr(RS,2)}, {vr(CS+4*t+i,2)} op_sel:[0,1,0] op_sel_hi:[1,1,1]")
    if os.environ.get("VERB"): print("W2 left at gelu start", 50 - nw2[0], "w1 left", len(w1.items))
    gl = gelu_ops(ACC, 192, VC, 20)
    cut = int(len(gl) * float(os.environ.get("G1CUT", "1.0")))
    emit(gl[:cut])
    k.src = None
    emit(gl[cut:])
    if os.environ.get("VERB"): print("W2 left after gelu", 50 - nw2[0])
    for t in range(5):
        k(f"v_cvt_pk_bf16_f32 v{PK+2*t}, v{ACC+4*t}, v{ACC+4*t+1}")
        k(f"v_cvt_pk_bf16_f32 v{PK+2*t+1}, v{ACC+4*t+2}, v{ACC+4*t+3}")
    def pair_swaps(pk, npairs):
        k("s_nop 1")
        for p in range(npairs):
            k(f"v_permlane16_swap_b32 v{pk+4*p}, v{pk+4*p+2}")
            k(f"v_permlane16_swap_b32 v{pk+4*p+1}, v{pk+4*p+3}")
    pair_swaps(PK, 2)
    k("s_mov_b64 exec, s[60:61]")
    vq.issue(f"buffer_store_dwordx4 {vr(PK,4)}, v{vHP}, s[28:31], s44 offen", "st")
    vq.issue(f"buffer_store_dwordx4 {vr(PK+4,4)}, v{vHP}, s[28:31], s44 offen offset:1024", "st")
    vq.issue(f"buffer_store_dwordx2 {vr(PK+8,2)}, v{vHL}, s[28:31], s45 offen", "st")
    k("s_mov_b64 exec, -1")
    def signal(sreg):
        vq.drain()
        k("s_barrier")
        l = k.newlab("sig")
        k(f"""
        s_cmp_lg_u32 s20, 0
        s_cbranch_scc1 {l}
        v_mov_b32 v2, 1
        v_mov_b32 v7, 0
        s_mov_b64 exec, 1
        buffer_store_dword v2, v7, s[28:31], s{sreg} offen
        s_mov_b64 exec, -1
        """)
        k.lab(l)
    fm_store_addr(vFP, vFL, None, 20, "s43", "s21", k)
    k(f"""
    s_add_u32 s38, s44, {L.X1 - L.H1S}
    s_add_u32 s39, s45, {L.X1 - L.H1S}   ; X1 leftover
    s_add_u32 s49, s46, {L.F2 - L.F1}    ; F2 flag
    ; G2 poll lanes: 0:(rb-1,2kh) 1:(rb,2kh) 2:(rb,2kh+1) 3:(rb+1,2kh+1)
    v_add_u32 v7, 1, v1
    v_lshrrev_b32 v7, 1, v7
    v_add_u32 v7, s23, v7
    v_subrev_u32 v7, 1, v7
    v_max_i32 v7, 0, v7
    v_min_i32 v7, 63, v7
    v_lshrrev_b32 v2, 1, v1
    s_lshl_b32 s26, s22, 1
    v_add_u32 v2, s26, v2
    v_lshl_add_u32 v7, v7, 2, v2
    v_lshlrev_b32 v{vPL}, 7, v7
    ; G2 X bases
    s_lshl_b32 s26, s23, 1
    s_add_u32 s27, s26, s22
    s_mul_i32 s27, s27, 20
    s_mul_i32 s3, s22, 10
    s_add_u32 s27, s27, s3
    s_lshl_b32 s27, s27, 10
    s_add_u32 s50, s27, {L.H1S}
    s_add_u32 s27, s26, 1
    s_sub_u32 s27, s27, s22
    s_mul_i32 s27, s27, 20
    s_add_u32 s27, s27, s3
    s_lshl_b32 s27, s27, 10
    s_add_u32 s51, s27, {L.H1S}
    ; G3 / G4 tile ids (2D XCD partition: XCD pair shares 512 rows, each XCD takes half of the columns)
    s_lshr_b32 s26, s2, 3                ; idx
    s_and_b32 s3, s2, 7                  ; x
    s_and_b32 s4, s3, 1                  ; x&1
    s_lshr_b32 s3, s3, 1                 ; x>>1
    s_and_b32 s52, s26, 7
    s_lshl_b32 s27, s4, 3
    s_add_u32 s52, s52, s27              ; j16 = 8(x&1) + (idx&7)
    s_lshr_b32 s27, s26, 3
    s_lshl_b32 s53, s3, 2
    s_add_u32 s53, s53, s27
    s_and_b32 s57, s26, 3
    s_lshl_b32 s27, s4, 2
    s_add_u32 s57, s57, s27              ; j8 = 4(x&1) + (idx&3)
    s_lshr_b32 s27, s26, 2
    s_lshl_b32 s58, s3, 3
    s_add_u32 s58, s58, s27
    {G4MAP}
    {G3MAP}
    s_mul_i32 s54, s52, {140*1024}
    s_add_u32 s54, s54, {L.W3C}
    s_mul_i32 s59, s57, {270*1024}
    s_add_u32 s59, s59, {L.W4C}
    """)
    stamp()
    signal(46)
    stamp()
    def finish():
        if os.environ.get("PROF3"):
            n = nst[0]
            k(f"""
            s_waitcnt vmcnt(0) lgkmcnt(0)
            s_lshl_b32 s26, s2, 2
            s_add_u32 s26, s26, s20
            s_lshl_b32 s26, s26, 7
            s_add_u32 s26, s26, {L.PROFOFF + 0x100000}
            v_mov_b32 v7, 0
            s_mov_b64 exec, 1
            """)
            for i in range(n):
                k(f"v_mov_b32 v2, s{64+2*i}")
                k(f"buffer_store_dword v2, v7, s[28:31], s26 offen offset:{4*i}")
                k("s_nop 0")
        k("s_endpgm")
    if STOP == "G1":
        finish(); k.lab(end); k("s_endpgm"); return kern

    def poll(vfl, nl, sbase):
        l = k.newlab("poll"); d = k.newlab("polld")
        k(f"""
        s_mov_b32 s47, 0
        s_mov_b64 exec, {(1 << nl) - 1}
        """)
        if E("POLL2", 0):
            k(f"buffer_load_dword v248, v{vfl}, s[28:31], {sbase} offen sc1")
            k(f"s_nop 15")
            k.lab(l)
            k(f"""
            buffer_load_dword v249, v{vfl}, s[28:31], {sbase} offen sc1
            s_add_u32 s47, s47, 1
            s_waitcnt vmcnt(1)
            v_cmp_ne_u32 vcc, 1, v248
            s_cmp_ge_u32 s47, {SPIN}
            s_cbranch_scc1 {d}
            s_cbranch_vccz {d}
            buffer_load_dword v248, v{vfl}, s[28:31], {sbase} offen sc1
            s_waitcnt vmcnt(1)
            v_cmp_ne_u32 vcc, 1, v249
            s_cbranch_vccnz {l}
            """)
            k.lab(d)
            k("s_mov_b64 exec, -1")
            vq.q = ["pollx"]
            return
        k.lab(l)
        k(f"""
        buffer_load_dword v2, v{vfl}, s[28:31], {sbase} offen sc1
        s_add_u32 s47, s47, 1
        s_waitcnt vmcnt(0)
        v_cmp_ne_u32 vcc, 1, v2
        s_cmp_ge_u32 s47, {SPIN}
        s_cbranch_scc1 {d}
        """)
        if E("CSLP", 0):
            k(f"s_cbranch_vccz {d}")
            k(f"s_sleep {E('CSLP', 0)}")
            k(f"s_branch {l}")
        else:
            k(f"s_cbranch_vccnz {l}")
        k.lab(d)
        k("s_mov_b64 exec, -1")
        vq.q = []

    w1.pop(100); w2.pop(100)
    NW3E = E("NW3E", 40)
    w3 = Pend(tile_dma(54, 0, NW3E, 0, "w3") if NW3E else [])
    w3.pop(100)
    vP3, vL3, vST, vF3 = 226, 227, 228, 229
    k(f"""
    s_lshl_b32 s26, s53, 3
    s_lshl_b32 s27, s20, 1
    s_add_u32 s56, s26, s27              ; G3 row tile of rt'=0 : 8rb128 + 2w
    s_mul_i32 s6, s56, 20480
    s_add_u32 s6, s6, {L.X1}             ; G3 X base rt0
    s_add_u32 s7, s6, 20480
    s_lshl_b32 s26, s53, 2
    s_add_u32 s26, s26, s20
    s_lshl_b32 s26, s26, 9
    s_add_u32 s8, s26, {L.F2}            ; G3 poll base
    v_lshlrev_b32 v{vST}, 3, v4
    v_lshl_add_u32 v{vST}, v3, 8, v{vST} ; g*256 + m*8
    s_lshl_b32 s9, s56, 10
    s_add_u32 s9, s9, {L.ST2}            ; G3 stats base
    s_and_b32 s42, s52, 1
    s_mul_i32 s12, s52, 7
    s_add_u32 s13, s12, 1
    s_lshr_b32 s13, s13, 1               ; ksP = (7j+1)>>1
    s_add_u32 s26, s13, 3
    s_sub_u32 s27, s13, 1
    s_cmp_eq_u32 s42, 1
    s_cselect_b32 s12, s27, s26          ; ksL
    s_lshl_b32 s13, s13, 10
    s_add_u32 s13, s13, {L.H3}
    s_lshl_b32 s12, s12, 10
    s_add_u32 s12, s12, {L.H3}
    s_lshl_b32 s14, s56, 4
    s_lshl_b32 s15, s53, 4
    s_add_u32 s15, s15, s52
    s_lshl_b32 s15, s15, 2
    s_add_u32 s15, s15, s20
    s_lshl_b32 s15, s15, 7
    s_add_u32 s15, s15, {L.F3}           ; F3 flag
    ; ST2 store offset for G2: [rowtile][part = 2j+nh][m][2]
    s_lshr_b32 s26, s43, 4
    s_lshl_b32 s26, s26, 3
    s_lshl_b32 s27, s24, 1
    s_add_u32 s26, s26, s27
    s_add_u32 s26, s26, s21
    s_lshl_b32 s26, s26, 7
    s_add_u32 s19, s26, {L.ST2}
    """)
    fm_store_addr(vP3, vL3, None, 54, "s14", "s42", k)
    k(f"s_mov_b32 s48, {L.F1}")
    poll(vPL, 4, "s48")
    stamp()
    XV = 72
    def xload(reg, ks, s0, tagp, agpr):
        o = []
        for rt in range(2):
            pre = f"s_add_u32 s{s0}, s{s0}, 4096\ns_add_u32 s{s0+1}, s{s0+1}, 4096\n" if (rt == 0 and ks and ks % 4 == 0) else ""
            r = reg + (ks*2+rt)*4
            o.append((pre + f"buffer_load_dwordx4 {ar(r,4) if agpr else vr(r,4)}, v8, s[28:31], s{s0+rt} offen offset:{(ks%4)*1024} {XSC}", f"{tagp}{ks}"))
        return o
    px = Pend()
    for ks in range(10): px.add(xload(XV, ks, 50, "x2_", False))
    NPRE = E("NPRE", 5)
    px.pop(2 * NPRE)
    w3 = Pend(tile_dma(54, NW3E, 120 - NW3E, NW3E, "w3") + tile_dma(54, 120, 20, 120, "w3"))
    for ks in range(10):
        vq.wait(f"x2_{ks}")
        i = 0
        for t in range(5):
            for rt in range(2):
                a = ACC + (rt * 5 + t) * 4
                c = "0" if ks == 0 else vr(a, 4)
                k(f"v_mfma_f32_16x16x32_bf16 {vr(a,4)}, {ar(w2reg(ks*5+t),4)}, {vr(XV+(ks*2+rt)*4,4)}, {c}")
            if px.items:
                if t in (0, 2): px.pop(1)
            elif t in ((0, 1, 3) if NW3E == 40 else (0, 1, 2, 3)): w3.pop(1)
    stamp()
    exchange()
    for t in range(5):
        k(f"v_lshlrev_b32 v{CS+4*t}, 16, v{HBR+2*t}")
        k(f"v_and_b32 v{CS+4*t+1}, 0xffff0000, v{HBR+2*t}")
        k(f"v_lshlrev_b32 v{CS+4*t+2}, 16, v{HBR+2*t+1}")
        k(f"v_and_b32 v{CS+4*t+3}, 0xffff0000, v{HBR+2*t+1}")
    for t in range(5):
        for i in (0, 2): k(f"v_pk_add_f32 {vr(ACC+4*t+i,2)}, {vr(ACC+4*t+i,2)}, {vr(CS+4*t+i,2)}")
    k("v_mov_b32 v28, 0")
    k("v_mov_b32 v29, 0")
    w3.pop(100)
    exchange2()
    for t in range(5):
        z = ACC + 4*t
        k(f"s_waitcnt lgkmcnt({4-t})")
        for i in (0, 2): k(f"v_pk_add_f32 {vr(z+i,2)}, {vr(z+i,2)}, {vr(RCV+4*t+i,2)}")
        k(f"v_cvt_pk_bf16_f32 v{PK+2*t}, v{z}, v{z+1}")
        k(f"v_cvt_pk_bf16_f32 v{PK+2*t+1}, v{z+2}, v{z+3}")
    for r in range(10):
        k(f"v_dot2_f32_bf16 v28, v{PK+r}, v{ONE}, v28")
        k(f"v_dot2_f32_bf16 v29, v{PK+r}, v{PK+r}, v29")
    pair_swaps(PK, 2)
    vq.issue(f"buffer_store_dwordx4 {vr(PK,4)}, v{vFP}, s[28:31], s38 offen", "st")
    vq.issue(f"buffer_store_dwordx4 {vr(PK+4,4)}, v{vFP}, s[28:31], s38 offen offset:1024", "st")
    vq.issue(f"buffer_store_dwordx2 {vr(PK+8,2)}, v{vFL}, s[28:31], s39 offen", "st")
    emit(reduce_g_ops([28, 29], GT))
    k("v_lshlrev_b32 v2, 3, v4")
    k("s_mov_b64 exec, 0xffff")
    vq.issue("buffer_store_dwordx2 v[28:29], v2, s[28:31], s19 offen", "st")
    k("s_mov_b64 exec, -1")
    w3.pop(100)
    stamp()
    signal(49)
    stamp()
    if STOP == "G2":
        finish(); k.lab(end); k("s_endpgm"); return kern

    DST = E("DST", 19)
    def step_slot(st):
        if st == 0 or st == 16: return 140
        if 1 <= st <= 8: return (st - 1) * 10
        if st == 9: return 150
        if st in (10, 11): return 120 + (st - 10) * 10
        if 12 <= st <= 15: return 80 + (st - 12) * 10
        if 17 <= st <= 24: return (st - 17) * 10
        raise Exception(st)
    w4_issue = lambda f0, n, s0, tag="w4": tile_dma(59, f0, n, s0, tag)
    w4a = Pend(w4_issue(0, 10, 140))
    CS3, CS3b = 88, 116
    k(f"""
    v_and_b32 v2, 31, v1
    v_lshlrev_b32 v2, 4, v2
    v_lshrrev_b32 v7, 5, v1
    v_mul_u32_u24 v7, {1792*4}, v7
    v_add_u32 v2, v2, v7
    s_mul_i32 s26, s52, 448
    s_add_u32 s26, s26, {L.CS3P}
    s_mov_b32 m0, {CS3L}
    s_nop 0
    """)
    vq.issue("buffer_load_dwordx4 v2, s[28:31], s26 offen lds", "cs3")
    vX4, vO4P, vO4L, vGB, vP4, vXA = 230, 231, 232, 233, 234, 235
    k(f"""
    s_and_b32 s36, s57, 1
    s_lshl_b32 s43, s58, 6
    s_lshl_b32 s26, s21, 5
    s_add_u32 s43, s43, s26
    s_lshl_b32 s26, s22, 4
    s_add_u32 s43, s43, s26
    s_mul_i32 s40, s57, 5
    s_add_u32 s41, s40, 1
    s_lshr_b32 s41, s41, 1               ; ksP
    s_add_u32 s26, s41, 2
    s_sub_u32 s27, s41, 1
    s_cmp_eq_u32 s36, 1
    s_cselect_b32 s40, s27, s26          ; ksL
    s_lshl_b32 s44, s41, 10
    s_lshl_b32 s45, s40, 10
    s_lshl_b32 s26, s36, 9
    s_add_u32 s45, s45, s26
    s_lshr_b32 s26, s58, 1
    s_lshl_b32 s26, s26, 4
    s_mul_i32 s27, s22, 7
    s_add_u32 s26, s26, s27
    s_lshl_b32 s26, s26, 2
    s_and_b32 s27, s58, 1
    s_lshl_b32 s27, s27, 1
    s_add_u32 s26, s26, s27
    s_add_u32 s26, s26, s21
    s_lshl_b32 s26, s26, 7
    s_add_u32 s48, s26, {L.F3}
    v_lshlrev_b32 v{vP4}, 9, v1
    s_lshl_b32 s26, s58, 2
    s_lshl_b32 s27, s21, 1
    s_add_u32 s26, s26, s27
    s_add_u32 s27, s26, s22
    s_mul_i32 s27, s27, 54
    s_mul_i32 s39, s22, 27
    s_add_u32 s27, s27, s39
    s_lshl_b32 s27, s27, 10
    s_add_u32 s50, s27, {L.H3}
    s_add_u32 s27, s26, 1
    s_sub_u32 s27, s27, s22
    s_mul_i32 s27, s27, 54
    s_add_u32 s27, s27, s39
    s_lshl_b32 s27, s27, 10
    s_add_u32 s51, s27, {L.H3}
    v_add_u32 v9, s43, v4
    v_lshrrev_b32 v11, 4, v9
    v_and_b32 v10, 15, v9
    v_mul_u32_u24 v11, 20480, v11
    v_lshl_add_u32 v11, v10, 4, v11
    v_lshrrev_b32 v2, 1, v3
    v_lshl_add_u32 v11, v2, 8, v11
    v_and_b32 v7, 1, v3
    v_lshl_add_u32 v{vX4}, v7, 3, v11
    v_mul_u32_u24 v9, 1280, v9
    v_lshlrev_b32 v7, 5, v7
    v_lshl_add_u32 v7, v2, 4, v7         ; (g&1)*32 + (g>>1)*16
    v_add_u32 v{vO4P}, v9, v7
    v_lshl_add_u32 v{vO4L}, v3, 3, v9
    v_lshlrev_b32 v{vGB}, 4, v3
    v_add_u32 v9, s43, v4
    v_lshrrev_b32 v10, 4, v9
    v_mul_u32_u24 v10, 20480, v10
    v_and_b32 v11, 1, v9
    v_lshl_add_u32 v10, v11, 3, v10
    v_lshl_add_u32 v10, v3, 7, v10       ; + g*128
    v_bfe_u32 v11, v9, 1, 3
    s_mul_i32 s26, s57, 20
    s_lshl_b32 s27, s36, 2
    s_add_u32 s27, s27, s26
    s_mul_i32 s3, s36, 16
    s_sub_u32 s3, 16, s3
    s_add_u32 s3, s3, s26""")
    for t in range(5):
        k(f"""
        {"s_add_u32 s4, s27, %d" % (4*t) if t < 4 else "s_mov_b32 s4, s3"}
        v_add_u32 v2, s4, v3
        v_bfe_u32 v2, v2, 1, 3
        v_xor_b32 v2, v2, v11
        v_lshl_add_u32 v2, v2, 4, v10
        s_lshl_b32 s4, s4, 7
        v_add_u32 v{vXA+t}, s4, v2
        """)
    k(f"""
    s_mul_i32 s37, s57, 320
    s_add_u32 s37, s37, {L.MODF + 5*2560}
    s_mul_i32 s26, s36, 256
    s_sub_u32 s26, 256, s26
    s_add_u32 s38, s37, s26              ; gb t=4
    s_lshl_b32 s26, s36, 6
    s_add_u32 s37, s37, s26              ; gb t<4
    s_mul_i32 s26, s57, 160
    s_lshl_b32 s27, s36, 5
    s_add_u32 s46, s26, s27
    s_mul_i32 s27, s36, 128
    s_sub_u32 s27, 128, s27
    s_add_u32 s49, s26, s27              ; leftover
    """)
    vq.wait("cs3")
    k(f"""
    s_lshl_b32 s26, s42, 6
    v_lshlrev_b32 v2, 4, v3
    v_add_u32 v7, {CS3L}, v2
    v_add_u32 v2, s26, v7
    s_mul_i32 s26, s42, {6*64}
    s_sub_u32 s26, {6*64}, s26
    v_add_u32 v7, s26, v7
    """)
    for t in range(6):
        k(f"ds_read_b128 {vr(CS3+4*t,4)}, v2 offset:{64*t}")
        k(f"ds_read_b128 {vr(CS3b+4*t,4)}, v2 offset:{64*t+512}")
    k(f"ds_read_b128 {vr(CS3+24,4)}, v7")
    k(f"ds_read_b128 {vr(CS3b+24,4)}, v7 offset:512")
    k("s_waitcnt lgkmcnt(0)")
    for t in range(7):
        for i in (0, 2):
            k(f"v_pk_add_f32 {vr(CS3+4*t+i,2)}, {vr(CS3+4*t+i,2)}, {vr(CS3b+4*t+i,2)}")
    XAR, GB = 116, 204
    resE = []
    for t in range(5):
        resE.append((f"s_mov_b32 s26, {L.YT}\nbuffer_load_dwordx2 {vr(XAR+2*t,2)}, v{vXA+t}, s[28:31], s26 offen", "resE"))
    for t in range(4):
        resE.append((f"buffer_load_dwordx4 {vr(GB+4*t,4)}, v{vGB}, s[28:31], s37 offen offset:{64*t}", "resE"))
    resE.append((f"buffer_load_dwordx4 {vr(GB+16,4)}, v{vGB}, s[28:31], s38 offen", "resE"))
    ACC3, WB, NWB = 32, 160, 12
    k(f"v_mov_b32 v12, v8")
    k(f"v_add_u32 v13, 0x10000, v8")
    k(f"v_add_u32 v14, 0x20000, v8")
    def wread(slot, buf, base=WB):
        o = slot * 1024
        return f"ds_read_b128 {ar(base+4*buf,4)}, v{12 + (o >> 16)} offset:{o & 0xffff}"
    uses = [(0, ks, t) for ks in range(20) for t in (0, 1, 2, 3, 6)] + [(1, ks, t) for ks in range(20) for t in (4, 5)]
    def slot3(u):
        gi, ks, t = u
        return ks * 4 + t if t < 4 else (80 + ks * 2 + t - 4 if t < 6 else 120 + ks)
    for i in range(NWB - 1): k(wread(slot3(uses[i]), i % NWB))
    k("v_lshlrev_b32 v7, 7, v1")
    poll(7, 4, "s8")
    stamp()
    px = Pend()
    for ks in range(20): px.add(xload(0, ks, 6, "x3_", True))
    STR = 16
    for rt in range(2):
        px.add([(f"buffer_load_dwordx2 {vr(STR+4*rt,2)}, v{vST}, s[28:31], s9 offen offset:{1024*rt} sc1", "st2"),
                (f"buffer_load_dwordx2 {vr(STR+4*rt+2,2)}, v{vST}, s[28:31], s9 offen offset:{1024*rt+128} sc1", "st2")])
    px.add(resE)
    px.pop(2 * E("NPRE3", 5))
    w4b = Pend()
    for i, u in enumerate(uses):
        gi, ks, t = u
        if os.environ.get("PG3") and ((gi == 0 and t == 0 and ks in (1, 10)) or (gi > 0 and ks == 0 and t == 4)): stamp()
        grp = 5 if gi == 0 else 4
        first_of_grp = (t == 0) if gi == 0 else (t == 4 and ks % 2 == 0)
        if first_of_grp:
            issued = min(i + NWB - 1, len(uses))
            need = min(i + grp, len(uses))
            allow = max(0, issued - need)
            if gi == 0: vq.wait(f"x3_{ks}", f"lgkmcnt({allow})")
            else: k(f"s_waitcnt lgkmcnt({allow})")
        for rt in range(2):
            a = ACC3 + (rt * 7 + t) * 4
            c = "0" if ks == 0 else vr(a, 4)
            k(f"v_mfma_f32_16x16x32_bf16 {vr(a,4)}, {ar(WB+4*(i%NWB),4)}, {ar((ks*2+rt)*4,4)}, {c}")
        if i + NWB - 1 < len(uses): k(wread(slot3(uses[i + NWB - 1]), (i + NWB - 1) % NWB))
        if gi == 0 and (t in (0, 2) or (t == 4 + 2 and ks >= E("X3S", 8))): px.pop(1)
        if gi == 0 and ks >= 17 and t in (1, 3): w4a.pop(1)
        if gi == 1 and ks == 1 and t == 5:
            k("s_barrier")
            w4b.add(w4_issue(10, 80, 0) + w4_issue(90, 10, 150) + w4_issue(100, 20, 120))
        if gi == 1 and ks > 1: w4b.pop(1)
    stamp()
    w4b.pop(100)
    k("s_barrier")
    w4c = Pend(w4_issue(120, 40, 80))
    k(f"s_mul_i32 s26, s22, 5120")
    k(f"s_add_u32 s55, s59, s26")
    k(f"s_add_u32 s55, s55, {DST*10240}")
    dreg = lambda st, t: 256 - (27 - DST) * 20 + (st - DST) * 20 + 4 * t
    for st in range(DST, 27):
        for t in range(5):
            pre = "s_add_u32 s55, s55, 4096\n" if t == 4 else ""
            post = f"\ns_add_u32 s55, s55, {10240 - 4096}" if t == 4 else ""
            w4c.add([(pre + f"buffer_load_dwordx4 {ar(dreg(st,t),4)}, v8, s[28:31], s55 offen offset:{(t%4)*1024}" + post, "w4d")])
    k.interval = E("IV3", 78); k.last = k.clock; k.src = lambda: (w4c.pop(1) or True) if w4c.items else False
    vq.wait("st2")
    for rt in range(2):
        k(f"v_add_f32 v{STR+4*rt}, v{STR+4*rt}, v{STR+4*rt+2}")
        k(f"v_add_f32 v{STR+4*rt+1}, v{STR+4*rt+1}, v{STR+4*rt+3}")
    k("s_nop 0")
    emit(reduce_g_ops([STR, STR+1, STR+4, STR+5], 24))
    emit(zipl(ln_ops(STR, STR+1, STR+2, 640), ln_ops(STR+4, STR+5, STR+6, 640)))
    k(f"v_mov_b32 v{VC}, {fhex(C1)}")
    k(f"v_mov_b32 v{VC+1}, {fhex(C0)}")
    PK3, GT3 = 144, 176
    for rt in range(2):
        RS3 = STR + 4*rt
        A0 = ACC3 + rt * 28
        for t in range(7):
            for i in (0, 2): k(f"v_pk_mul_f32 {vr(GT3+4*t+i,2)}, {vr(CS3+4*t+i,2)}, {vr(RS3,2)} op_sel_hi:[1,0]")
        for t in range(7):
            z = A0 + 4*t
            for i in (0, 2): k(f"v_pk_fma_f32 {vr(z+i,2)}, {vr(z+i,2)}, {vr(RS3,2)}, {vr(GT3+4*t+i,2)} op_sel:[0,1,0] op_sel_hi:[1,1,1]")
        emit(gelu_ops(A0, GT3, VC, 28))
        if rt == 1: k.src = None
        for t in range(7):
            k(f"v_cvt_pk_bf16_f32 v{PK3+16*rt+2*t}, v{A0+4*t}, v{A0+4*t+1}")
            k(f"v_cvt_pk_bf16_f32 v{PK3+16*rt+2*t+1}, v{A0+4*t+2}, v{A0+4*t+3}")
        sv = k.src; k.src = None
        pair_swaps(PK3 + 16*rt, 3)
        off = rt * 54 * 1024
        k(f"s_add_u32 s26, s13, {off}")
        k(f"s_add_u32 s27, s12, {off}")
        vq.issue(f"buffer_store_dwordx4 {vr(PK3+16*rt,4)}, v{vP3}, s[28:31], s26 offen", "st")
        vq.issue(f"buffer_store_dwordx2 {vr(PK3+16*rt+12,2)}, v{vL3}, s[28:31], s27 offen", "st")
        lab = k.newlab("j15")
        k("s_cmp_eq_u32 s52, 15")
        k(f"s_cbranch_scc1 {lab}")
        k(f"buffer_store_dwordx4 {vr(PK3+16*rt+4,4)}, v{vP3}, s[28:31], s26 offen offset:1024")
        k(f"buffer_store_dwordx4 {vr(PK3+16*rt+8,4)}, v{vP3}, s[28:31], s26 offen offset:2048")
        k.lab(lab)
        k.src = sv
    stamp()
    vq.drain()
    k(f"""
    v_mov_b32 v2, 1
    v_mov_b32 v7, 0
    s_mov_b64 exec, 1
    buffer_store_dword v2, v7, s[28:31], s15 offen
    s_mov_b64 exec, -1
    """)
    stamp()
    if STOP == "G3":
        finish(); k.lab(end); k("s_endpgm"); return kern

    w4c.pop(100)
    X1R = 96
    rl = []
    for t in range(5):
        if t < 4:
            rl.append((f"s_add_u32 s26, s44, {L.X1 + (t//2)*1024 + (t&1)*512}\nbuffer_load_dwordx2 {vr(X1R+2*t,2)}, v{vX4}, s[28:31], s26 offen sc1", "res"))
        else:
            rl.append((f"s_add_u32 s26, s45, {L.X1}\nbuffer_load_dwordx2 {vr(X1R+2*t,2)}, v{vX4}, s[28:31], s26 offen sc1", "res"))
    WB4 = 136
    k(f"""
    s_mul_i32 s26, s22, 5120
    v_add_u32 v12, s26, v8
    v_add_u32 v13, 0x10000, v12
    v_add_u32 v14, 0x20000, v12
    """)
    def wread4(slot, buf):
        o = slot * 1024
        return f"ds_read_b128 {vr(WB4+4*buf,4)}, v{12 + (o >> 16)} offset:{o & 0xffff}"
    uses = [(st, t) for st in range(27) for t in range(5)]
    luses = [u for u in uses if u[0] < DST]
    NW4 = 12
    slot4 = lambda u: step_slot(u[0]) + u[1]
    poll(vP4, 9, "s48")
    stamp()
    XRG = min(16, (256 - (27 - DST) * 20) // 8)
    def xload4(ks):
        o = []
        for rt in range(2):
            pre = "s_add_u32 s50, s50, 4096\ns_add_u32 s51, s51, 4096\n" if (rt == 0 and ks and ks % 4 == 0) else ""
            o.append((pre + f"buffer_load_dwordx4 {ar((ks % XRG)*8 + 4*rt,4)}, v8, s[28:31], s{50+rt} offen offset:{(ks%4)*1024} {XSC}", f"x4_{ks}"))
        return o
    pend = Pend()
    NPRE4 = E("NPRE4", 5)
    for ks in range(NPRE4): pend.add(xload4(ks))
    pend.pop(100)
    k("s_barrier")
    for i in range(NW4 - 1): k(wread4(slot4(luses[i]), i % NW4))
    nx = NPRE4
    for i, u in enumerate(uses):
        st, t = u
        if t == 0:
            while nx < 27 and nx - XRG < st and nx <= st + XRG - 1 and nx <= st + E("XAH", 6):
                pend.add(xload4(nx)); nx += 1
            if st == 8: pend.add(rl)
        lds = st < DST
        if t == 0:
            w = ""
            if lds:
                issued = min(i + NW4 - 1, len(luses)); need = min(i + 5, len(luses))
                w = f"lgkmcnt({max(0, issued - need)})"
            assert not pend.has(f"x4_{st}"), st
            vq.wait(f"x4_{st}", w)
        for rt in range(2):
            a_ = ACC + (rt * 5 + t) * 4
            c_ = "0" if st == 0 else vr(a_, 4)
            aop = vr(WB4+4*(i%NW4),4) if lds else ar(dreg(st, t), 4)
            k(f"v_mfma_f32_16x16x32_bf16 {vr(a_,4)}, {aop}, {ar((st % XRG)*8 + 4*rt,4)}, {c_}")
        j_ = i + NW4 - 1
        if j_ < len(luses):
            if luses[j_] == (DST - 15, 0):
                k("s_waitcnt lgkmcnt(5)")
                k("s_barrier")
                pend.items = w4_issue(160, 10, step_slot(16), "w4r") + w4_issue(170, 10 * (DST - 17), step_slot(17), "w4r") + pend.items
            if luses[j_] == (16, 0):
                assert not pend.has("w4r")
                vq.wait("w4r")
                k("s_barrier")
            k(wread4(slot4(luses[j_]), j_ % NW4))
        if i % 2 == 0 or len(pend.items) > 6: pend.pop(1)
    pend.pop(100)
    stamp()
    k("s_barrier")
    RCV = 72
    exchange()
    vq.wait("res")
    U = 136
    for t in range(5):
        for src, dst in ((X1R, U), (XAR, U + 20)):
            k(f"v_lshlrev_b32 v{dst+4*t}, 16, v{src+2*t}")
            k(f"v_and_b32 v{dst+4*t+1}, 0xffff0000, v{src+2*t}")
            k(f"v_lshlrev_b32 v{dst+4*t+2}, 16, v{src+2*t+1}")
            k(f"v_and_b32 v{dst+4*t+3}, 0xffff0000, v{src+2*t+1}")
    for t in range(5):
        for i in (0, 2): k(f"v_pk_add_f32 {vr(ACC+4*t+i,2)}, {vr(ACC+4*t+i,2)}, {vr(U+4*t+i,2)}")
    exchange2()
    for t in range(5):
        z = ACC + 4*t
        k(f"s_waitcnt lgkmcnt({4-t})")
        for i in (0, 2): k(f"v_pk_add_f32 {vr(z+i,2)}, {vr(z+i,2)}, {vr(RCV+4*t+i,2)}")
        for i in (0, 2): k(f"v_pk_fma_f32 {vr(z+i,2)}, {vr(z+i,2)}, {vr(GB+4*t+i,2)}, {vr(U+20+4*t+i,2)}")
        k(f"v_cvt_pk_bf16_f32 v{PK+2*t}, v{z}, v{z+1}")
        k(f"v_cvt_pk_bf16_f32 v{PK+2*t+1}, v{z+2}, v{z+3}")
    pair_swaps(PK, 2)
    k(f"buffer_store_dwordx4 {vr(PK,4)}, v{vO4P}, s[32:35], s46 offen")
    k(f"buffer_store_dwordx4 {vr(PK+4,4)}, v{vO4P}, s[32:35], s46 offen offset:64")
    k(f"buffer_store_dwordx2 {vr(PK+8,2)}, v{vO4L}, s[32:35], s49 offen")
    stamp()
    finish()
    k.lab(end)
    k("s_endpgm")
    return kern
```
